```python
import torch

def _softmax(x, axis=-1):
    return torch.softmax(x, dim=axis)

def _gelu(x):
    return torch.nn.functional.gelu(x, approximate='tanh')

def _silu(x):
    return torch.nn.functional.silu(x)

def _sigmoid(x):
    return torch.sigmoid(x)

def _layernorm(x, axis=-1, eps=1e-05):
    m = x.mean(dim=axis, keepdim=True)
    v = x.var(dim=axis, keepdim=True, unbiased=False)
    return (x - m) / torch.sqrt(v + eps)

def _scatter_add(tgt, idx, src, axis=0):
    return tgt.clone().index_add_(axis, idx, src)

def _segment_sum(src, seg, n):
    out = torch.zeros((n,) + src.shape[1:], dtype=src.dtype)
    return out.index_add_(0, seg, src)

def _pad(x, pw):
    flat = tuple((v for pair in reversed(pw) for v in pair))
    return torch.nn.functional.pad(x, flat)
kernel_name = 'adaLN_cond__ssm_conv_h3__glu_gated_reglu__prompt'

def setup_inputs():

    _w = lambda a: (lambda t: t.to(torch.bfloat16) if t.is_floating_point() else t)(torch.as_tensor(a))

    def _A_setup():
        B, S, D = (1, 2048, 576)
        ks = 4
        return {'q': _w((lambda *s: torch.randn(*s, dtype=torch.bfloat16) * 0.05)(B, S, D)), 'k': _w((lambda *s: torch.randn(*s, dtype=torch.bfloat16) * 0.8)(B, S, D)), 'v': _w((lambda *s: torch.randn(*s, dtype=torch.bfloat16) * 0.8)(B, S, D)), 'shift_k': _w((lambda *s: torch.randn(*s, dtype=torch.bfloat16) * 0.8)(D, ks) * 0.5), 'ssm_k': _w((lambda *s: torch.randn(*s, dtype=torch.bfloat16) * 0.8)(D, S) * (1.0 / S ** 0.5)), 'ssm_D': _w((lambda *s: torch.randn(*s, dtype=torch.bfloat16) * 0.8)(D))}
    _A_in = _A_setup()

    def _B_setup():
        B, S, D, F = (1, 2048, 576, 4608)
        return {'x': _w((lambda *s: torch.randn(*s, dtype=torch.bfloat16) * 0.05)(B, S, D)), 'W_gate': _w((lambda *s: torch.randn(*s, dtype=torch.bfloat16) * 0.8)(D, F) * (2.0 / D) ** 0.5), 'W_up': _w((lambda *s: torch.randn(*s, dtype=torch.bfloat16) * 0.8)(D, F) * (2.0 / D) ** 0.5), 'W_down': _w((lambda *s: torch.randn(*s, dtype=torch.bfloat16) * 0.8)(F, D) * (1.0 / F) ** 0.5)}
    _B_in = _B_setup()
    return {'A_q': _A_in['q'], 'A_k': _A_in['k'], 'A_v': _A_in['v'], 'A_shift_k': _A_in['shift_k'], 'A_ssm_k': _A_in['ssm_k'], 'A_ssm_D': _A_in['ssm_D'], 'B_x': _B_in['x'], 'B_W_gate': _B_in['W_gate'], 'B_W_up': _B_in['W_up'], 'B_W_down': _B_in['W_down'], 'c': _w((lambda *s: torch.randn(*s, dtype=torch.bfloat16) * 0.2)(1, 576) * 8.0), 'w_mod': _w((lambda *s: torch.randn(*s, dtype=torch.bfloat16) * 0.2)(576, 6 * 576) * 576 ** (-0.5) * 8.0)}

def reference(A_q, A_k, A_v, A_shift_k, A_ssm_k, A_ssm_D, B_x, B_W_gate, B_W_up, B_W_down, c, w_mod):

    def _A_ref(q, k, v, shift_k, ssm_k, ssm_D):
        B, S, D = q.shape
        ks = shift_k.shape[-1]
        k_pad = _pad(k, ((0, 0), (ks - 1, 0), (0, 0)))
        k_shift = torch.zeros_like(k)
        for t in range(ks):
            k_shift = k_shift + k_pad[:, t:t + S, :] * shift_k[:, ks - 1 - t][None, None, :]
        kv = k_shift * v
        L = 2 * S
        kv_pad = _pad(kv, ((0, 0), (0, S), (0, 0)))
        kf_pad = _pad(ssm_k, ((0, 0), (0, S)))
        kv_f = (lambda x, axes=(-2, -1): torch.fft.rfft2(x.float(), dim=axes))(kv_pad[:, None, :, :], axes=(1, 2))
        kf_f = (lambda x, axes=(-2, -1): torch.fft.rfft2(x.float(), dim=axes))(kf_pad[:, None, :], axes=(1, 2))
        kf_f = (lambda x, *d: x.permute(*d))(kf_f, 1, 2, 0)
        y_f = kv_f * kf_f[None, :, :, :]
        y = (lambda x, s, axes=(-2, -1): torch.fft.irfft2(x, s=s, dim=axes).to(torch.bfloat16))(y_f, (1, L), axes=(1, 2))[:, 0, :S, :]
        y = y + kv * ssm_D[None, None, :]
        return q * y

    def _B_ref(x, W_gate, W_up, W_down):
        gate = torch.einsum('bsd,df->bsf', x, W_gate)
        up = torch.einsum('bsd,df->bsf', x, W_up)
        gate = gate * (lambda x, dt: x.to(dt))(gate > 0, gate.dtype)
        h = gate * up
        return torch.einsum('bsf,fd->bsd', h, W_down)
    x = A_q
    mod = (_silu(c) @ w_mod).reshape(c.shape[0], 6, 1, -1)
    sa, ca, ga, sb, cb, gb = (mod[:, 0].clone(), mod[:, 1].clone(), mod[:, 2].clone(), mod[:, 3].clone(), mod[:, 4].clone(), mod[:, 5].clone())
    h = _layernorm(x, axis=-1) * (1 + ca) + sa
    x = x + ga * _A_ref(h, A_k, A_v, A_shift_k, A_ssm_k, A_ssm_D)
    h = _layernorm(x, axis=-1) * (1 + cb) + sb
    x = x + gb * _B_ref(h, B_W_gate, B_W_up, B_W_down)
    return x
```

```python
class K:
    def __init__(self, name):
        self.name = name
        self.lines = []
        self.nlab = 0
        self.vgpr = 0
        self.agpr = 0
        self.sgpr = 0
        self.wgy = False
    def __call__(self, s):
        for ln in s.strip("\n").split("\n"):
            ln = ln.strip()
            if ln:
                self.lines.append("  " + ln)
    def label(self, base="L"):
        self.nlab += 1
        return f"{self.name}_{base}{self.nlab}"
    def put(self, lab):
        self.lines.append(lab + ":")
    def srd(self, d, lo, hi, nbytes):
        self(f"""s_mov_b32 s{d}, s{lo}
s_mov_b32 s{d+1}, s{hi}
s_mov_b32 s{d+2}, {nbytes}
s_mov_b32 s{d+3}, 0x00020000""")
    def srd_off(self, d, lo, hi, off, nbytes):
        self(f"""s_add_u32 s{d}, s{lo}, {off}
s_addc_u32 s{d+1}, s{hi}, 0
s_mov_b32 s{d+2}, {nbytes}
s_mov_b32 s{d+3}, 0x00020000""")
    def text(self):
        out = [f".globl {self.name}", ".p2align 8", f".type {self.name},@function", f"{self.name}:"]
        out += self.lines
        return "\n".join(out) + "\n"
    def desc(self):
        acc_off = (self.vgpr + 3) // 4 * 4
        nfv = acc_off + self.agpr if self.agpr else self.vgpr
        s = f""".p2align 6
.amdhsa_kernel {self.name}
  .amdhsa_next_free_vgpr {nfv}
  .amdhsa_next_free_sgpr {self.sgpr}
  .amdhsa_accum_offset {acc_off}
  .amdhsa_group_segment_fixed_size 0
  .amdhsa_kernarg_size 120
  .amdhsa_user_sgpr_count 2
  .amdhsa_user_sgpr_kernarg_segment_ptr 1
  .amdhsa_system_sgpr_workgroup_id_x 1
  .amdhsa_float_denorm_mode_32 3
  .amdhsa_float_denorm_mode_16_64 3
.end_amdhsa_kernel
"""
        return s

def vr(a, n=1):
    return f"v{a}" if n == 1 else f"v[{a}:{a+n-1}]"
def ar(a, n=1):
    return f"a{a}" if n == 1 else f"a[{a}:{a+n-1}]"
def sr(a, n=1):
    return f"s{a}" if n == 1 else f"s[{a}:{a+n-1}]"
```

```python
import sys
from asmlib import *

S, D, F = 2048, 576, 4608
WS_UR0 = 0x0
WS_UR1 = 0x240000
WS_Y2T = 0x480000
WS_X1 = 0x6C0000
WS_H2 = 0x900000
WS_MODP = 0xB40000
WS_GBV = 0xB44000
WS_HM = 0xC00000
WS_PART = 0x1E00000
SD2 = S * D * 2
HM_BYTES = S * F * 2
PART1 = S * D * 4

ARG = dict(q=0, k=8, v=16, shift=24, ssmk=32, ssmD=40, bx=48, wg=56, wu=64, wd=72, c=80, wmod=88, out=96, dbg=104, ws=112)


def rnd_pair(k, lo, hi, tmp, smask):
    k(f"""v_cvt_pk_bf16_f32 v{tmp}, v{lo}, v{hi}
v_lshlrev_b32 v{lo}, 16, v{tmp}
v_and_b32 v{hi}, s{smask}, v{tmp}""")


def gen_k1():
    k = K("prep_kernel")
    Lexit = k.label("exit")
    Lmod = k.label("mod")
    k(f"""s_cmp_ge_u32 s2, 342
s_cbranch_scc1 {Lexit}
s_load_dwordx4 s[4:7], s[0:1], {ARG['k']}
s_load_dwordx2 s[8:9], s[0:1], {ARG['shift']}
s_load_dwordx4 s[12:15], s[0:1], {ARG['c']}
s_load_dwordx2 s[10:11], s[0:1], {ARG['ws']}
s_mov_b32 s40, 0xffff0000
v_and_b32 v1, 7, v0
v_lshrrev_b32 v2, 3, v0
s_cmp_ge_u32 s2, 288
s_cbranch_scc1 {Lmod}
s_lshr_b32 s16, s2, 5
s_and_b32 s17, s2, 31
s_waitcnt lgkmcnt(0)""")
    k.srd(20, 4, 5, SD2)
    k.srd(24, 6, 7, SD2)
    k.srd(28, 8, 9, D * 8)
    k.srd(32, 10, 11, 2 * SD2)
    k(f"""s_lshl_b32 s18, s17, 6
v_lshl_add_u32 v3, v2, 1, s18
s_movk_i32 s19, 1152
v_mul_lo_u32 v3, v3, s19
s_lshl_b32 s18, s16, 7
v_lshl_add_u32 v4, v1, 4, s18
v_add_u32 v3, v3, v4""")
    A0 = 4
    for r in range(6):
        off = (r - 4) * 1152
        k(f"v_add_u32 v{A0+r}, {off & 0xffffffff:#x}, v3")
    KR = 12
    VR = 36
    WR = 48
    for r in range(6):
        k(f"buffer_load_dwordx4 v[{KR+4*r}:{KR+4*r+3}], v{A0+r}, s[20:23], 0 offen")
    for r in range(3):
        k(f"buffer_load_dwordx4 v[{VR+4*r}:{VR+4*r+3}], v{A0+3+r}, s[24:27], 0 offen")
    k(f"""s_lshl_b32 s18, s16, 9
v_lshl_add_u32 v10, v1, 6, s18""")
    for i in range(4):
        k(f"buffer_load_dwordx4 v[{WR+4*i}:{WR+4*i+3}], v10, s[28:31], 0 offen offset:{16*i}")
    k(f"""v_sub_u32 v10, 31, v2
v_lshlrev_b32 v11, 2, v1
v_xor_b32 v10, v10, v11
v_lshlrev_b32 v10, 2, v10
v_lshl_add_u32 v10, v1, 10, v10""")
    WF = 64
    KF = 96
    VF = 144
    U = 168
    P = 192
    k("s_waitcnt vmcnt(0)")
    for j in range(8):
        k(f"""v_lshlrev_b32 v{WF+0*8+j}, 16, v{WR+2*j}
v_and_b32 v{WF+1*8+j}, s40, v{WR+2*j}
v_lshlrev_b32 v{WF+2*8+j}, 16, v{WR+2*j+1}
v_and_b32 v{WF+3*8+j}, s40, v{WR+2*j+1}""")
    for r in range(6):
        for q in range(4):
            k(f"""v_lshlrev_b32 v{KF+8*r+2*q}, 16, v{KR+4*r+q}
v_and_b32 v{KF+8*r+2*q+1}, s40, v{KR+4*r+q}""")
    for r in range(3):
        for q in range(4):
            k(f"""v_lshlrev_b32 v{VF+8*r+2*q}, 16, v{VR+4*r+q}
v_and_b32 v{VF+8*r+2*q+1}, s40, v{VR+4*r+q}""")
    for o in range(3):
        for q in range(4):
            for t in range(4):
                k(f"v_pk_mul_f32 v[{P+2*t}:{P+2*t+1}], v[{KF+8*(o+t)+2*q}:{KF+8*(o+t)+2*q+1}], v[{WF+8*(3-t)+2*q}:{WF+8*(3-t)+2*q+1}]")
            for t in range(4):
                rnd_pair(k, P + 2 * t, P + 2 * t + 1, 200 + t, 40)
            for t in range(1, 4):
                k(f"v_pk_add_f32 v[{P}:{P+1}], v[{P}:{P+1}], v[{P+2*t}:{P+2*t+1}]")
                rnd_pair(k, P, P + 1, 200, 40)
            k(f"v_pk_mul_f32 v[{U+8*o+2*q}:{U+8*o+2*q+1}], v[{P}:{P+1}], v[{VF+8*o+2*q}:{VF+8*o+2*q+1}]")
    for j in range(8):
        k(f"""v_cvt_pk_bf16_f32 v{P+(j&1)*2}, v{U+16+j}, v{U+8+j}
v_cvt_pk_bf16_f32 v{P+(j&1)*2+1}, v{U+8+j}, v{U+j}
ds_write_b32 v10, v{P+(j&1)*2} offset:{j*128}
ds_write_b32 v10, v{P+(j&1)*2+1} offset:{8192+j*128}""")
    k(f"""v_lshrrev_b32 v4, 3, v0
v_and_b32 v5, 7, v0
v_lshrrev_b32 v6, 3, v4
v_xor_b32 v7, v5, v6
v_lshlrev_b32 v7, 4, v7
v_lshl_add_u32 v7, v4, 7, v7
v_xor_b32 v8, 64, v7
v_add_u32 v8, 4096, v8
s_lshl_b32 s18, s16, 18
s_lshl_b32 s19, s17, 7
s_sub_u32 s18, s18, s19
s_add_u32 s18, s18, 3968
v_lshlrev_b32 v9, 12, v4
v_lshl_add_u32 v9, v5, 4, v9
v_add_u32 v9, s18, v9
v_add_u32 v11, 0x20000, v9
s_waitcnt lgkmcnt(0)
s_barrier
ds_read_b128 v[12:15], v7
ds_read_b128 v[16:19], v8
ds_read_b128 v[20:23], v7 offset:8192
ds_read_b128 v[24:27], v8 offset:8192
s_mov_b32 s18, {WS_UR1}
s_waitcnt lgkmcnt(3)
buffer_store_dwordx4 v[12:15], v9, s[32:35], 0 offen
s_waitcnt lgkmcnt(2)
buffer_store_dwordx4 v[16:19], v11, s[32:35], 0 offen
s_waitcnt lgkmcnt(1)
buffer_store_dwordx4 v[20:23], v9, s[32:35], s18 offen
s_waitcnt lgkmcnt(0)
buffer_store_dwordx4 v[24:27], v11, s[32:35], s18 offen
s_endpgm""")
    k.put(Lmod)
    k(f"""s_sub_u32 s16, s2, 288
s_waitcnt lgkmcnt(0)""")
    k.srd(20, 12, 13, D * 2)
    k.srd(24, 14, 15, D * 6 * D * 2)
    k.srd_off(28, 10, 11, WS_MODP, 0x8000)
    WL = 32
    CL = 8
    k(f"""s_movk_i32 s19, 6912
v_mul_lo_u32 v3, v2, s19
s_lshl_b32 s18, s16, 7
v_lshl_add_u32 v4, v1, 4, s18
v_add_u32 v3, v3, v4
v_lshlrev_b32 v4, 1, v2""")
    for i in range(18):
        k(f"v_mov_b32 v{CL+i}, 0")
    for i in range(18):
        k(f"buffer_load_short_d16_hi v{CL+i}, v4, s[20:23], 0 offen offset:{64*i}")
    k("s_mov_b32 s18, 0")
    for i in range(18):
        k(f"buffer_load_dwordx4 v[{WL+4*i}:{WL+4*i+3}], v3, s[24:27], s18 offen")
        if i < 17:
            k(f"s_add_u32 s18, s18, {32*6912}")
    k("s_mov_b32 s19, 0xbfb8aa3b")
    k("s_waitcnt vmcnt(18)")
    for i in range(18):
        k(f"v_mul_f32 v{104+i}, s19, v{CL+i}")
    for i in range(18):
        k(f"v_exp_f32 v{104+i}, v{104+i}")
    for i in range(18):
        k(f"v_add_f32 v{104+i}, 1.0, v{104+i}")
    for i in range(18):
        k(f"v_rcp_f32 v{104+i}, v{104+i}")
    k("s_nop 0")
    for i in range(18):
        k(f"v_mul_f32 v{CL+i}, v{CL+i}, v{104+i}")
    for i in range(0, 18, 2):
        rnd_pair(k, CL + i, CL + i + 1, 104 + i, 40)
    ACC = 124
    for j in range(8):
        k(f"v_mov_b32 v{ACC+j}, 0")
    for i in range(18):
        k(f"s_waitcnt vmcnt({17-i})")
        for q in range(4):
            k(f"""v_lshlrev_b32 v{104+2*q}, 16, v{WL+4*i+q}
v_and_b32 v{104+2*q+1}, s40, v{WL+4*i+q}""")
        for j in range(8):
            k(f"v_fmac_f32 v{ACC+j}, v{CL+i}, v{104+j}")
    k(f"""v_lshlrev_b32 v4, 8, v2
v_lshl_add_u32 v4, v1, 5, v4
ds_write_b128 v4, v[{ACC}:{ACC+3}]
ds_write_b128 v4, v[{ACC+4}:{ACC+7}] offset:16
v_lshlrev_b32 v5, 2, v0
s_waitcnt lgkmcnt(0)
s_barrier
v_cmp_gt_u32 vcc, 64, v0
s_and_saveexec_b64 s[36:37], vcc
s_cbranch_execz {Lexit}""")
    for i in range(32):
        k(f"ds_read_b32 v{32+i}, v5 offset:{256*i}")
    k("s_waitcnt lgkmcnt(0)")
    for st in (16, 8, 4, 2, 1):
        for i in range(st):
            k(f"v_add_f32 v{32+i}, v{32+i}, v{32+i+st}")
    k(f"""s_mul_i32 s17, s16, 7282
s_lshr_b32 s17, s17, 16
s_mul_i32 s18, s17, 9
s_sub_u32 s18, s16, s18
v_cvt_pk_bf16_f32 v33, v32, v32
v_and_b32 v32, s40, v33
v_add_f32 v34, 1.0, v32
v_cvt_pk_bf16_f32 v34, v34, v34
s_cmp_eq_u32 s17, 1
s_cselect_b32 s19, 1, 0
s_cmp_eq_u32 s17, 4
s_cselect_b32 s19, 1, s19
s_cmp_eq_u32 s19, 1
s_cselect_b64 vcc, -1, 0
s_lshl_b32 s18, s18, 6
v_add_u32 v6, s18, v0
v_cndmask_b32 v33, v33, v34, vcc
v_lshlrev_b32 v7, 4, v6
s_lshl_b32 s19, s17, 1
buffer_store_short v33, v7, s[28:31], s19 offen
s_cmp_lg_u32 s17, 5
s_cbranch_scc1 {Lexit}
v_lshlrev_b32 v7, 2, v6
s_movk_i32 s19, 0x4000
buffer_store_dword v32, v7, s[28:31], s19 offen""")
    k.put(Lexit)
    k("s_endpgm")
    k.vgpr = 208
    k.sgpr = 48
    return k


SU = 4160
SK = 4640
KB = 4 * SU
K2_LDS = KB + 2 * SK


def gen_k2():
    k = K("conv_kernel")
    Lexit = k.label("exit")
    k(f"""s_cmp_ge_u32 s2, 576
s_cbranch_scc1 {Lexit}
s_load_dwordx4 s[4:7], s[0:1], {ARG['ssmk']}
s_load_dwordx2 s[10:11], s[0:1], {ARG['ws']}
s_mov_b32 s40, 0xffff0000
v_mov_b32 v4, 0
v_mov_b32 v5, 0
v_mov_b32 v6, 0
v_mov_b32 v7, 0
v_and_b32 v1, 15, v0
v_lshrrev_b32 v2, 4, v0
v_lshrrev_b32 v3, 2, v1
v_and_b32 v8, 3, v0
s_movk_i32 s16, {SU}
v_mul_u32_u24 v9, s16, v3
v_lshl_add_u32 v9, v8, 4, v9
ds_write_b128 v9, v[4:7] offset:4096
v_lshrrev_b32 v9, 5, v0
s_movk_i32 s17, {SK}
v_mul_u32_u24 v9, s17, v9
v_and_b32 v10, 31, v0
v_lshl_add_u32 v9, v10, 4, v9
ds_write_b128 v9, v[4:7] offset:{KB}
s_lshl_b32 s18, s2, 12
s_lshl_b32 s19, s2, 1
s_and_b32 s19, s19, 0xfffffffc
v_lshlrev_b32 v11, 4, v0
s_waitcnt lgkmcnt(0)
s_load_dword s41, s[6:7], s19""")
    k.srd_off(20, 4, 5, "s18", 4096)
    k(f"""s_add_u32 s12, s10, s18
s_addc_u32 s13, s11, 0""")
    k.srd_off(24, 12, 13, WS_UR0, 4096)
    k.srd_off(28, 12, 13, WS_UR1, 4096)
    k.srd_off(32, 12, 13, WS_Y2T, 4096)
    copies = [(20, KB + 456), (20, KB + SK + 448), (28, 12), (24, SU + 12), (28, 2 * SU + 16), (24, 3 * SU + 16)]
    for srd, dst in copies:
        k(f"s_movk_i32 m0, {dst}")
        k("s_nop 0")
        for i in range(4):
            k(f"buffer_load_dwordx4 v11, s[{srd}:{srd+3}], 0 offen offset:{1024*i} lds")
    k(f"""v_mul_u32_u24 v12, s16, v8
v_sub_u32 v13, v2, v3
v_lshl_add_u32 v12, v13, 4, v12
v_add_u32 v12, 48, v12
v_and_b32 v13, 1, v0
v_mul_u32_u24 v13, s17, v13
v_lshrrev_b32 v14, 1, v1
v_lshl_add_u32 v13, v14, 6, v13
v_lshl_add_u32 v13, v2, 4, v13
v_add_u32 v13, {KB}, v13
v_and_b32 v15, 1, v0
v_lshlrev_b32 v15, 3, v15
v_lshl_add_u32 v15, v14, 6, v15
v_lshl_add_u32 v15, v2, 4, v15
v_sub_u32 v16, {3*SU + 4104 - 3584}, v15""")
    ACC = 20
    FR = 52
    for i in range(32):
        k(f"v_mov_b32 v{ACC+i}, 0")

    def reads(r):
        st = r & 1
        out = []
        for n in range(8):
            out.append(f"ds_read_b128 v[{FR+64*st+4*n}:{FR+64*st+4*n+3}], v12 offset:{3648 - 48 + 64*r - 512*n}")
            out.append(f"ds_read_b128 v[{FR+64*st+32+4*n}:{FR+64*st+32+4*n+3}], v13 offset:{64*r + 512*n}")
        return out

    k("s_waitcnt vmcnt(0)")
    for ln in reads(0):
        k(ln)
    for r in range(8):
        st = r & 1
        nxt = reads(r + 1) if r < 7 else []
        k("s_waitcnt lgkmcnt(0)")
        mf = []
        for w in range(8):
            for q in range(8 - w):
                t = q + w
                mf.append(f"v_mfma_f32_16x16x32_bf16 v[{ACC+4*t}:{ACC+4*t+3}], v[{FR+64*st+4*w}:{FR+64*st+4*w+3}], v[{FR+64*st+32+4*q}:{FR+64*st+32+4*q+3}], v[{ACC+4*t}:{ACC+4*t+3}]")
        for i, m in enumerate(mf):
            k(m)
            if i < len(nxt):
                k(nxt[i])
    UV = FR
    for t in range(8):
        k(f"ds_read_b64 v[{UV+2*t}:{UV+2*t+1}], v16 offset:{512*(7-t)}")
    k(f"""s_and_b32 s42, s2, 1
s_lshl_b32 s43, s41, 16
s_and_b32 s41, s41, s40
s_cmp_eq_u32 s42, 0
s_cselect_b32 s41, s43, s41
s_waitcnt lgkmcnt(0)""")
    T = FR + 32
    for t in range(8):
        a = ACC + 4 * t
        u0, u1 = UV + 2 * t, UV + 2 * t + 1
        b = T + 8 * (t & 1)
        k(f"""v_and_b32 v{b}, s40, v{u1}
v_lshlrev_b32 v{b+1}, 16, v{u1}
v_and_b32 v{b+2}, s40, v{u0}
v_lshlrev_b32 v{b+3}, 16, v{u0}
v_mul_f32 v{b}, s41, v{b}
v_mul_f32 v{b+1}, s41, v{b+1}
v_mul_f32 v{b+2}, s41, v{b+2}
v_mul_f32 v{b+3}, s41, v{b+3}""")
        rnd_pair(k, b, b + 1, b + 4, 40)
        rnd_pair(k, b + 2, b + 3, b + 5, 40)
        rnd_pair(k, a, a + 1, b + 4, 40)
        rnd_pair(k, a + 2, a + 3, b + 5, 40)
        k(f"""v_add_f32 v{b}, v{b}, v{a}
v_add_f32 v{b+1}, v{b+1}, v{a+1}
v_add_f32 v{b+2}, v{b+2}, v{a+2}
v_add_f32 v{b+3}, v{b+3}, v{a+3}
v_cvt_pk_bf16_f32 v{b+6}, v{b}, v{b+1}
v_cvt_pk_bf16_f32 v{b+7}, v{b+2}, v{b+3}
buffer_store_dwordx2 v[{b+6}:{b+7}], v15, s[32:35], 0 offen offset:{512*t}""")
    k.put(Lexit)
    k("s_endpgm")
    k.vgpr = FR + 128
    k.sgpr = 48
    return k


def wave_sum(k, v, t):
    k(f"""s_nop 1
v_add_f32 v{v}, v{v}, v{v} quad_perm:[1,0,3,2] row_mask:0xf bank_mask:0xf
s_nop 1
v_add_f32 v{v}, v{v}, v{v} quad_perm:[2,3,0,1] row_mask:0xf bank_mask:0xf
s_nop 1
v_add_f32 v{v}, v{v}, v{v} row_half_mirror row_mask:0xf bank_mask:0xf
s_nop 1
v_add_f32 v{v}, v{v}, v{v} row_mirror row_mask:0xf bank_mask:0xf
v_mov_b32 v{t}, v{v}
s_nop 1
v_permlane16_swap_b32 v{v}, v{t}
v_add_f32 v{v}, v{v}, v{t}
v_mov_b32 v{t}, v{v}
s_nop 1
v_permlane32_swap_b32 v{v}, v{t}
v_add_f32 v{v}, v{v}, v{t}""")


def rnd_list(k, regs, tmp, smask):
    i = 0
    while i < len(regs):
        if i + 1 < len(regs):
            rnd_pair(k, regs[i], regs[i + 1], tmp + (i // 2) % 4, smask)
            i += 2
        else:
            k(f"""v_cvt_pk_bf16_f32 v{tmp}, v{regs[i]}, v{regs[i]}
v_and_b32 v{regs[i]}, s{smask}, v{tmp}""")
            i += 1


def layernorm(k, X, O, T, R):
    s, t2, m = R, R + 1, R + 2
    k(f"v_add_f32 v{s}, v{X}, v{X+1}")
    for i in range(2, 9):
        k(f"v_add_f32 v{s}, v{s}, v{X+i}")
    wave_sum(k, s, t2)
    k(f"v_mul_f32 v{m}, s44, v{s}")
    for i in range(9):
        k(f"v_sub_f32 v{O+i}, v{X+i}, v{m}")
    k(f"v_mul_f32 v{s}, v{O}, v{O}")
    for i in range(1, 9):
        k(f"v_fmac_f32 v{s}, v{O+i}, v{O+i}")
    wave_sum(k, s, t2)
    k(f"v_mul_f32 v{s}, s44, v{s}")
    rnd_pair(k, m, s, T, 40)
    k(f"v_add_f32 v{s}, s45, v{s}")
    k(f"""v_cvt_pk_bf16_f32 v{T}, v{s}, v{s}
v_and_b32 v{s}, s40, v{T}
v_sqrt_f32 v{s}, v{s}
s_nop 0
v_cvt_pk_bf16_f32 v{T}, v{s}, v{s}
v_and_b32 v{s}, s40, v{T}
v_rcp_f32 v{t2}, v{s}""")
    for i in range(9):
        k(f"v_sub_f32 v{O+i}, v{X+i}, v{m}")
    rnd_list(k, [O + i for i in range(9)], T, 40)
    for i in range(9):
        k(f"""v_mul_f32 v{T}, v{O+i}, v{t2}
v_fma_f32 v{T+1}, -v{T}, v{s}, v{O+i}
v_fma_f32 v{O+i}, v{T+1}, v{t2}, v{T}""")
    rnd_list(k, [O + i for i in range(9)], T, 40)


def gen_k3():
    k = K("rows_kernel")
    Lexit = k.label("exit")
    L1 = k.label("no9")
    L2 = k.label("no2nd")
    k(f"""s_cmp_ge_u32 s2, 256
s_cbranch_scc1 {Lexit}
s_load_dwordx2 s[4:5], s[0:1], {ARG['q']}
s_load_dwordx2 s[10:11], s[0:1], {ARG['ws']}
s_mov_b32 s40, 0xffff0000
s_mov_b32 s44, 0x3ae38e39
s_mov_b32 s45, 0x3727c5ac
v_and_b32 v1, 63, v0
v_lshrrev_b32 v2, 6, v0
s_nop 0
v_readfirstlane_b32 s16, v2
s_waitcnt lgkmcnt(0)""")
    k.srd(20, 4, 5, SD2)
    k.srd_off(24, 10, 11, WS_Y2T, SD2)
    k.srd_off(28, 10, 11, WS_MODP, 9216)
    k.srd_off(32, 10, 11, WS_X1, SD2)
    k.srd_off(36, 10, 11, WS_H2, SD2)
    X = 8
    Y = 18
    MP = 28
    O = 64
    T = 74
    R = 78
    k(f"""s_lshl_b32 s17, s16, 18
s_lshl_b32 s18, s2, 4
s_add_u32 s17, s17, s18
v_lshlrev_b32 v3, 12, v1
s_lshl_b32 s19, s16, 10
s_mov_b32 m0, s19
s_nop 0
buffer_load_dwordx4 v3, s[24:27], s17 offen lds
s_cmp_lg_u32 s16, 0
s_cbranch_scc1 {L1}
s_add_u32 s17, s17, {8 << 18}
s_movk_i32 m0, 8192
s_nop 0
buffer_load_dwordx4 v3, s[24:27], s17 offen lds""")
    k.put(L1)
    for i in range(9):
        k(f"v_mov_b32 v{X+i}, 0")
        k(f"v_mov_b32 v{Y+i}, 0")
    k(f"""s_lshl_b32 s17, s2, 3
s_add_u32 s17, s17, s16
s_mul_i32 s17, s17, 1152
v_lshlrev_b32 v4, 1, v1
v_lshlrev_b32 v5, 4, v1
s_movk_i32 s18, 4096
s_movk_i32 s19, 8192""")
    for i in range(9):
        k(f"buffer_load_short_d16_hi v{X+i}, v4, s[20:23], s17 offen offset:{128*i}")
    for i in range(9):
        so = "0" if i < 4 else ("s18" if i < 8 else "s19")
        k(f"buffer_load_dwordx4 v[{MP+4*i}:{MP+4*i+3}], v5, s[28:31], {so} offen offset:{1024*(i%4)}")
    k(f"""v_lshl_add_u32 v6, v2, 1, v5
v_lshrrev_b32 v7, 5, v1
v_lshlrev_b32 v7, 9, v7
v_bfe_u32 v3, v1, 2, 2
v_lshl_add_u32 v7, v3, 7, v7
v_lshl_add_u32 v7, v2, 4, v7
v_bfe_u32 v3, v1, 4, 1
v_lshl_add_u32 v7, v3, 3, v7
v_and_b32 v3, 3, v1
v_lshl_add_u32 v7, v3, 1, v7
s_waitcnt vmcnt(9)""")
    layernorm(k, X, O, T, R)
    k("""s_waitcnt vmcnt(0)
s_barrier""")
    for i in range(9):
        k(f"ds_read_u16_d16_hi v{Y+i}, v6 offset:{1024*i}")
    for i in range(9):
        k(f"""v_and_b32 v{T}, s40, v{MP+4*i}
v_mul_f32 v{O+i}, v{O+i}, v{T}""")
    rnd_list(k, [O + i for i in range(9)], T, 40)
    for i in range(9):
        k(f"""v_lshlrev_b32 v{T}, 16, v{MP+4*i}
v_add_f32 v{O+i}, v{O+i}, v{T}""")
    rnd_list(k, [O + i for i in range(9)], T, 40)
    k("s_waitcnt lgkmcnt(0)")
    for i in range(9):
        k(f"v_mul_f32 v{O+i}, v{O+i}, v{Y+i}")
    rnd_list(k, [O + i for i in range(9)], T, 40)
    for i in range(9):
        k(f"""v_lshlrev_b32 v{T}, 16, v{MP+4*i+1}
v_mul_f32 v{O+i}, v{O+i}, v{T}""")
    rnd_list(k, [O + i for i in range(9)], T, 40)
    for i in range(9):
        k(f"v_add_f32 v{X+i}, v{X+i}, v{O+i}")
    rnd_list(k, [X + i for i in range(9)], T, 40)
    for i in range(9):
        k(f"buffer_store_short_d16_hi v{X+i}, v4, s[32:35], s17 offen offset:{128*i}")
    layernorm(k, X, O, T, R)
    for i in range(9):
        k(f"""v_lshlrev_b32 v{T}, 16, v{MP+4*i+2}
v_mul_f32 v{O+i}, v{O+i}, v{T}""")
    rnd_list(k, [O + i for i in range(9)], T, 40)
    for i in range(9):
        k(f"""v_and_b32 v{T}, s40, v{MP+4*i+1}
v_add_f32 v{O+i}, v{O+i}, v{T}
v_cvt_pk_bf16_f32 v{O+i}, v{O+i}, v{O+i}
ds_write_b16 v7, v{O+i} offset:{9216+1024*i}""")
    k(f"""v_lshlrev_b32 v6, 4, v0
v_lshrrev_b32 v7, 3, v0
v_lshlrev_b32 v7, 8, v7
v_and_b32 v3, 7, v0
v_lshl_add_u32 v7, v3, 4, v7
s_lshr_b32 s17, s2, 1
s_mul_i32 s17, s17, 18432
s_and_b32 s18, s2, 1
s_lshl_b32 s18, s18, 7
s_add_u32 s17, s17, s18
s_waitcnt lgkmcnt(0)
s_barrier
ds_read_b128 v[8:11], v6 offset:9216
s_cmp_lg_u32 s16, 0
s_cbranch_scc1 {L2}
ds_read_b128 v[12:15], v6 offset:{9216+8192}
s_add_u32 s18, s17, 16384
s_waitcnt lgkmcnt(0)
buffer_store_dwordx4 v[12:15], v7, s[36:39], s18 offen""")
    k.put(L2)
    k(f"""s_waitcnt lgkmcnt(0)
buffer_store_dwordx4 v[8:11], v7, s[36:39], s17 offen""")
    k.put(Lexit)
    k("s_endpgm")
    k.vgpr = 84
    k.sgpr = 48
    return k


STG = 36864
NBUF = 3
G_LDS = STG * NBUF


def gen_gemm(which):
    g1 = which == 1
    k = K("gemm1_kernel" if g1 else "gemm2_kernel")
    Lexit = k.label("exit")
    NT = 18 if g1 else 9
    NACC = NT * 4
    DAH = 4
    RING = 6
    NV = min(NACC, 56)
    def acc(ti):
        return vr(32 + 4 * ti, 4) if ti < NV else ar(4 * (ti - NV), 4)
    AB = 4 * (NACC - NV)
    XR = AB
    WRG = AB + 64
    def xfrag(xs, kk, st):
        return ar(XR + 32 * xs + 16 * kk + 4 * st, 4)
    def wfrag(slot, half=None):
        if half is None:
            return ar(WRG + 4 * slot, 4)
        return ar(WRG + 4 * slot + 2 * half, 2)
    k.agpr = WRG + 4 * RING
    k.vgpr = 32 + 4 * NV
    k.sgpr = 64
    VX = 4
    VD = 8
    VP, VS = 18, 19
    VPN, VSN = 20, 21
    k(f"""s_cmp_ge_u32 s2, 256
s_cbranch_scc1 {Lexit}
s_load_dwordx4 s[4:7], s[0:1], {ARG['wg']}
s_load_dwordx2 s[8:9], s[0:1], {ARG['wd']}
s_load_dwordx2 s[10:11], s[0:1], {ARG['ws']}
v_and_b32 v1, 63, v0
v_lshrrev_b32 v2, 6, v0
s_and_b32 s16, s2, 7
s_lshr_b32 s17, s2, 3
v_readfirstlane_b32 s18, v2
s_nop 3
s_lshr_b32 s19, s18, 1
s_and_b32 s20, s18, 1""")
    if g1:
        k(f"""s_and_b32 s21, s17, 3
s_lshl_b32 s16, s16, 2
s_add_u32 s21, s21, s16
s_lshr_b32 s22, s17, 2
s_waitcnt lgkmcnt(0)
s_cmp_eq_u32 s19, 0
s_cselect_b32 s12, s4, s6
s_cselect_b32 s13, s5, s7""")
        k.srd(24, 12, 13, D * F * 2)
        k.srd_off(28, 10, 11, WS_H2, SD2)
        k.srd_off(32, 10, 11, WS_HM, HM_BYTES)
        PITCH = F * 2
        XST = 18432
        k(f"""s_lshl_b32 s23, s22, 4
s_lshl_b32 s36, s18, 2
s_add_u32 s23, s23, s36
s_mul_i32 s36, s23, {XST}
s_mul_i32 s37, s21, 288
s_mov_b32 s38, 0""")
    else:
        k(f"""s_and_b32 s21, s17, 3
s_and_b32 s39, s16, 3
s_lshr_b32 s16, s16, 2
s_lshl_b32 s16, s16, 3
s_lshr_b32 s22, s17, 2
s_add_u32 s22, s22, s16
s_waitcnt lgkmcnt(0)""")
        k.srd(24, 8, 9, D * F * 2)
        k.srd_off(28, 10, 11, WS_HM, HM_BYTES)
        k.srd_off(32, 10, 11, WS_PART, 4 * PART1)
        PITCH = D * 2
        XST = 147456
        k(f"""s_lshl_b32 s23, s22, 3
s_lshl_b32 s36, s20, 2
s_add_u32 s23, s23, s36
s_mul_i32 s36, s23, {XST}
s_lshl_b32 s37, s39, 1
s_add_u32 s37, s37, s19
s_mul_i32 s38, s37, {18*1024}
s_add_u32 s36, s36, s38
s_mul_i32 s38, s37, {576*PITCH}
s_mul_i32 s37, s21, 288""")
    k(f"v_lshl_add_u32 v{VX}, v1, 4, s36")
    for st in range(1, 4):
        k(f"v_add_u32 v{VX+st}, {XST}, v{VX+st-1}")
    k(f"""s_mul_i32 s36, s20, 576
s_add_u32 s37, s37, s38
s_movk_i32 s40, 3641
s_movk_i32 s41, {PITCH}""")
    for n in range(9):
        k(f"""v_add_u32 v22, s36, v1
v_add_u32 v22, {64*n}, v22
v_mul_lo_u32 v23, v22, s40
v_lshrrev_b32 v23, 16, v23
v_mul_u32_u24 v24, 18, v23
v_sub_u32 v24, v22, v24
v_mul_lo_u32 v23, v23, s41
v_lshl_add_u32 v23, v24, 4, v23
v_add_u32 v{VD+n}, s37, v23""")
    k(f"""s_mul_i32 s42, s19, 18432
s_mul_i32 s36, s20, 9216
s_add_u32 s42, s42, s36""")
    k(f"""v_lshrrev_b32 v22, 2, v1
v_mul_u32_u24 v22, 288, v22
v_and_b32 v23, 3, v1
v_lshl_add_u32 v22, v23, 3, v22""")
    if g1:
        k(f"""s_and_b32 s36, s21, 1
s_lshl_b32 s37, s36, 5
s_xor_b32 s36, s36, 1
s_lshl_b32 s36, s36, 8
v_add_u32 v{VP}, s37, v22
v_add_u32 v{VS}, s36, v22""")
    else:
        k(f"""s_mul_i32 s36, s19, 18432
v_add_u32 v{VP}, s36, v22
v_add_u32 v{VS}, 256, v{VP}""")
    k(f"""v_add_u32 v{VPN}, {STG}, v{VP}
v_add_u32 v{VSN}, {STG}, v{VS}""")

    def dma_list():
        out = []
        for n in range(9):
            out.append(f"s_add_u32 m0, s45, {1024*n}\ns_nop 0\nbuffer_load_dwordx4 v{VD+n}, s[24:27], s44 offen lds")
        return out
    def dma_adv():
        return f"""s_add_u32 s44, s44, {64*PITCH}
s_add_u32 s45, s45, {STG}
s_cmp_ge_u32 s45, s47
s_cselect_b32 s45, s42, s45"""
    def xload_list(xs):
        out = []
        for kk in range(2):
            for st in range(4):
                out.append(f"buffer_load_dwordx4 {xfrag(xs, kk, st)}, v{VX+st}, s[28:31], s46 offen offset:{1024*kk}")
        return out
    k(f"""s_mov_b32 s44, 0
s_mov_b32 s45, s42
s_mov_b32 s46, 0
s_add_u32 s47, s42, {STG*NBUF}""")
    for ln in xload_list(0):
        k(ln)
    k("s_add_u32 s46, s46, 2048")
    for j in range(2):
        for ln in dma_list():
            k(ln)
        k(dma_adv())
    for ti in range(NACC):
        for r in range(4):
            if ti < NV:
                k(f"v_mov_b32 v{32+4*ti+r}, 0")
            else:
                k(f"v_accvgpr_write_b32 a{4*(ti-NV)+r}, 0")
    NF = 2 * NT

    def frag_info(f):
        kk = f // NT
        r = f % NT
        return kk, r % 9, r // 9

    def tr_reads(f, nxt, slot):
        kk, t, m = frag_info(f)
        base = (VPN if nxt else VP) if t < 8 else (VSN if nxt else VS)
        off = m * 18432 + kk * 9216 + (32 * t if t < 8 else 0)
        return [f"ds_read_b64_tr_b16 {wfrag(slot, 0)}, v{base} offset:{off}",
                f"ds_read_b64_tr_b16 {wfrag(slot, 1)}, v{base} offset:{off + 4608}"]

    k("""s_waitcnt vmcnt(9)
s_barrier""")
    slot_ctr = [0]
    assert NF % RING == 0
    for f in range(DAH):
        for ln in tr_reads(f, False, f % RING):
            k(ln)

    def stage(xs, last):
        xl = [] if last else xload_list(1 - xs)
        dl = []
        for f in range(NF):
            kk, t, m = frag_info(f)
            fa = f + DAH
            if fa == NF and not last:
                k("s_waitcnt vmcnt(8)")
                k("s_barrier")
                dl = dma_list()
            rd = []
            if fa < NF:
                rd = tr_reads(fa, False, fa % RING)
            elif not last:
                rd = tr_reads(fa - NF, True, fa % RING)
            ahead = len(rd) // 2
            rem = min(DAH - 1, (NF - 1 - f) if last else DAH - 1)
            k(f"s_waitcnt lgkmcnt({2*rem})")
            ti_base = (m * 9 + t) * 4
            for st in range(4):
                k(f"v_mfma_f32_16x16x32_bf16 {acc(ti_base+st)}, {wfrag(f % RING)}, {xfrag(xs, kk, st)}, {acc(ti_base+st)}")
                if st == 0 and rd:
                    k(rd[0])
                if st == 1 and rd:
                    k(rd[1])
                if st == 2:
                    if xl:
                        k(xl.pop(0))
                        if not xl:
                            k("s_add_u32 s46, s46, 2048")
                    elif dl:
                        k(dl.pop(0))
                if st == 3 and dl:
                    k(dl.pop(0))
                    if dl:
                        k(dl.pop(0))
        while dl:
            k(dl.pop(0))
        if not last:
            k(dma_adv())
            k(f"""v_mov_b32 v{VP}, v{VPN}
v_mov_b32 v{VS}, v{VSN}
s_add_u32 s48, s48, {STG}
s_cmp_ge_u32 s48, {STG*NBUF}
s_cselect_b32 s49, {(-STG*(NBUF-1)) & 0xffffffff:#x}, s50
s_cselect_b32 s48, 0, s48
v_add_u32 v{VPN}, s49, v{VPN}
v_add_u32 v{VSN}, s49, v{VSN}
s_waitcnt vmcnt(9)""")

    k(f"""s_mov_b32 s48, {STG}
s_mov_b32 s50, {STG}
s_mov_b32 s51, 0""")
    Lloop = k.label("loop")
    k.put(Lloop)
    stage(0, False)
    stage(1, False)
    k(f"""s_add_u32 s51, s51, 1
s_cmp_lt_u32 s51, 4
s_cbranch_scc1 {Lloop}""")
    stage(0, True)
    k("s_nop 7")
    k("s_nop 7")

    def accreg(ti, r, tmp):
        if ti < NV:
            return f"v{32+4*ti+r}"
        k(f"v_accvgpr_read_b32 v{tmp}, a{4*(ti-NV)+r}")
        return f"v{tmp}"

    if g1:
        k(f"""s_mul_i32 s36, s21, 9
s_and_b32 s37, s21, 1
s_add_u32 s38, s36, s37
s_lshr_b32 s38, s38, 1
s_lshl_b32 s38, s38, 10
s_xor_b32 s39, s37, 1
s_lshl_b32 s39, s39, 3
s_add_u32 s39, s39, s36
s_lshr_b32 s39, s39, 1
s_lshl_b32 s39, s39, 10
s_lshl_b32 s37, s37, 3
s_add_u32 s39, s39, s37
s_mul_i32 s36, s23, 147456
v_lshl_add_u32 v{VX}, v1, 4, s36""")
        for st in range(1, 4):
            k(f"v_add_u32 v{VX+st}, 147456, v{VX+st-1}")
        cnt = 0
        for st in range(4):
            for pr in range(5):
                tiles = [2 * pr, 2 * pr + 1] if pr < 4 else [8]
                ob = 8 + 4 * (cnt % 2)
                cnt += 1
                for hi, t in enumerate(tiles):
                    tg = t * 4 + st
                    tu = (9 + t) * 4 + st
                    hs = []
                    for r in range(4):
                        gname = accreg(tg, r, 16 + r)
                        uname = accreg(tu, r, 20 + r)
                        k(f"v_max_f32 v{24+r}, 0, {gname}")
                        k(f"v_mul_f32 v{24+r}, v{24+r}, {uname}")
                    k(f"""v_cvt_pk_bf16_f32 v{ob+2*hi}, v24, v25
v_cvt_pk_bf16_f32 v{ob+2*hi+1}, v26, v27""")
                if pr < 4:
                    k(f"buffer_store_dwordx4 v[{ob}:{ob+3}], v{VX+st}, s[32:35], s38 offen offset:{1024*pr}")
                else:
                    k(f"buffer_store_dwordx2 v[{ob}:{ob+1}], v{VX+st}, s[32:35], s39 offen")
    else:
        Lk1 = k.label("kh1")
        Ld = k.label("done")
        k(f"""s_waitcnt vmcnt(0)
s_barrier
s_mul_i32 s36, s18, 18432
v_lshl_add_u32 v22, v1, 4, s36
s_xor_b32 s37, s18, 2
s_mul_i32 s37, s37, 18432
v_lshl_add_u32 v23, v1, 4, s37
s_lshl_b32 s36, s19, 1
s_add_u32 s36, s36, s23
s_mul_i32 s36, s36, 36
s_mul_i32 s37, s21, 9
s_add_u32 s36, s36, s37
s_lshl_b32 s36, s36, 10
s_mul_i32 s37, s39, {PART1}
s_add_u32 s36, s36, s37
v_lshl_add_u32 v24, v1, 4, s36
v_add_u32 v25, {36*1024}, v24
s_movk_i32 s37, 4096
s_movk_i32 s38, 8192
s_cmp_eq_u32 s19, 1
s_cbranch_scc1 {Lk1}""")
        for kh in range(2):
            if kh == 1:
                k.put(Lk1)
            keep = [2 * kh, 2 * kh + 1]
            send = [2 - 2 * kh, 3 - 2 * kh]
            for i, st in enumerate(send):
                for t in range(9):
                    k(f"ds_write_b128 v22, {acc(t*4+st)} offset:{(i*9+t)*1024}")
            k("""s_waitcnt lgkmcnt(0)
s_barrier""")
            for i, st in enumerate(send):
                for t in range(9):
                    k(f"ds_read_b128 {acc(t*4+st)}, v23 offset:{(i*9+t)*1024}")
            n = 18
            for i in range(2):
                for t in range(9):
                    n -= 1
                    k(f"s_waitcnt lgkmcnt({min(n,15)})")
                    a = 32 + 4 * (t * 4 + keep[i])
                    b = 32 + 4 * (t * 4 + send[i])
                    k(f"""v_pk_add_f32 v[{a}:{a+1}], v[{a}:{a+1}], v[{b}:{b+1}]
v_pk_add_f32 v[{a+2}:{a+3}], v[{a+2}:{a+3}], v[{b+2}:{b+3}]""")
                    so = "0" if t < 4 else ("s37" if t < 8 else "s38")
                    k(f"buffer_store_dwordx4 v[{a}:{a+3}], v{24+i}, s[32:35], {so} offen offset:{1024*(t%4)}")
            if kh == 0:
                k("s_endpgm")
    k.put(Lexit)
    k("s_endpgm")
    return k


def gen_k6():
    k = K("final_kernel")
    Lexit = k.label("exit")
    k(f"""s_cmp_ge_u32 s2, 1152
s_cbranch_scc1 {Lexit}
s_load_dwordx2 s[4:5], s[0:1], {ARG['out']}
s_load_dwordx2 s[10:11], s[0:1], {ARG['ws']}
s_mov_b32 s40, 0xffff0000
v_and_b32 v1, 63, v0
v_lshrrev_b32 v2, 6, v0
s_lshl_b32 s16, s2, 2
v_readfirstlane_b32 s17, v2
s_nop 3
s_add_u32 s16, s16, s17
s_mov_b32 s18, 0x71c71c8
s_mul_hi_u32 s17, s16, s18
s_mul_i32 s18, s17, 36
s_sub_u32 s18, s16, s18
s_waitcnt lgkmcnt(0)""")
    k.srd(20, 4, 5, SD2)
    k.srd_off(24, 10, 11, WS_PART, 4 * PART1)
    k.srd_off(28, 10, 11, WS_X1, SD2)
    k.srd_off(32, 10, 11, WS_GBV, D * 4)
    k(f"""s_lshl_b32 s19, s16, 10
v_lshl_add_u32 v3, v1, 4, s19
s_mov_b32 s36, {PART1}
s_mov_b32 s37, {2*PART1}
s_mov_b32 s38, {3*PART1}
buffer_load_dwordx4 v[8:11], v3, s[24:27], 0 offen
buffer_load_dwordx4 v[12:15], v3, s[24:27], s36 offen
buffer_load_dwordx4 v[16:19], v3, s[24:27], s37 offen
buffer_load_dwordx4 v[20:23], v3, s[24:27], s38 offen
v_and_b32 v4, 15, v1
v_lshrrev_b32 v5, 4, v1
s_lshl_b32 s19, s17, 4
v_add_u32 v4, s19, v4
s_movk_i32 s19, 1152
v_mul_lo_u32 v4, v4, s19
s_lshl_b32 s19, s18, 5
v_lshl_add_u32 v6, v5, 3, s19
v_add_u32 v4, v4, v6
v_lshlrev_b32 v6, 1, v6
buffer_load_dwordx2 v[24:25], v4, s[28:31], 0 offen
buffer_load_dwordx4 v[28:31], v6, s[32:35], 0 offen
s_waitcnt vmcnt(4)
v_pk_add_f32 v[8:9], v[8:9], v[12:13]
v_pk_add_f32 v[10:11], v[10:11], v[14:15]
s_waitcnt vmcnt(2)
v_pk_add_f32 v[16:17], v[16:17], v[20:21]
v_pk_add_f32 v[18:19], v[18:19], v[22:23]
v_pk_add_f32 v[8:9], v[8:9], v[16:17]
v_pk_add_f32 v[10:11], v[10:11], v[18:19]""")
    rnd_pair(k, 8, 9, 12, 40)
    rnd_pair(k, 10, 11, 13, 40)
    k("""s_waitcnt vmcnt(0)
v_pk_mul_f32 v[8:9], v[8:9], v[28:29]
v_pk_mul_f32 v[10:11], v[10:11], v[30:31]""")
    rnd_pair(k, 8, 9, 12, 40)
    rnd_pair(k, 10, 11, 13, 40)
    k("""v_lshlrev_b32 v16, 16, v24
v_and_b32 v17, s40, v24
v_lshlrev_b32 v18, 16, v25
v_and_b32 v19, s40, v25
v_pk_add_f32 v[8:9], v[8:9], v[16:17]
v_pk_add_f32 v[10:11], v[10:11], v[18:19]
v_cvt_pk_bf16_f32 v12, v8, v9
v_cvt_pk_bf16_f32 v13, v10, v11
buffer_store_dwordx2 v[12:13], v4, s[20:23], 0 offen""")
    k.put(Lexit)
    k("s_endpgm")
    k.vgpr = 32
    k.sgpr = 48
    return k


HEADER = open("adaLN_cond__ssm_conv_h3__glu_gated_reglu__prompt.s.ref").read().split("; Override launch geometry")[0]


def build(path):
    ks = [(gen_k1(), 342, 256, 16384), (gen_k2(), 576, 64, K2_LDS), (gen_k3(), 256, 512, 18432),
          (gen_gemm(1), 256, 256, G_LDS), (gen_gemm(2), 256, 256, G_LDS), (gen_k6(), 1152, 256, 0)]
    out = HEADER
    for kk, g, b, lds in ks:
        out += f"; @launch kernel={kk.name} grid=({g},1,1) block=({b},1,1) lds={lds}\n"
    out += '.amdgcn_target "amdgcn-amd-amdhsa--gfx950"\n.text\n'
    for kk, *_ in ks:
        out += kk.text()
    out += '.section .rodata,"a"\n'
    for kk, *_ in ks:
        out += kk.desc()
    open(path, "w").write(out)


if __name__ == "__main__":
    build(sys.argv[1] if len(sys.argv) > 1 else "adaLN_cond__ssm_conv_h3__glu_gated_reglu__prompt.s")
```

```python
class K:
    def __init__(self, name):
        self.name = name
        self.lines = []
        self.nlab = 0
        self.vgpr = 0
        self.agpr = 0
        self.sgpr = 0
        self.wgy = False
    def __call__(self, s):
        for ln in s.strip("\n").split("\n"):
            ln = ln.strip()
            if ln:
                self.lines.append("  " + ln)
    def label(self, base="L"):
        self.nlab += 1
        return f"{self.name}_{base}{self.nlab}"
    def put(self, lab):
        self.lines.append(lab + ":")
    def srd(self, d, lo, hi, nbytes):
        self(f"""s_mov_b32 s{d}, s{lo}
s_mov_b32 s{d+1}, s{hi}
s_mov_b32 s{d+2}, {nbytes}
s_mov_b32 s{d+3}, 0x00020000""")
    def srd_off(self, d, lo, hi, off, nbytes):
        self(f"""s_add_u32 s{d}, s{lo}, {off}
s_addc_u32 s{d+1}, s{hi}, 0
s_mov_b32 s{d+2}, {nbytes}
s_mov_b32 s{d+3}, 0x00020000""")
    stamps = False
    kid = 0
    def stamp(self, i, real=False):
        if not self.stamps:
            return
        self(f"s_memtime s[{70+2*i}:{71+2*i}]" if not real else f"s_memrealtime s[{70+2*i}:{71+2*i}]")
        self.nst = max(getattr(self, "nst", 0), i + 1)
    def stamp_flush(self, ws_lo=10, ws_hi=11, vt=0):
        if not self.stamps:
            return
        n = self.nst
        self(f"""s_waitcnt lgkmcnt(0)
s_add_u32 s64, s{ws_lo}, {0x8000000 + self.kid * 0x400000}
s_addc_u32 s65, s{ws_hi}, 0
s_mov_b32 s66, 0x400000
s_mov_b32 s67, 0x00020000
s_mov_b64 exec, 1
s_lshl_b32 s68, s2, 11
s_lshl_b32 s69, s99, 7
s_add_u32 s68, s68, s69
v_mov_b32 v{vt}, s68""")
        for i in range(n):
            self(f"""v_mov_b32 v{vt+2}, s{70+2*i}
v_mov_b32 v{vt+3}, s{71+2*i}
buffer_store_dwordx2 v[{vt+2}:{vt+3}], v{vt}, s[64:67], 0 offen offset:{8*i}
s_nop 1""")
    def stamp_init(self):
        if not self.stamps:
            return
        self("""v_lshrrev_b32 v1, 6, v0
s_nop 0
v_readfirstlane_b32 s99, v1""")
        self.stamp(0, real=True)
        self.stamp(1)
    def text(self):
        out = [f".globl {self.name}", ".p2align 8", f".type {self.name},@function", f"{self.name}:"]
        out += self.lines
        return "\n".join(out) + "\n"
    def desc(self):
        acc_off = (self.vgpr + 3) // 4 * 4
        nfv = acc_off + self.agpr if self.agpr else self.vgpr
        s = f""".p2align 6
.amdhsa_kernel {self.name}
  .amdhsa_next_free_vgpr {nfv}
  .amdhsa_next_free_sgpr {100 if self.stamps else self.sgpr}
  .amdhsa_accum_offset {acc_off}
  .amdhsa_group_segment_fixed_size 0
  .amdhsa_kernarg_size 120
  .amdhsa_user_sgpr_count 2
  .amdhsa_user_sgpr_kernarg_segment_ptr 1
  .amdhsa_system_sgpr_workgroup_id_x 1
  .amdhsa_float_denorm_mode_32 3
  .amdhsa_float_denorm_mode_16_64 3
.end_amdhsa_kernel
"""
        return s

def vr(a, n=1):
    return f"v{a}" if n == 1 else f"v[{a}:{a+n-1}]"
def ar(a, n=1):
    return f"a{a}" if n == 1 else f"a[{a}:{a+n-1}]"
def sr(a, n=1):
    return f"s{a}" if n == 1 else f"s[{a}:{a+n-1}]"
```

```python
import sys
from asmlib import *

import os
K.stamps = os.environ.get("STAMP", "0") == "1"
S, D, F = 2048, 576, 4608
RS = 4352
WS_UR0 = 0x0
WS_UR1 = 0x280000
WS_Y2T = 0x500000
WS_X1 = 0x780000
WS_H2 = 0xA00000
WS_MODP = 0xC80000
WS_GBV = 0xC84000
WS_HM = 0xD00000
WS_PART = 0x2000000
SD2 = S * D * 2
HM_BYTES = S * F * 2
PART1 = S * D * 4

ARG = dict(q=0, k=8, v=16, shift=24, ssmk=32, ssmD=40, bx=48, wg=56, wu=64, wd=72, c=80, wmod=88, out=96, dbg=104, ws=112)


def rnd_pair(k, lo, hi, tmp, smask):
    k(f"""v_cvt_pk_bf16_f32 v{tmp}, v{lo}, v{hi}
v_lshlrev_b32 v{lo}, 16, v{tmp}
v_and_b32 v{hi}, s{smask}, v{tmp}""")


def gen_k1():
    k = K("prep_kernel")
    k.kid = 0
    Lexit = k.label("exit")
    Lmod = k.label("mod")
    k(f"""s_cmp_ge_u32 s2, 342
s_cbranch_scc1 {Lexit}""")
    k.stamp_init()
    k(f"""
s_load_dwordx4 s[4:7], s[0:1], {ARG['k']}
s_load_dwordx2 s[8:9], s[0:1], {ARG['shift']}
s_load_dwordx4 s[12:15], s[0:1], {ARG['c']}
s_load_dwordx2 s[10:11], s[0:1], {ARG['ws']}
s_mov_b32 s40, 0xffff0000
v_and_b32 v1, 7, v0
v_lshrrev_b32 v2, 3, v0
s_cmp_ge_u32 s2, 288
s_cbranch_scc1 {Lmod}
s_lshr_b32 s16, s2, 5
s_and_b32 s17, s2, 31
s_waitcnt lgkmcnt(0)""")
    k.srd(20, 4, 5, SD2)
    k.srd(24, 6, 7, SD2)
    k.srd(28, 8, 9, D * 8)
    k.srd(32, 10, 11, WS_Y2T)
    k(f"""s_lshl_b32 s18, s17, 6
v_lshl_add_u32 v3, v2, 1, s18
s_movk_i32 s19, 1152
v_mul_lo_u32 v3, v3, s19
s_lshl_b32 s18, s16, 7
v_lshl_add_u32 v4, v1, 4, s18
v_add_u32 v3, v3, v4""")
    A0 = 4
    for r in range(6):
        off = (r - 4) * 1152
        k(f"v_add_u32 v{A0+r}, {off & 0xffffffff:#x}, v3")
    KR = 12
    VR = 36
    WR = 48
    for r in range(6):
        k(f"buffer_load_dwordx4 v[{KR+4*r}:{KR+4*r+3}], v{A0+r}, s[20:23], 0 offen")
    for r in range(3):
        k(f"buffer_load_dwordx4 v[{VR+4*r}:{VR+4*r+3}], v{A0+3+r}, s[24:27], 0 offen")
    k(f"""s_lshl_b32 s18, s16, 9
v_lshl_add_u32 v10, v1, 6, s18""")
    for i in range(4):
        k(f"buffer_load_dwordx4 v[{WR+4*i}:{WR+4*i+3}], v10, s[28:31], 0 offen offset:{16*i}")
    k(f"""v_sub_u32 v10, 31, v2
v_lshlrev_b32 v11, 2, v1
v_xor_b32 v10, v10, v11
v_lshlrev_b32 v10, 2, v10
v_lshl_add_u32 v10, v1, 10, v10""")
    WF = 64
    KF = 96
    VF = 144
    U = 168
    P = 192
    k("s_waitcnt vmcnt(0)")
    k.stamp(2)
    for j in range(8):
        k(f"""v_lshlrev_b32 v{WF+0*8+j}, 16, v{WR+2*j}
v_and_b32 v{WF+1*8+j}, s40, v{WR+2*j}
v_lshlrev_b32 v{WF+2*8+j}, 16, v{WR+2*j+1}
v_and_b32 v{WF+3*8+j}, s40, v{WR+2*j+1}""")
    for r in range(6):
        for q in range(4):
            k(f"""v_lshlrev_b32 v{KF+8*r+2*q}, 16, v{KR+4*r+q}
v_and_b32 v{KF+8*r+2*q+1}, s40, v{KR+4*r+q}""")
    for r in range(3):
        for q in range(4):
            k(f"""v_lshlrev_b32 v{VF+8*r+2*q}, 16, v{VR+4*r+q}
v_and_b32 v{VF+8*r+2*q+1}, s40, v{VR+4*r+q}""")
    for o in range(3):
        for q in range(4):
            for t in range(4):
                k(f"v_pk_mul_f32 v[{P+2*t}:{P+2*t+1}], v[{KF+8*(o+t)+2*q}:{KF+8*(o+t)+2*q+1}], v[{WF+8*(3-t)+2*q}:{WF+8*(3-t)+2*q+1}]")
            for t in range(4):
                rnd_pair(k, P + 2 * t, P + 2 * t + 1, 200 + t, 40)
            for t in range(1, 4):
                k(f"v_pk_add_f32 v[{P}:{P+1}], v[{P}:{P+1}], v[{P+2*t}:{P+2*t+1}]")
                rnd_pair(k, P, P + 1, 200, 40)
            k(f"v_pk_mul_f32 v[{U+8*o+2*q}:{U+8*o+2*q+1}], v[{P}:{P+1}], v[{VF+8*o+2*q}:{VF+8*o+2*q+1}]")
    for j in range(8):
        k(f"""v_cvt_pk_bf16_f32 v{P+(j&1)*2}, v{U+16+j}, v{U+8+j}
v_cvt_pk_bf16_f32 v{P+(j&1)*2+1}, v{U+8+j}, v{U+j}
ds_write_b32 v10, v{P+(j&1)*2} offset:{j*128}
ds_write_b32 v10, v{P+(j&1)*2+1} offset:{8192+j*128}""")
    k(f"""v_lshrrev_b32 v4, 3, v0
v_and_b32 v5, 7, v0
v_lshrrev_b32 v6, 3, v4
v_xor_b32 v7, v5, v6
v_lshlrev_b32 v7, 4, v7
v_lshl_add_u32 v7, v4, 7, v7
v_xor_b32 v8, 64, v7
v_add_u32 v8, 4096, v8
s_mul_i32 s18, s16, {64*RS}
s_lshl_b32 s19, s17, 7
s_sub_u32 s18, s18, s19
s_add_u32 s18, s18, 3968
v_mul_u32_u24 v9, {RS}, v4
v_lshl_add_u32 v9, v5, 4, v9
v_add_u32 v9, s18, v9
v_add_u32 v11, {32*RS}, v9
s_waitcnt lgkmcnt(0)
s_barrier
ds_read_b128 v[12:15], v7
ds_read_b128 v[16:19], v8
ds_read_b128 v[20:23], v7 offset:8192
ds_read_b128 v[24:27], v8 offset:8192
s_mov_b32 s18, {WS_UR1}
s_waitcnt lgkmcnt(3)
buffer_store_dwordx4 v[12:15], v9, s[32:35], 0 offen
s_waitcnt lgkmcnt(2)
buffer_store_dwordx4 v[16:19], v11, s[32:35], 0 offen
s_waitcnt lgkmcnt(1)
buffer_store_dwordx4 v[20:23], v9, s[32:35], s18 offen
s_waitcnt lgkmcnt(0)
buffer_store_dwordx4 v[24:27], v11, s[32:35], s18 offen""")
    k.stamp(3)
    if k.stamps:
        k("s_waitcnt vmcnt(0)")
    k.stamp(4)
    k.stamp(5, real=True)
    k.stamp_flush()
    k("s_endpgm")
    k.put(Lmod)
    k(f"""s_sub_u32 s16, s2, 288
s_waitcnt lgkmcnt(0)""")
    k.srd(20, 12, 13, D * 2)
    k.srd(24, 14, 15, D * 6 * D * 2)
    k.srd_off(28, 10, 11, WS_MODP, 0x8000)
    WL = 32
    CL = 8
    k(f"""s_movk_i32 s19, 6912
v_mul_lo_u32 v3, v2, s19
s_lshl_b32 s18, s16, 7
v_lshl_add_u32 v4, v1, 4, s18
v_add_u32 v3, v3, v4
v_lshlrev_b32 v4, 1, v2""")
    for i in range(18):
        k(f"v_mov_b32 v{CL+i}, 0")
    for i in range(18):
        k(f"buffer_load_short_d16_hi v{CL+i}, v4, s[20:23], 0 offen offset:{64*i}")
    k("s_mov_b32 s18, 0")
    for i in range(18):
        k(f"buffer_load_dwordx4 v[{WL+4*i}:{WL+4*i+3}], v3, s[24:27], s18 offen")
        if i < 17:
            k(f"s_add_u32 s18, s18, {32*6912}")
    k("s_mov_b32 s19, 0xbfb8aa3b")
    k("s_waitcnt vmcnt(18)")
    for i in range(18):
        k(f"v_mul_f32 v{104+i}, s19, v{CL+i}")
    for i in range(18):
        k(f"v_exp_f32 v{104+i}, v{104+i}")
    for i in range(18):
        k(f"v_add_f32 v{104+i}, 1.0, v{104+i}")
    for i in range(18):
        k(f"v_rcp_f32 v{104+i}, v{104+i}")
    k("s_nop 0")
    for i in range(18):
        k(f"v_mul_f32 v{CL+i}, v{CL+i}, v{104+i}")
    for i in range(0, 18, 2):
        rnd_pair(k, CL + i, CL + i + 1, 104 + i, 40)
    ACC = 124
    for j in range(8):
        k(f"v_mov_b32 v{ACC+j}, 0")
    for i in range(18):
        k(f"s_waitcnt vmcnt({17-i})")
        for q in range(4):
            k(f"""v_lshlrev_b32 v{104+2*q}, 16, v{WL+4*i+q}
v_and_b32 v{104+2*q+1}, s40, v{WL+4*i+q}""")
        for j in range(8):
            k(f"v_fmac_f32 v{ACC+j}, v{CL+i}, v{104+j}")
    k(f"""v_lshlrev_b32 v4, 8, v2
v_lshl_add_u32 v4, v1, 5, v4
ds_write_b128 v4, v[{ACC}:{ACC+3}]
ds_write_b128 v4, v[{ACC+4}:{ACC+7}] offset:16
v_lshlrev_b32 v5, 2, v0
s_waitcnt lgkmcnt(0)
s_barrier
v_cmp_gt_u32 vcc, 64, v0
s_and_saveexec_b64 s[36:37], vcc
s_cbranch_execz {Lexit}""")
    for i in range(32):
        k(f"ds_read_b32 v{32+i}, v5 offset:{256*i}")
    k("s_waitcnt lgkmcnt(0)")
    for st in (16, 8, 4, 2, 1):
        for i in range(st):
            k(f"v_add_f32 v{32+i}, v{32+i}, v{32+i+st}")
    k(f"""s_mul_i32 s17, s16, 7282
s_lshr_b32 s17, s17, 16
s_mul_i32 s18, s17, 9
s_sub_u32 s18, s16, s18
v_cvt_pk_bf16_f32 v33, v32, v32
v_and_b32 v32, s40, v33
v_add_f32 v34, 1.0, v32
v_cvt_pk_bf16_f32 v34, v34, v34
s_cmp_eq_u32 s17, 1
s_cselect_b32 s19, 1, 0
s_cmp_eq_u32 s17, 4
s_cselect_b32 s19, 1, s19
s_cmp_eq_u32 s19, 1
s_cselect_b64 vcc, -1, 0
s_lshl_b32 s18, s18, 6
v_add_u32 v6, s18, v0
v_cndmask_b32 v33, v33, v34, vcc
v_lshlrev_b32 v7, 4, v6
s_lshl_b32 s19, s17, 1
buffer_store_short v33, v7, s[28:31], s19 offen
s_cmp_lg_u32 s17, 5
s_cbranch_scc1 {Lexit}
v_lshlrev_b32 v7, 2, v6
s_movk_i32 s19, 0x4000
buffer_store_dword v32, v7, s[28:31], s19 offen""")
    k.put(Lexit)
    k("s_endpgm")
    k.vgpr = 208
    k.sgpr = 48
    return k


SU = 4160
SK = 4640
KB = 4 * SU
K2_LDS = KB + 2 * SK
PFW = os.environ.get('PFW', '1') == '1'


def gen_k2():
    k = K("conv_kernel")
    k.kid = 1
    Lexit = k.label("exit")
    k(f"""s_cmp_ge_u32 s2, 576
s_cbranch_scc1 {Lexit}""")
    k.stamp_init()
    k(f"""
s_and_b32 s3, s2, 7
s_mul_i32 s3, s3, 72
s_lshr_b32 s16, s2, 3
s_add_u32 s3, s3, s16
s_load_dwordx4 s[4:7], s[0:1], {ARG['ssmk']}
s_load_dwordx2 s[10:11], s[0:1], {ARG['ws']}
s_load_dwordx4 s[48:51], s[0:1], {ARG['wg']}
s_mov_b32 s40, 0xffff0000
v_mov_b32 v4, 0
v_mov_b32 v5, 0
v_mov_b32 v6, 0
v_mov_b32 v7, 0
v_and_b32 v1, 15, v0
v_lshrrev_b32 v2, 4, v0
v_lshrrev_b32 v3, 2, v1
v_and_b32 v8, 3, v0
s_movk_i32 s16, {SU}
v_mul_u32_u24 v9, s16, v3
v_lshl_add_u32 v9, v8, 4, v9
ds_write_b128 v9, v[4:7] offset:4096
v_lshrrev_b32 v9, 5, v0
s_movk_i32 s17, {SK}
v_mul_u32_u24 v9, s17, v9
v_and_b32 v10, 31, v0
v_lshl_add_u32 v9, v10, 4, v9
ds_write_b128 v9, v[4:7] offset:{KB}
s_lshl_b32 s18, s3, 12
s_lshl_b32 s19, s3, 1
s_and_b32 s19, s19, 0xfffffffc
v_lshlrev_b32 v11, 4, v0
s_waitcnt lgkmcnt(0)
s_load_dword s41, s[6:7], s19""")
    k.srd_off(20, 4, 5, "s18", 4096)
    k(f"""s_mul_i32 s18, s3, {RS}
s_add_u32 s12, s10, s18
s_addc_u32 s13, s11, 0""")
    k.srd_off(24, 12, 13, WS_UR0, 4096)
    k.srd_off(28, 12, 13, WS_UR1, 4096)
    k.srd_off(32, 10, 11, WS_Y2T, SD2)
    k.srd(52, 48, 49, D * F * 2)
    k.srd(56, 50, 51, D * F * 2)
    k("s_mul_i32 s47, s2, 9216")
    copies = [(20, KB + 456), (20, KB + SK + 448), (28, 12), (24, SU + 12), (28, 2 * SU + 16), (24, 3 * SU + 16)]
    for srd, dst in copies:
        k(f"s_movk_i32 m0, {dst}")
        k("s_nop 0")
        for i in range(4):
            k(f"buffer_load_dwordx4 v11, s[{srd}:{srd+3}], 0 offen offset:{1024*i} lds")
    k(f"""v_mul_u32_u24 v12, s16, v8
v_sub_u32 v13, v2, v3
v_lshl_add_u32 v12, v13, 4, v12
v_add_u32 v12, 48, v12
v_and_b32 v13, 1, v0
v_mul_u32_u24 v13, s17, v13
v_lshrrev_b32 v14, 1, v1
v_lshl_add_u32 v13, v14, 6, v13
v_lshl_add_u32 v13, v2, 4, v13
v_add_u32 v13, {KB}, v13
v_and_b32 v15, 1, v0
v_lshlrev_b32 v15, 3, v15
v_lshl_add_u32 v15, v14, 6, v15
v_lshl_add_u32 v15, v2, 4, v15
v_sub_u32 v16, {3*SU + 4104 - 3584}, v15
v_lshl_add_u32 v15, v14, 2, v2
v_mul_u32_u24 v15, 9216, v15
v_and_b32 v17, 1, v0
v_lshl_add_u32 v15, v17, 3, v15
s_lshl_b32 s46, s3, 4""")
    ACC = 20
    FR = 52
    for i in range(32):
        k(f"v_mov_b32 v{ACC+i}, 0")

    def reads(r):
        st = r & 1
        out = []
        for n in range(8):
            out.append(f"ds_read_b128 v[{FR+64*st+4*n}:{FR+64*st+4*n+3}], v12 offset:{3648 - 48 + 64*r - 512*n}")
            out.append(f"ds_read_b128 v[{FR+64*st+32+4*n}:{FR+64*st+32+4*n+3}], v13 offset:{64*r + 512*n}")
        return out

    pfl = []
    for i in range(9):
        for srd in (52, 56):
            pfl.append(f"buffer_load_dwordx4 v[{FR+128}:{FR+131}], v11, s[{srd}:{srd+3}], s47 offen offset:{1024*(i%4)}" + ("\ns_add_u32 s47, s47, 4096" if (i % 4 == 3 and srd == 56) else ""))
    k("s_waitcnt vmcnt(0)")
    k.stamp(2)
    for ln in reads(0):
        k(ln)
    for r in range(8):
        st = r & 1
        nxt = reads(r + 1) if r < 7 else []
        k("s_waitcnt lgkmcnt(0)")
        mf = []
        for w in range(8):
            for q in range(8 - w):
                t = q + w
                mf.append(f"v_mfma_f32_16x16x32_bf16 v[{ACC+4*t}:{ACC+4*t+3}], v[{FR+64*st+4*w}:{FR+64*st+4*w+3}], v[{FR+64*st+32+4*q}:{FR+64*st+32+4*q+3}], v[{ACC+4*t}:{ACC+4*t+3}]")
        for i, m in enumerate(mf):
            k(m)
            if i < len(nxt):
                k(nxt[i])
            if PFW and i >= 16 and (i - 16) % 6 == 0 and pfl:
                k(pfl.pop(0))
    k.stamp(3)
    UV = FR
    for t in range(8):
        k(f"ds_read_b64 v[{UV+2*t}:{UV+2*t+1}], v16 offset:{512*(7-t)}")
    k(f"""s_and_b32 s42, s3, 1
s_lshl_b32 s43, s41, 16
s_and_b32 s41, s41, s40
s_cmp_eq_u32 s42, 0
s_cselect_b32 s41, s43, s41
s_waitcnt lgkmcnt(0)""")
    T = FR + 32
    for t in range(8):
        a = ACC + 4 * t
        u0, u1 = UV + 2 * t, UV + 2 * t + 1
        b = T + 8 * (t & 1)
        k(f"""v_and_b32 v{b}, s40, v{u1}
v_lshlrev_b32 v{b+1}, 16, v{u1}
v_and_b32 v{b+2}, s40, v{u0}
v_lshlrev_b32 v{b+3}, 16, v{u0}
v_mul_f32 v{b}, s41, v{b}
v_mul_f32 v{b+1}, s41, v{b+1}
v_mul_f32 v{b+2}, s41, v{b+2}
v_mul_f32 v{b+3}, s41, v{b+3}""")
        rnd_pair(k, b, b + 1, b + 4, 40)
        rnd_pair(k, b + 2, b + 3, b + 5, 40)
        rnd_pair(k, a, a + 1, b + 4, 40)
        rnd_pair(k, a + 2, a + 3, b + 5, 40)
        k(f"""v_add_f32 v{b}, v{b}, v{a}
v_add_f32 v{b+1}, v{b+1}, v{a+1}
v_add_f32 v{b+2}, v{b+2}, v{a+2}
v_add_f32 v{b+3}, v{b+3}, v{a+3}
v_cvt_pk_bf16_f32 v{b+6}, v{b}, v{b+1}
v_cvt_pk_bf16_f32 v{b+7}, v{b+2}, v{b+3}
buffer_store_dwordx2 v[{b+6}:{b+7}], v15, s[32:35], s46 offen
s_add_u32 s46, s46, 294912""")
    if k.stamps:
        k("s_waitcnt vmcnt(0)")
    k.stamp(4)
    k.stamp(5, real=True)
    k.stamp_flush()
    k.put(Lexit)
    k("s_endpgm")
    k.vgpr = FR + 132
    k.sgpr = 64
    return k


def wave_sum(k, v, t):
    k(f"""s_nop 1
v_add_f32 v{v}, v{v}, v{v} quad_perm:[1,0,3,2] row_mask:0xf bank_mask:0xf
s_nop 1
v_add_f32 v{v}, v{v}, v{v} quad_perm:[2,3,0,1] row_mask:0xf bank_mask:0xf
s_nop 1
v_add_f32 v{v}, v{v}, v{v} row_half_mirror row_mask:0xf bank_mask:0xf
s_nop 1
v_add_f32 v{v}, v{v}, v{v} row_mirror row_mask:0xf bank_mask:0xf
v_mov_b32 v{t}, v{v}
s_nop 1
v_permlane16_swap_b32 v{v}, v{t}
v_add_f32 v{v}, v{v}, v{t}
v_mov_b32 v{t}, v{v}
s_nop 1
v_permlane32_swap_b32 v{v}, v{t}
v_add_f32 v{v}, v{v}, v{t}""")


def rnd_list(k, regs, tmp, smask):
    i = 0
    while i < len(regs):
        if i + 1 < len(regs):
            rnd_pair(k, regs[i], regs[i + 1], tmp + (i // 2) % 4, smask)
            i += 2
        else:
            k(f"""v_cvt_pk_bf16_f32 v{tmp}, v{regs[i]}, v{regs[i]}
v_and_b32 v{regs[i]}, s{smask}, v{tmp}""")
            i += 1


def layernorm(k, X, O, T, R):
    s, t2, m = R, R + 1, R + 2
    k(f"v_add_f32 v{s}, v{X}, v{X+1}")
    for i in range(2, 9):
        k(f"v_add_f32 v{s}, v{s}, v{X+i}")
    wave_sum(k, s, t2)
    k(f"v_mul_f32 v{m}, s44, v{s}")
    for i in range(9):
        k(f"v_sub_f32 v{O+i}, v{X+i}, v{m}")
    k(f"v_mul_f32 v{s}, v{O}, v{O}")
    for i in range(1, 9):
        k(f"v_fmac_f32 v{s}, v{O+i}, v{O+i}")
    wave_sum(k, s, t2)
    k(f"v_mul_f32 v{s}, s44, v{s}")
    rnd_pair(k, m, s, T, 40)
    k(f"v_add_f32 v{s}, s45, v{s}")
    k(f"""v_cvt_pk_bf16_f32 v{T}, v{s}, v{s}
v_and_b32 v{s}, s40, v{T}
v_sqrt_f32 v{s}, v{s}
s_nop 0
v_cvt_pk_bf16_f32 v{T}, v{s}, v{s}
v_and_b32 v{s}, s40, v{T}
v_rcp_f32 v{t2}, v{s}""")
    for i in range(9):
        k(f"v_sub_f32 v{O+i}, v{X+i}, v{m}")
    rnd_list(k, [O + i for i in range(9)], T, 40)
    for i in range(9):
        k(f"""v_mul_f32 v{T}, v{O+i}, v{t2}
v_fma_f32 v{T+1}, -v{T}, v{s}, v{O+i}
v_fma_f32 v{O+i}, v{T+1}, v{t2}, v{T}""")
    rnd_list(k, [O + i for i in range(9)], T, 40)


def gen_k3():
    k = K("rows_kernel")
    k.kid = 2
    Lexit = k.label("exit")
    L1 = k.label("no9")
    L2 = k.label("no2nd")
    k(f"""s_cmp_ge_u32 s2, 256
s_cbranch_scc1 {Lexit}""")
    k.stamp_init()
    k(f"""
s_load_dwordx2 s[4:5], s[0:1], {ARG['q']}
s_load_dwordx2 s[10:11], s[0:1], {ARG['ws']}
s_mov_b32 s40, 0xffff0000
s_mov_b32 s44, 0x3ae38e39
s_mov_b32 s45, 0x3727c5ac
v_and_b32 v1, 63, v0
v_lshrrev_b32 v2, 6, v0
s_nop 0
v_readfirstlane_b32 s16, v2
s_waitcnt lgkmcnt(0)""")
    k.srd(20, 4, 5, SD2)
    k.srd_off(24, 10, 11, WS_Y2T, SD2)
    k.srd_off(28, 10, 11, WS_MODP, 9216)
    k.srd_off(32, 10, 11, WS_X1, SD2)
    k.srd_off(36, 10, 11, WS_H2, SD2)
    X = 8
    Y = 18
    MP = 28
    O = 64
    T = 74
    R = 78
    k(f"""s_mul_i32 s17, s2, 9216
s_lshl_b32 s19, s16, 10
s_add_u32 s17, s17, s19
v_lshlrev_b32 v3, 4, v1
s_mov_b32 m0, s19
s_nop 0
buffer_load_dwordx4 v3, s[24:27], s17 offen lds
s_cmp_lg_u32 s16, 0
s_cbranch_scc1 {L1}
s_add_u32 s17, s17, 8192
s_movk_i32 m0, 8192
s_nop 0
buffer_load_dwordx4 v3, s[24:27], s17 offen lds""")
    k.put(L1)
    for i in range(9):
        k(f"v_mov_b32 v{X+i}, 0")
        k(f"v_mov_b32 v{Y+i}, 0")
    k(f"""s_lshl_b32 s17, s2, 3
s_add_u32 s17, s17, s16
s_mul_i32 s17, s17, 1152
v_lshlrev_b32 v4, 1, v1
v_lshlrev_b32 v5, 4, v1
s_movk_i32 s18, 4096
s_movk_i32 s19, 8192""")
    for i in range(9):
        k(f"buffer_load_short_d16_hi v{X+i}, v4, s[20:23], s17 offen offset:{128*i}")
    for i in range(9):
        so = "0" if i < 4 else ("s18" if i < 8 else "s19")
        k(f"buffer_load_dwordx4 v[{MP+4*i}:{MP+4*i+3}], v5, s[28:31], {so} offen offset:{1024*(i%4)}")
    k(f"""v_lshl_add_u32 v6, v2, 1, v5
v_lshrrev_b32 v7, 5, v1
v_lshlrev_b32 v7, 9, v7
v_bfe_u32 v3, v1, 2, 2
v_lshl_add_u32 v7, v3, 7, v7
v_lshl_add_u32 v7, v2, 4, v7
v_bfe_u32 v3, v1, 4, 1
v_lshl_add_u32 v7, v3, 3, v7
v_and_b32 v3, 3, v1
v_lshl_add_u32 v7, v3, 1, v7
s_waitcnt vmcnt(9)""")
    k.stamp(2)
    layernorm(k, X, O, T, R)
    k("""s_waitcnt vmcnt(0)
s_barrier""")
    k.stamp(3)
    for i in range(9):
        k(f"ds_read_u16_d16_hi v{Y+i}, v6 offset:{1024*i}")
    for i in range(9):
        k(f"""v_and_b32 v{T}, s40, v{MP+4*i}
v_mul_f32 v{O+i}, v{O+i}, v{T}""")
    rnd_list(k, [O + i for i in range(9)], T, 40)
    for i in range(9):
        k(f"""v_lshlrev_b32 v{T}, 16, v{MP+4*i}
v_add_f32 v{O+i}, v{O+i}, v{T}""")
    rnd_list(k, [O + i for i in range(9)], T, 40)
    k("s_waitcnt lgkmcnt(0)")
    for i in range(9):
        k(f"v_mul_f32 v{O+i}, v{O+i}, v{Y+i}")
    rnd_list(k, [O + i for i in range(9)], T, 40)
    for i in range(9):
        k(f"""v_lshlrev_b32 v{T}, 16, v{MP+4*i+1}
v_mul_f32 v{O+i}, v{O+i}, v{T}""")
    rnd_list(k, [O + i for i in range(9)], T, 40)
    for i in range(9):
        k(f"v_add_f32 v{X+i}, v{X+i}, v{O+i}")
    rnd_list(k, [X + i for i in range(9)], T, 40)
    for i in range(9):
        k(f"buffer_store_short_d16_hi v{X+i}, v4, s[32:35], s17 offen offset:{128*i}")
    layernorm(k, X, O, T, R)
    for i in range(9):
        k(f"""v_lshlrev_b32 v{T}, 16, v{MP+4*i+2}
v_mul_f32 v{O+i}, v{O+i}, v{T}""")
    rnd_list(k, [O + i for i in range(9)], T, 40)
    for i in range(9):
        k(f"""v_and_b32 v{T}, s40, v{MP+4*i+1}
v_add_f32 v{O+i}, v{O+i}, v{T}
v_cvt_pk_bf16_f32 v{O+i}, v{O+i}, v{O+i}
ds_write_b16 v7, v{O+i} offset:{9216+1024*i}""")
    k(f"""v_lshlrev_b32 v6, 4, v0
v_lshrrev_b32 v7, 3, v0
v_lshlrev_b32 v7, 8, v7
v_and_b32 v3, 7, v0
v_lshl_add_u32 v7, v3, 4, v7
s_lshr_b32 s17, s2, 1
s_mul_i32 s17, s17, 18432
s_and_b32 s18, s2, 1
s_lshl_b32 s18, s18, 7
s_add_u32 s17, s17, s18
s_waitcnt lgkmcnt(0)
s_barrier
ds_read_b128 v[8:11], v6 offset:9216
s_cmp_lg_u32 s16, 0
s_cbranch_scc1 {L2}
ds_read_b128 v[12:15], v6 offset:{9216+8192}
s_add_u32 s18, s17, 16384
s_waitcnt lgkmcnt(0)
buffer_store_dwordx4 v[12:15], v7, s[36:39], s18 offen""")
    k.put(L2)
    k(f"""s_waitcnt lgkmcnt(0)
buffer_store_dwordx4 v[8:11], v7, s[36:39], s17 offen""")
    k.stamp(6)
    if k.stamps:
        k("s_waitcnt vmcnt(0)")
    k.stamp(4)
    k.stamp(5, real=True)
    k.stamp_flush()
    k.put(Lexit)
    k("s_endpgm")
    k.vgpr = 84
    k.sgpr = 48
    return k


STG = 36864
NBUF = 4
G_LDS = STG * NBUF
EXACT_GU = os.environ.get("EXACT_GU", "0") == "1"


def gen_gemm(which):
    g1 = which == 1
    k = K("gemm1_kernel" if g1 else "gemm2_kernel")
    Lexit = k.label("exit")
    NT = 18 if g1 else 9
    NACC = NT * 4
    DAH = 4
    RING = 6
    NV = min(NACC, 56)
    def acc(ti):
        return vr(32 + 4 * ti, 4) if ti < NV else ar(4 * (ti - NV), 4)
    AB = 4 * (NACC - NV)
    NXS = 2 if g1 else 4
    XR = AB
    WRG = AB + 32 * NXS
    def xfrag(xs, kk, st):
        return ar(XR + 32 * xs + 16 * kk + 4 * st, 4)
    def wfrag(slot, half=None):
        if half is None:
            return ar(WRG + 4 * slot, 4)
        return ar(WRG + 4 * slot + 2 * half, 2)
    DUM = WRG + 4 * RING
    k.agpr = DUM + 4
    k.vgpr = 32 + 4 * NV
    k.sgpr = 64
    VX = 4
    VD = 8
    VB = 12
    k.kid = 3 if g1 else 4
    k(f"""s_cmp_ge_u32 s2, 256
s_cbranch_scc1 {Lexit}""")
    k.stamp_init()
    k(f"""s_load_dwordx4 s[4:7], s[0:1], {ARG['wg']}
s_load_dwordx2 s[8:9], s[0:1], {ARG['wd']}
s_load_dwordx2 s[10:11], s[0:1], {ARG['ws']}
v_and_b32 v1, 63, v0
v_lshrrev_b32 v2, 6, v0
s_and_b32 s16, s2, 7
s_lshr_b32 s17, s2, 3
v_readfirstlane_b32 s18, v2
s_nop 3
s_lshr_b32 s19, s18, 1
s_and_b32 s20, s18, 1""")
    PITCH = F * 2 if g1 else D * 2
    XST = 18432 if g1 else 147456
    if g1:
        k(f"""s_and_b32 s21, s17, 3
s_lshl_b32 s16, s16, 2
s_add_u32 s21, s21, s16
s_lshr_b32 s22, s17, 2
s_lshl_b32 s23, s22, 4
s_lshl_b32 s36, s18, 2
s_add_u32 s23, s23, s36
s_mul_i32 s36, s23, {XST}
s_mov_b32 s38, 0""")
    else:
        k(f"""s_and_b32 s21, s17, 3
s_and_b32 s39, s16, 3
s_lshr_b32 s16, s16, 2
s_lshl_b32 s16, s16, 3
s_lshr_b32 s22, s17, 2
s_add_u32 s22, s22, s16
s_lshl_b32 s23, s22, 3
s_lshl_b32 s36, s20, 2
s_add_u32 s23, s23, s36
s_mul_i32 s36, s23, {XST}
s_lshl_b32 s37, s39, 1
s_add_u32 s37, s37, s19
s_mul_i32 s38, s37, {18*1024}
s_add_u32 s36, s36, s38
s_mul_i32 s38, s37, {576*PITCH}""")
    k(f"""s_lshr_b32 s52, s21, 2
s_and_b32 s53, s21, 3
s_mul_i32 s37, s52, 1152
s_add_u32 s38, s38, s37
s_mul_i32 s37, s20, {32*PITCH}
s_add_u32 s38, s38, s37
s_lshl_b32 s37, s53, 8
s_add_u32 s40, s38, s37
s_lshl_b32 s37, s53, 5
s_add_u32 s41, s38, s37
s_add_u32 s41, s41, 1024
s_movk_i32 s37, {PITCH}""")
    k(f"v_lshl_add_u32 v{VX}, v1, 4, s36")
    for st in range(1, 4):
        k(f"v_add_u32 v{VX+st}, {XST}, v{VX+st-1}")
    k(f"""v_lshrrev_b32 v22, 4, v1
v_and_b32 v23, 15, v1
v_mul_lo_u32 v24, v22, s37
v_add_u32 v24, s40, v24
v_lshlrev_b32 v25, 1, v22
v_xor_b32 v25, v23, v25
v_lshl_add_u32 v{VD}, v25, 4, v24
v_xor_b32 v25, 8, v25
v_lshl_add_u32 v{VD+1}, v25, 4, v24
v_add_u32 v{VD+1}, {4*PITCH}, v{VD+1}
v_lshrrev_b32 v22, 1, v1
v_mul_lo_u32 v24, v22, s37
v_and_b32 v23, 1, v1
v_lshl_add_u32 v24, v23, 4, v24
v_add_u32 v{VD+2}, s41, v24""")
    k(f"""s_mul_i32 s42, s19, 18432
s_lshl_b32 s36, s20, 10
s_add_u32 s43, s42, s36
s_add_u32 s43, s43, 16384
s_lshl_b32 s36, s20, 13
s_add_u32 s42, s42, s36""")
    k(f"""v_lshrrev_b32 v22, 2, v1
v_and_b32 v23, 3, v1
v_lshlrev_b32 v23, 3, v23
v_lshl_add_u32 v24, v22, 8, v23
v_and_b32 v25, 7, v22""")
    if not g1:
        k(f"""s_mul_i32 s36, s19, 18432
v_add_u32 v24, s36, v24
v_add_u32 v23, s36, v23""")
    for t in range(8):
        k(f"""v_xor_b32 v26, {t}, v25
v_lshl_add_u32 v{VB+t}, v26, 5, v24""")
    k(f"""v_lshl_add_u32 v{VB+8}, v22, 5, v23
v_add_u32 v{VB+8}, 16384, v{VB+8}""")
    k("s_waitcnt lgkmcnt(0)")
    k.stamp(8)
    if g1:
        k(f"""s_cmp_eq_u32 s19, 0
s_cselect_b32 s12, s4, s6
s_cselect_b32 s13, s5, s7""")
        k.srd(24, 12, 13, D * F * 2)
        k.srd_off(28, 10, 11, WS_H2, SD2)
        k.srd_off(32, 10, 11, WS_HM, HM_BYTES)
        k.srd(56, 8, 9, D * F * 2)
        k(f"""s_lshl_b32 s36, s2, 12
v_lshl_add_u32 v21, v0, 4, s36
s_mov_b32 s60, 0""")
    else:
        k.srd(24, 8, 9, D * F * 2)
        k.srd_off(28, 10, 11, WS_HM, HM_BYTES)
        k.srd_off(32, 10, 11, WS_PART, 4 * PART1)

    def dma_list():
        out = []
        for n in range(8):
            out.append(f"""s_add_u32 s54, s45, s42
s_add_u32 m0, s54, {1024*n}
s_add_u32 s55, s44, {(n>>1)*8*PITCH}
buffer_load_dwordx4 v{VD+(n&1)}, s[24:27], s55 offen lds""")
        out.append(f"""s_add_u32 m0, s45, s43
s_nop 0
buffer_load_dwordx4 v{VD+2}, s[24:27], s44 offen lds
s_add_u32 s44, s44, {64*PITCH}
s_add_u32 s45, s45, {STG}
s_cmp_ge_u32 s45, {STG*NBUF}
s_cselect_b32 s45, 0, s45""")
        return out
    def xload_list(xs):
        out = []
        for kk in range(2):
            for st in range(4):
                out.append(f"buffer_load_dwordx4 {xfrag(xs, kk, st)}, v{VX+st}, s[28:31], s46 offen offset:{1024*kk}")
        out[-1] += "\ns_add_u32 s46, s46, 2048"
        return out
    k(f"""s_mov_b32 s44, 0
s_mov_b32 s45, 0
s_mov_b32 s46, 0""")
    zl = []
    for ti in range(NACC):
        for r in range(4):
            if ti < NV:
                zl.append(f"v_mov_b32 v{32+4*ti+r}, 0")
            else:
                zl.append(f"v_accvgpr_write_b32 a{4*(ti-NV)+r}, 0")
    if g1:
        pl = dma_list() + xload_list(0) + dma_list()
        W0 = 9
    else:
        pl = dma_list() + xload_list(0) + xload_list(1) + dma_list() + xload_list(2)
        W0 = 25
    per = (len(zl) + len(pl) - 1) // len(pl)
    k.stamp(9)
    for i, ln in enumerate(pl):
        k(ln)
        if i >= 8:
            for z in range(per + 6):
                if zl:
                    k(zl.pop(0))
    while zl:
        k(zl.pop(0))
    NF = 2 * NT

    def frag_info(f):
        kk = f // NT
        r = f % NT
        return kk, r % 9, r // 9

    def tr_reads(f, slot):
        kk, t, m = frag_info(f)
        if t < 8:
            off = m * 18432 + kk * 8192
            hs = 4096
        else:
            off = m * 18432 + kk * 1024
            hs = 512
        return [f"ds_read_b64_tr_b16 {wfrag(slot, 0)}, v{VB+t} offset:{off}",
                f"ds_read_b64_tr_b16 {wfrag(slot, 1)}, v{VB+t} offset:{off + hs}"]

    k.stamp(6)
    k(f"""s_waitcnt vmcnt({W0})
s_barrier""")
    k.stamp(2)
    if k.stamps:
        k("s_waitcnt lgkmcnt(0)")
    assert NF % RING == 0
    for f in range(DAH):
        for ln in tr_reads(f, f % RING):
            k(ln)

    def stage(xs, last):
        if last:
            vm = []
        elif g1:
            vm = xload_list(1 - xs) + dma_list()
            if PFW:
                vm.append(f"buffer_load_dwordx4 {ar(DUM, 4)}, v21, s[56:59], s60 offen\ns_add_u32 s60, s60, 0x100000")
        else:
            vm = dma_list() + xload_list((xs + NXS - 1) % NXS)
        nvm = len(vm)
        WB = nvm if g1 else nvm + 8
        PB = NF - DAH
        slots = {}
        for i in range(nvm):
            slots.setdefault(i * PB // nvm, []).append(vm[i])
        if not last:
            k(f"""s_add_u32 s48, s48, {STG}
s_cmp_ge_u32 s48, {STG*NBUF}
s_cselect_b32 s49, {(-STG*(NBUF-1)) & 0xffffffff:#x}, s50
s_cselect_b32 s48, 0, s48""")
        for f in range(NF):
            kk, t, m = frag_info(f)
            fa = f + DAH
            if f == PB and not last:
                k(f"s_waitcnt vmcnt({WB})")
                k("s_barrier")
            rd = []
            upd = None
            if fa < NF:
                rd = tr_reads(fa, fa % RING)
                if fa >= NF - 9 and not last:
                    upd = f"v_add_u32 v{VB + frag_info(fa)[1]}, s49, v{VB + frag_info(fa)[1]}"
            elif not last:
                rd = tr_reads(fa - NF, fa % RING)
            rem = min(DAH - 1, (NF - 1 - f) if last else DAH - 1)
            k(f"s_waitcnt lgkmcnt({2*rem})")
            ti_base = (m * 9 + t) * 4
            extra = list(slots.get(f, []))
            for st in range(4):
                k(f"v_mfma_f32_16x16x32_bf16 {acc(ti_base+st)}, {wfrag(f % RING)}, {xfrag(xs, kk, st)}, {acc(ti_base+st)}")
                if st == 0 and rd:
                    k(rd[0])
                if st == 1 and rd:
                    k(rd[1])
                    if upd:
                        k(upd)
                if st >= 2 and extra:
                    k(extra.pop(0))
            while extra:
                k(extra.pop(0))
        if not last and g1:
            k(f"s_waitcnt vmcnt({nvm - 8})")

    k(f"""s_mov_b32 s48, 0
s_mov_b32 s50, {STG}
s_mov_b32 s51, 0""")
    Lloop = k.label("loop")
    k.put(Lloop)
    for xs in range(NXS):
        stage(xs, False)
    k(f"""s_add_u32 s51, s51, 1
s_cmp_lt_u32 s51, {8 // NXS}
s_cbranch_scc1 {Lloop}""")
    stage(0, True)
    k.stamp(3)
    k("s_nop 7")
    k("s_nop 7")

    def accreg(ti, r, tmp):
        if ti < NV:
            return f"v{32+4*ti+r}"
        k(f"v_accvgpr_read_b32 v{tmp}, a{4*(ti-NV)+r}")
        return f"v{tmp}"

    if g1:
        k(f"""s_mul_i32 s36, s52, 18
s_lshl_b32 s37, s53, 2
s_add_u32 s38, s36, s37
s_lshl_b32 s38, s38, 10
s_lshr_b32 s37, s53, 1
s_add_u32 s39, s36, s37
s_add_u32 s39, s39, 16
s_lshl_b32 s39, s39, 10
s_and_b32 s37, s53, 1
s_lshl_b32 s37, s37, 3
s_add_u32 s39, s39, s37
s_mul_i32 s36, s23, 147456
s_mov_b32 s40, 0xffff0000
v_lshl_add_u32 v{VX}, v1, 4, s36""")
        for st in range(1, 4):
            k(f"v_add_u32 v{VX+st}, 147456, v{VX+st-1}")
        cnt = 0
        for st in range(4):
            for pr in range(5):
                tiles = [2 * pr, 2 * pr + 1] if pr < 4 else [8]
                ob = 8 + 4 * (cnt % 2)
                cnt += 1
                for hi, t in enumerate(tiles):
                    tg = t * 4 + st
                    tu = (9 + t) * 4 + st
                    gn = [accreg(tg, r, 16 + r) for r in range(4)]
                    un = [accreg(tu, r, 20 + r) for r in range(4)]
                    if EXACT_GU:
                        for h2 in range(2):
                            k(f"""v_cvt_pk_bf16_f32 v28, {gn[2*h2]}, {gn[2*h2+1]}
v_cvt_pk_bf16_f32 v29, {un[2*h2]}, {un[2*h2+1]}
v_pk_max_i16 v28, v28, 0
v_lshlrev_b32 v30, 16, v29
v_and_b32 v31, s40, v29
v_lshlrev_b32 v{24+2*h2}, 16, v28
v_and_b32 v{25+2*h2}, s40, v28
v_mul_f32 v{24+2*h2}, v{24+2*h2}, v30
v_mul_f32 v{25+2*h2}, v{25+2*h2}, v31""")
                    else:
                        for r in range(4):
                            k(f"v_max_f32 v{24+r}, 0, {gn[r]}")
                            k(f"v_mul_f32 v{24+r}, v{24+r}, {un[r]}")
                    k(f"""v_cvt_pk_bf16_f32 v{ob+2*hi}, v24, v25
v_cvt_pk_bf16_f32 v{ob+2*hi+1}, v26, v27""")
                if pr < 4:
                    k(f"buffer_store_dwordx4 v[{ob}:{ob+3}], v{VX+st}, s[32:35], s38 offen offset:{1024*pr}")
                else:
                    k(f"buffer_store_dwordx2 v[{ob}:{ob+1}], v{VX+st}, s[32:35], s39 offen")
        k.stamp(7)
        if k.stamps:
            k("s_waitcnt vmcnt(0)")
        k.stamp(4)
        k.stamp(5, real=True)
        k.stamp_flush()
    else:
        Lk1 = k.label("kh1")
        k(f"""s_waitcnt vmcnt(0)
s_barrier
s_mul_i32 s36, s18, 18432
v_lshl_add_u32 v22, v1, 4, s36
s_xor_b32 s37, s18, 2
s_mul_i32 s37, s37, 18432
v_lshl_add_u32 v23, v1, 4, s37
s_lshl_b32 s36, s19, 1
s_add_u32 s36, s36, s23
s_mul_i32 s36, s36, 36
s_lshl_b32 s36, s36, 10
s_mul_i32 s37, s39, {PART1}
s_add_u32 s36, s36, s37
v_lshl_add_u32 v24, v1, 4, s36
v_add_u32 v25, {36*1024}, v24
s_lshl_b32 s36, s53, 13
s_add_u32 s37, s36, 4096
s_lshl_b32 s38, s53, 10
s_add_u32 s38, s38, 32768
s_cmp_eq_u32 s19, 1
s_cbranch_scc1 {Lk1}""")
        for kh in range(2):
            if kh == 1:
                k.put(Lk1)
            keep = [2 * kh, 2 * kh + 1]
            send = [2 - 2 * kh, 3 - 2 * kh]
            for i, st in enumerate(send):
                for t in range(9):
                    k(f"ds_write_b128 v22, {acc(t*4+st)} offset:{(i*9+t)*1024}")
            k("""s_waitcnt lgkmcnt(0)
s_barrier""")
            for i, st in enumerate(send):
                for t in range(9):
                    k(f"ds_read_b128 {acc(t*4+st)}, v23 offset:{(i*9+t)*1024}")
            n = 18
            for i in range(2):
                for t in range(9):
                    n -= 1
                    k(f"s_waitcnt lgkmcnt({min(n,15)})")
                    a = 32 + 4 * (t * 4 + keep[i])
                    b = 32 + 4 * (t * 4 + send[i])
                    k(f"""v_pk_add_f32 v[{a}:{a+1}], v[{a}:{a+1}], v[{b}:{b+1}]
v_pk_add_f32 v[{a+2}:{a+3}], v[{a+2}:{a+3}], v[{b+2}:{b+3}]""")
                    so = "s36" if t < 4 else ("s37" if t < 8 else "s38")
                    k(f"buffer_store_dwordx4 v[{a}:{a+3}], v{24+i}, s[32:35], {so} offen offset:{1024*(t%4)}")
            k.stamp(7)
            if k.stamps:
                k("s_waitcnt vmcnt(0)")
            k.stamp(4)
            k.stamp(5, real=True)
            k.stamp_flush()
            if kh == 0:
                k("s_endpgm")
    k.put(Lexit)
    k("s_endpgm")
    return k


def gen_k6():
    k = K("final_kernel")
    k.kid = 5
    Lexit = k.label("exit")
    k(f"""s_cmp_ge_u32 s2, 1152
s_cbranch_scc1 {Lexit}""")
    k.stamp_init()
    k(f"""
s_load_dwordx2 s[4:5], s[0:1], {ARG['out']}
s_load_dwordx2 s[10:11], s[0:1], {ARG['ws']}
s_mov_b32 s40, 0xffff0000
v_and_b32 v1, 63, v0
v_lshrrev_b32 v2, 6, v0
s_lshl_b32 s16, s2, 2
v_readfirstlane_b32 s17, v2
s_nop 3
s_add_u32 s16, s16, s17
s_mov_b32 s18, 0x71c71c8
s_mul_hi_u32 s17, s16, s18
s_mul_i32 s18, s17, 36
s_sub_u32 s18, s16, s18
s_waitcnt lgkmcnt(0)""")
    k.srd(20, 4, 5, SD2)
    k.srd_off(24, 10, 11, WS_PART, 4 * PART1)
    k.srd_off(28, 10, 11, WS_X1, SD2)
    k.srd_off(32, 10, 11, WS_GBV, D * 4)
    k(f"""s_lshl_b32 s19, s16, 10
v_lshl_add_u32 v3, v1, 4, s19
s_mov_b32 s36, {PART1}
s_mov_b32 s37, {2*PART1}
s_mov_b32 s38, {3*PART1}
buffer_load_dwordx4 v[8:11], v3, s[24:27], 0 offen
buffer_load_dwordx4 v[12:15], v3, s[24:27], s36 offen
buffer_load_dwordx4 v[16:19], v3, s[24:27], s37 offen
buffer_load_dwordx4 v[20:23], v3, s[24:27], s38 offen
v_and_b32 v4, 15, v1
v_lshrrev_b32 v5, 4, v1
s_lshl_b32 s19, s17, 4
v_add_u32 v4, s19, v4
s_movk_i32 s19, 1152
v_mul_lo_u32 v4, v4, s19
s_lshl_b32 s19, s18, 5
v_lshl_add_u32 v6, v5, 3, s19
v_add_u32 v4, v4, v6
v_lshlrev_b32 v6, 1, v6
buffer_load_dwordx2 v[24:25], v4, s[28:31], 0 offen
buffer_load_dwordx4 v[28:31], v6, s[32:35], 0 offen
s_waitcnt vmcnt(4)
v_pk_add_f32 v[8:9], v[8:9], v[12:13]
v_pk_add_f32 v[10:11], v[10:11], v[14:15]
s_waitcnt vmcnt(2)
v_pk_add_f32 v[16:17], v[16:17], v[20:21]
v_pk_add_f32 v[18:19], v[18:19], v[22:23]
v_pk_add_f32 v[8:9], v[8:9], v[16:17]
v_pk_add_f32 v[10:11], v[10:11], v[18:19]""")
    rnd_pair(k, 8, 9, 12, 40)
    rnd_pair(k, 10, 11, 13, 40)
    k("""s_waitcnt vmcnt(0)
v_pk_mul_f32 v[8:9], v[8:9], v[28:29]
v_pk_mul_f32 v[10:11], v[10:11], v[30:31]""")
    rnd_pair(k, 8, 9, 12, 40)
    rnd_pair(k, 10, 11, 13, 40)
    k("""v_lshlrev_b32 v16, 16, v24
v_and_b32 v17, s40, v24
v_lshlrev_b32 v18, 16, v25
v_and_b32 v19, s40, v25
v_pk_add_f32 v[8:9], v[8:9], v[16:17]
v_pk_add_f32 v[10:11], v[10:11], v[18:19]
v_cvt_pk_bf16_f32 v12, v8, v9
v_cvt_pk_bf16_f32 v13, v10, v11
buffer_store_dwordx2 v[12:13], v4, s[20:23], 0 offen""")
    k.stamp(3)
    if k.stamps:
        k("s_waitcnt vmcnt(0)")
    k.stamp(4)
    k.stamp(5, real=True)
    k.stamp_flush()
    k.put(Lexit)
    k("s_endpgm")
    k.vgpr = 32
    k.sgpr = 48
    return k


HEADER = open("adaLN_cond__ssm_conv_h3__glu_gated_reglu__prompt.s.ref").read().split("; Override launch geometry")[0]


def build(path):
    ks = [(gen_k1(), 342, 256, 16384), (gen_k2(), 576, 64, K2_LDS), (gen_k3(), 256, 512, 18432),
          (gen_gemm(1), 256, 256, G_LDS), (gen_gemm(2), 256, 256, G_LDS), (gen_k6(), 1152, 256, 0)]
    out = HEADER
    for kk, g, b, lds in ks:
        out += f"; @launch kernel={kk.name} grid=({g},1,1) block=({b},1,1) lds={lds}\n"
    out += '.amdgcn_target "amdgcn-amd-amdhsa--gfx950"\n.text\n'
    for kk, *_ in ks:
        out += kk.text()
    out += '.section .rodata,"a"\n'
    for kk, *_ in ks:
        out += kk.desc()
    open(path, "w").write(out)


if __name__ == "__main__":
    build(sys.argv[1] if len(sys.argv) > 1 else "adaLN_cond__ssm_conv_h3__glu_gated_reglu__prompt.s")
```

```python
from asmlib import *
import gen as G
from gen import S, D, F, ARG, WS_H2, WS_HM, WS_PART, WS_X1, WS_GBV, WS_CNT, SD2, HM_BYTES, PART1, rnd_pair

STG = 36864
NBUF = 4
M_LDS = STG * NBUF
SPIN_MAX = 1 << 22
NPFS = 3
NPF_HM = 3
import os
HPOL = {'sc1': ' sc1', 'nt': ' nt', 'plain': '', 'sc0': ' sc0'}[os.environ.get('HPOL', 'sc1')]


def gen_mlp(exact=True, pfw=True):
    k = K("mlp_kernel")
    k.kid = 3
    Lexit = k.label("exit")
    DAH = 4
    RING = 6
    NV = 56
    WRG = 192
    DUM = WRG + 4 * RING
    k.agpr = DUM + 4
    k.vgpr = 256
    k.sgpr = 70
    VX, VD, VB, VD2 = 4, 8, 12, 27
    P1, P2 = F * 2, D * 2

    def wfrag(slot, half=None):
        if half is None:
            return ar(WRG + 4 * slot, 4)
        return ar(WRG + 4 * slot + 2 * half, 2)

    k(f"""s_cmp_ge_u32 s2, 256
s_cbranch_scc1 {Lexit}""")
    k.stamp_init()
    k(f"""s_load_dwordx4 s[4:7], s[0:1], {ARG['wg']}
s_load_dwordx2 s[8:9], s[0:1], {ARG['wd']}
s_load_dwordx2 s[10:11], s[0:1], {ARG['ws']}
s_load_dwordx2 s[12:13], s[0:1], {ARG['out']}
v_and_b32 v1, 63, v0
v_lshrrev_b32 v2, 6, v0
s_and_b32 s16, s2, 7
s_lshr_b32 s17, s2, 3
v_readfirstlane_b32 s18, v2
s_nop 3
s_lshr_b32 s19, s18, 1
s_and_b32 s20, s18, 1
s_and_b32 s53, s17, 3
s_and_b32 s62, s16, 3
s_lshr_b32 s37, s16, 2
s_lshl_b32 s52, s62, 1
s_bfe_u32 s36, s17, 0x10002
s_add_u32 s52, s52, s36
s_lshl_b32 s22, s37, 2
s_lshr_b32 s36, s17, 3
s_add_u32 s22, s22, s36
s_lshl_b32 s23, s22, 4
s_lshl_b32 s36, s18, 2
s_add_u32 s23, s23, s36
s_lshl_b32 s63, s37, 3
s_lshr_b32 s36, s17, 2
s_add_u32 s63, s63, s36
s_lshl_b32 s64, s63, 3
s_lshl_b32 s37, s20, 2
s_add_u32 s64, s64, s37
s_getreg_b32 s69, hwreg(HW_REG_XCC_ID, 0, 4)
s_mul_i32 s36, s23, 18432""")
    k(f"v_lshl_add_u32 v{VX}, v1, 4, s36")
    for st in range(1, 4):
        k(f"v_add_u32 v{VX+st}, 18432, v{VX+st-1}")

    def dma_voffs(vd, pitch, rowbase_sgpr):
        k(f"""s_mul_i32 s37, s20, {32*pitch}
s_add_u32 s38, s38, s37
s_lshl_b32 s37, s53, 8
s_add_u32 s40, s38, s37
s_lshl_b32 s37, s53, 5
s_add_u32 s41, s38, s37
s_add_u32 s41, s41, 1024
s_movk_i32 s37, {pitch}
v_lshrrev_b32 v22, 4, v1
v_and_b32 v23, 15, v1
v_mul_lo_u32 v24, v22, s37
v_add_u32 v24, s40, v24
v_lshlrev_b32 v25, 1, v22
v_xor_b32 v25, v23, v25
v_lshl_add_u32 v{vd}, v25, 4, v24
v_xor_b32 v25, 8, v25
v_lshl_add_u32 v{vd+1}, v25, 4, v24
v_add_u32 v{vd+1}, {4*pitch}, v{vd+1}
v_lshrrev_b32 v22, 1, v1
v_mul_lo_u32 v24, v22, s37
v_and_b32 v23, 1, v1
v_lshl_add_u32 v24, v23, 4, v24
v_add_u32 v{vd+2}, s41, v24""")
    k("s_mul_i32 s38, s52, 1152")
    dma_voffs(VD, P1, 38)
    k(f"""s_lshl_b32 s38, s62, 1
s_add_u32 s38, s38, s19
s_mul_i32 s38, s38, {576*P2}""")
    dma_voffs(VD2, P2, 38)
    k(f"""s_mul_i32 s42, s19, 18432
s_lshl_b32 s36, s20, 10
s_add_u32 s43, s42, s36
s_add_u32 s43, s43, 16384
s_lshl_b32 s36, s20, 13
s_add_u32 s42, s42, s36
v_lshrrev_b32 v22, 2, v1
v_and_b32 v23, 3, v1
v_lshlrev_b32 v23, 3, v23
v_lshl_add_u32 v24, v22, 8, v23
v_and_b32 v25, 7, v22""")
    for t in range(8):
        k(f"""v_xor_b32 v26, {t}, v25
v_lshl_add_u32 v{VB+t}, v26, 5, v24""")
    k(f"""v_lshl_add_u32 v{VB+8}, v22, 5, v23
v_add_u32 v{VB+8}, 16384, v{VB+8}
s_mul_i32 s36, s52, 18
s_lshl_b32 s37, s53, 2
s_add_u32 s38, s36, s37
s_lshl_b32 s38, s38, 10
s_lshr_b32 s37, s53, 1
s_add_u32 s39, s36, s37
s_add_u32 s39, s39, 16
s_lshl_b32 s39, s39, 10
s_mul_i32 s36, s23, 147456
s_add_u32 s38, s38, s36
s_add_u32 s39, s39, s36
v_and_b32 v25, 15, v1
v_lshl_add_u32 v22, v25, 7, s38
v_add_u32 v23, 2048, v22
v_and_b32 v25, 3, v1
v_lshl_add_u32 v25, v25, 7, s39
v_add_u32 v26, 512, v25
v_lshrrev_b32 v24, 2, v1
v_cmp_eq_u32 vcc, 4, v24
s_lshl_b32 s36, s17, 2
s_add_u32 s36, s36, s18
s_mul_i32 s36, s36, {11*128}
v_cndmask_b32 v22, v22, v25, vcc
v_cndmask_b32 v23, v23, v26, vcc
v_min_u32 v24, 10, v1
v_lshl_add_u32 v24, v24, 7, s36
s_mov_b32 s47, 0
s_mov_b32 s60, 0
s_mov_b32 s44, 0
s_mov_b32 s45, 0
s_mov_b32 s46, 0
s_mov_b32 s65, {8*P1}
s_mov_b32 s66, {64*P1}
s_waitcnt lgkmcnt(0)""")
    k.stamp(8)
    Lnr = k.label("noreg")
    k(f"""s_cmp_lg_u32 s18, 0
s_cbranch_scc1 {Lnr}
s_cmp_ge_u32 s69, 8
s_cbranch_scc1 {Lnr}
s_add_u32 s14, s10, {WS_CNT}
s_addc_u32 s15, s11, 0
s_lshl_b32 s36, s69, 3
s_mov_b64 s[38:39], 1
s_lshl_b64 s[38:39], s[38:39], s36
s_lshl_b32 s36, s16, 7
s_add_u32 s36, s36, 4096
s_mov_b64 exec, 1
v_mov_b32 v2, s38
v_mov_b32 v3, s39
v_mov_b32 v11, s36
global_atomic_add_x2 v11, v[2:3], s[14:15]
s_mov_b64 exec, -1""")
    k.put(Lnr)
    k(f"""s_cmp_eq_u32 s19, 0
s_cselect_b32 s14, s4, s6
s_cselect_b32 s15, s5, s7""")
    k.srd(24, 14, 15, D * F * 2)
    k.srd_off(28, 10, 11, WS_H2, SD2)
    k.srd_off(32, 10, 11, WS_HM, HM_BYTES)
    k(f"s_mul_i32 s36, s62, {1152*P2}")
    k.srd_off(56, 8, 9, "s36", 1152 * P2)

    def dma_list():
        out = []
        for n in range(8):
            pre = "s_add_u32 s54, s45, s42\ns_mov_b32 s55, s44\n" if n == 0 else ""
            post = "\ns_add_u32 s55, s55, s65" if (n & 1) and n < 7 else ""
            out.append(f"""{pre}s_add_u32 m0, s54, {1024*n}
s_nop 0
buffer_load_dwordx4 v{VD+(n&1)}, s[24:27], s55 offen lds{post}""")
        out.append(f"""s_add_u32 m0, s45, s43
s_nop 0
buffer_load_dwordx4 v{VD+2}, s[24:27], s44 offen lds
s_add_u32 s44, s44, s66
s_add_u32 s45, s45, {STG}
s_cmp_ge_u32 s45, {STG*NBUF}
s_cselect_b32 s45, 0, s45""")
        return out

    class Ph:
        pass

    def make_phase(g1):
        p = Ph()
        p.g1 = g1
        p.NT = 18 if g1 else 9
        p.NACC = p.NT * 4
        p.NXS = 4
        p.XR = 64 if g1 else 0
        p.NF = 2 * p.NT
        p.acc = lambda ti: vr(32 + 4 * ti, 4) if ti < NV else ar(4 * (ti - NV), 4)
        p.xfrag = lambda xs, kk, st: ar(p.XR + 32 * xs + 16 * kk + 4 * st, 4)
        return p

    def xload_list(p, xs):
        out = []
        sc = "" if p.g1 else HPOL
        for kk in range(2):
            for st in range(4):
                out.append(f"buffer_load_dwordx4 {p.xfrag(xs, kk, st)}, v{VX+st}, s[28:31], s46 offen offset:{1024*kk}{sc}")
        out[-1] += "\ns_add_u32 s46, s46, 2048"
        return out

    def zero_list(p):
        zl = []
        for ti in range(p.NACC):
            for r in range(4):
                if ti < NV:
                    zl.append(f"v_mov_b32 v{32+4*ti+r}, 0")
                else:
                    zl.append(f"v_accvgpr_write_b32 a{4*(ti-NV)+r}, 0")
        return zl

    def frag_info(p, f):
        kk = f // p.NT
        r = f % p.NT
        return kk, r % 9, r // 9

    def tr_reads(p, f, slot):
        kk, t, m = frag_info(p, f)
        if t < 8:
            off, hs = m * 18432 + kk * 8192, 4096
        else:
            off, hs = m * 18432 + kk * 1024, 512
        return [f"ds_read_b64_tr_b16 {wfrag(slot, 0)}, v{VB+t} offset:{off}",
                f"ds_read_b64_tr_b16 {wfrag(slot, 1)}, v{VB+t} offset:{off + hs}"]

    def pf_list(xs):
        out = [f"buffer_load_dword a{DUM}, v{22+(xs&1)}, s[32:35], s47 offen sc1" + ("\ns_add_u32 s47, s47, 147456" if xs & 1 else ""),
               f"buffer_load_dword a{DUM+1}, v24, s[56:59], s60 offen\ns_add_u32 s60, s60, {128*11*128}"]
        return out

    def stage(p, xs, last, pre=None):
        NF = p.NF
        if last:
            vm = dma_list() if p.g1 else []
            npf = 0
        else:
            vm = dma_list() + xload_list(p, (xs + p.NXS - 1) % p.NXS)
            if p.g1 and pfw:
                vm += pf_list(xs)
        nvm = len(vm)
        WB = nvm + 8
        PB = NF - DAH
        slots = {}
        for i in range(nvm):
            slots.setdefault(i * PB // nvm, []).append(vm[i])
        if pre:
            k(pre)
        if not last:
            k(f"""s_add_u32 s48, s48, {STG}
s_cmp_ge_u32 s48, {STG*NBUF}
s_cselect_b32 s49, {(-STG*(NBUF-1)) & 0xffffffff:#x}, s50
s_cselect_b32 s48, 0, s48""")
        for f in range(NF):
            kk, t, m = frag_info(p, f)
            fa = f + DAH
            if f == PB and not last:
                k(f"s_waitcnt vmcnt({WB})")
                k("s_barrier")
            rd = []
            upd = None
            if fa < NF:
                rd = tr_reads(p, fa, fa % RING)
                if fa >= NF - 9 and not last:
                    tt = frag_info(p, fa)[1]
                    upd = f"v_add_u32 v{VB+tt}, s49, v{VB+tt}"
            elif not last:
                rd = tr_reads(p, fa - NF, fa % RING)
            rem = min(DAH - 1, (NF - 1 - f) if last else DAH - 1)
            k(f"s_waitcnt lgkmcnt({2*rem})")
            tb = (m * 9 + t) * 4
            extra = list(slots.get(f, []))
            for st in range(4):
                k(f"v_mfma_f32_16x16x32_bf16 {p.acc(tb+st)}, {wfrag(f % RING)}, {p.xfrag(xs, kk, st)}, {p.acc(tb+st)}")
                if st == 0 and rd:
                    k(rd[0])
                if st == 1 and rd:
                    k(rd[1])
                    if upd:
                        k(upd)
                if st >= 2 and extra:
                    k(extra.pop(0))
            while extra:
                k(extra.pop(0))

    def signal_and_wait(cnt_sig_sgpr, cnt_wait_sgpr, target, mid=None):
        Lw = k.label("notw0")
        Lp = k.label("poll")
        Lq = k.label("pdone")
        Lf1 = k.label("fast1")
        Lf2 = k.label("fast2")
        k(f"""s_waitcnt vmcnt(0) lgkmcnt(0)
s_barrier""")
        if mid:
            mid()
        k(f"""s_cmp_lg_u32 s18, 0
s_cbranch_scc1 {Lw}
s_add_u32 s14, s10, {WS_CNT}
s_addc_u32 s15, s11, 0
s_mov_b64 exec, 1
v_readfirstlane_b32 s38, v30
v_readfirstlane_b32 s39, v31
v_mov_b32 v22, s{cnt_sig_sgpr}
v_mov_b32 v23, 1
v_mov_b32 v24, s{cnt_wait_sgpr}
s_lshl_b32 s36, s69, 3
s_lshr_b64 s[38:39], s[38:39], s36
s_and_b32 s38, s38, 0xff
s_cmp_ge_u32 s69, 8
s_cselect_b32 s38, 0, s38
s_cmp_eq_u32 s38, 32
s_cbranch_scc1 {Lf1}
buffer_wbl2 sc1
s_waitcnt vmcnt(0)""")
        k.put(Lf1)
        k(f"""global_atomic_add v22, v23, s[14:15]
s_mov_b32 s36, 0""")
        k.put(Lp)
        k(f"""global_load_dword v25, v24, s[14:15] sc1
s_add_u32 s36, s36, 1
s_waitcnt vmcnt(0)
v_readfirstlane_b32 s37, v25
s_cmp_ge_u32 s36, {SPIN_MAX}
s_cbranch_scc1 {Lq}
s_cmp_ge_u32 s37, {target}
s_cbranch_scc1 {Lq}
s_sleep 1
s_branch {Lp}""")
        k.put(Lq)
        k(f"""s_cmp_eq_u32 s38, 32
s_cbranch_scc1 {Lf2}
buffer_inv sc1
s_waitcnt vmcnt(0)""")
        k.put(Lf2)
        if k.stamps:
            k("s_mov_b32 s98, s38")
        k("s_mov_b64 exec, -1")
        k.put(Lw)
        k("s_barrier")

    p1 = make_phase(True)
    zl = zero_list(p1)
    pl = dma_list() + xload_list(p1, 0) + xload_list(p1, 1) + dma_list() + xload_list(p1, 2)
    per = (len(zl) + len(pl) - 1) // len(pl)
    k.stamp(9)
    for i, ln in enumerate(pl):
        k(ln)
        if i >= 8:
            for z in range(per + 6):
                if zl:
                    k(zl.pop(0))
    while zl:
        k(zl.pop(0))
    k(f"""s_waitcnt vmcnt(25)
s_barrier""")
    k.stamp(2)
    if k.stamps:
        k("s_waitcnt lgkmcnt(0)")
    for f in range(DAH):
        for ln in tr_reads(p1, f, f % RING):
            k(ln)
    k(f"""s_mov_b32 s48, 0
s_mov_b32 s50, {STG}
s_mov_b32 s51, 0""")
    Lloop = k.label("loop")
    Lsk = k.label("noswitch")
    k.put(Lloop)
    for xs in range(4):
        pre = None
        if xs == 2:
            pre = "s_cmp_eq_u32 s51, 1\ns_cselect_b32 s30, 0, s30"
        if xs == 3:
            k(f"""s_cmp_lg_u32 s51, 1
s_cbranch_scc1 {Lsk}
s_mov_b32 s24, s8
s_mov_b32 s25, s9
s_mov_b32 s44, 0
s_mov_b32 s65, {8*P2}
s_mov_b32 s66, {64*P2}
v_mov_b32 v{VD}, v{VD2}
v_mov_b32 v{VD+1}, v{VD2+1}
v_mov_b32 v{VD+2}, v{VD2+2}""")
            k.put(Lsk)
        stage(p1, xs, False, pre)
    k(f"""s_add_u32 s51, s51, 1
s_cmp_lt_u32 s51, 2
s_cbranch_scc1 {Lloop}""")
    stage(p1, 0, True)
    k.stamp(3)
    k("s_nop 7")

    def accreg(ti, r, tmp):
        if ti < NV:
            return f"v{32+4*ti+r}"
        k(f"v_accvgpr_read_b32 v{tmp}, a{4*(ti-NV)+r}")
        return f"v{tmp}"

    k(f"""s_mul_i32 s36, s52, 18
s_lshl_b32 s37, s53, 2
s_add_u32 s38, s36, s37
s_lshl_b32 s38, s38, 10
s_lshr_b32 s37, s53, 1
s_add_u32 s39, s36, s37
s_add_u32 s39, s39, 16
s_lshl_b32 s39, s39, 10
s_and_b32 s37, s53, 1
s_lshl_b32 s37, s37, 3
s_add_u32 s39, s39, s37
s_mul_i32 s36, s23, 147456
s_mov_b32 s40, 0xffff0000
v_lshl_add_u32 v{VX}, v1, 4, s36""")
    for st in range(1, 4):
        k(f"v_add_u32 v{VX+st}, 147456, v{VX+st-1}")
    for st in range(4):
        for pr in range(5):
            tiles = [2 * pr, 2 * pr + 1] if pr < 4 else [8]
            ob = 32 + 4 * (tiles[0] * 4 + st)
            for hi, t in enumerate(tiles):
                tg = t * 4 + st
                tu = (9 + t) * 4 + st
                gn = [f"v{32+4*tg+r}" for r in range(4)]
                un = [accreg(tu, r, 22 + r) for r in range(4)]
                if exact:
                    for h2 in range(2):
                        k(f"""v_cvt_pk_bf16_f32 v30, {gn[2*h2]}, {gn[2*h2+1]}
v_cvt_pk_bf16_f32 v31, {un[2*h2]}, {un[2*h2+1]}
v_pk_max_i16 v30, v30, 0
v_lshlrev_b32 v2, 16, v31
v_and_b32 v3, s40, v31
v_lshlrev_b32 v{26+2*h2}, 16, v30
v_and_b32 v{27+2*h2}, s40, v30
v_mul_f32 v{26+2*h2}, v{26+2*h2}, v2
v_mul_f32 v{27+2*h2}, v{27+2*h2}, v3""")
                else:
                    for r in range(4):
                        k(f"v_max_f32 v{26+r}, 0, {gn[r]}")
                        k(f"v_mul_f32 v{26+r}, v{26+r}, {un[r]}")
                k(f"""v_cvt_pk_bf16_f32 v{ob+2*hi}, v26, v27
v_cvt_pk_bf16_f32 v{ob+2*hi+1}, v28, v29""")
            if os.environ.get("XNOST"):
                pass
            elif pr < 4:
                k(f"buffer_store_dwordx4 v[{ob}:{ob+3}], v{VX+st}, s[32:35], s38 offen offset:{1024*pr}")
            else:
                k(f"buffer_store_dwordx2 v[{ob}:{ob+1}], v{VX+st}, s[32:35], s39 offen")
    k(f"""s_add_u32 s14, s10, {WS_CNT}
s_addc_u32 s15, s11, 0
s_lshl_b32 s36, s16, 7
s_add_u32 s36, s36, 4096
v_mov_b32 v22, s36
global_load_dwordx2 v[30:31], v22, s[14:15] sc1""")
    k.stamp(7)
    p2 = make_phase(False)
    k(f"""s_lshl_b32 s67, s22, 2
s_lshr_b32 s36, s52, 1
s_add_u32 s67, s67, s36
s_lshl_b32 s67, s67, 7
s_lshr_b32 s68, s63, 1
s_lshl_b32 s68, s68, 2
s_add_u32 s68, s68, s62
s_lshl_b32 s68, s68, 7""")

    def mid1():
        k.srd_off(28, 10, 11, WS_HM, HM_BYTES)
        k(f"""s_mul_i32 s36, s64, 147456
s_lshl_b32 s37, s62, 1
s_add_u32 s37, s37, s19
s_mul_i32 s37, s37, {18*1024}
s_add_u32 s36, s36, s37
v_lshl_add_u32 v{VX}, v1, 4, s36
s_mul_i32 s36, s19, 18432
s_add_u32 s36, s36, {STG}
s_mov_b32 s46, 0
s_mov_b32 s48, {STG}
s_mov_b32 s51, 0""")
        for st in range(1, 4):
            k(f"v_add_u32 v{VX+st}, 147456, v{VX+st-1}")
        for t in range(9):
            k(f"v_add_u32 v{VB+t}, s36, v{VB+t}")
    signal_and_wait(67, 68, 8, mid1)
    if os.environ.get("XDELAY"):
        for _ in range(int(os.environ["XDELAY"])):
            k("s_sleep 127")
    k.stamp(10)
    zl = zero_list(p2)
    pl = xload_list(p2, 0) + xload_list(p2, 1) + xload_list(p2, 2)
    for i, ln in enumerate(pl):
        k(ln)
        for z in range(6):
            if zl:
                k(zl.pop(0))
    while zl:
        k(zl.pop(0))
    if k.stamps:
        k("s_waitcnt lgkmcnt(0)")
    for f in range(DAH):
        for ln in tr_reads(p2, f, f % RING):
            k(ln)
    k("s_waitcnt vmcnt(16)")
    k.stamp(13)
    if k.stamps:
        k("s_mov_b64 s[98:99], 0" if False else "")
    Lloop2 = k.label("loop2")
    k.put(Lloop2)
    if k.stamps:
        k("s_mov_b64 s[82:83], s[100:101]" if False else "")
        k.stamp(6)
    for xs in range(4):
        pre = None
        if xs == 2:
            pre = "s_cmp_eq_u32 s51, 1\ns_cselect_b32 s30, 0, s30"
        if xs == 3:
            pre = "s_cmp_eq_u32 s51, 1\ns_cselect_b32 s26, 0, s26"
        stage(p2, xs, False, pre)
    k(f"""s_add_u32 s51, s51, 1
s_cmp_lt_u32 s51, 2
s_cbranch_scc1 {Lloop2}""")
    stage(p2, 0, True)
    k.stamp(11)
    acc = p2.acc
    Lk1 = k.label("kh1")
    k.srd_off(32, 10, 11, WS_PART, 4 * PART1)
    k(f"""s_waitcnt vmcnt(0)
s_barrier
s_mul_i32 s36, s18, 18432
v_lshl_add_u32 v22, v1, 4, s36
s_xor_b32 s37, s18, 2
s_mul_i32 s37, s37, 18432
v_lshl_add_u32 v23, v1, 4, s37
s_lshl_b32 s36, s19, 1
s_add_u32 s36, s36, s64
s_mul_i32 s36, s36, 36
s_lshl_b32 s36, s36, 10
s_mul_i32 s37, s62, {PART1}
s_add_u32 s36, s36, s37
v_lshl_add_u32 v24, v1, 4, s36
v_add_u32 v25, {36*1024}, v24
s_lshl_b32 s36, s53, 13
s_add_u32 s37, s36, 4096
s_lshl_b32 s38, s53, 10
s_add_u32 s38, s38, 32768
s_cmp_eq_u32 s19, 1
s_cbranch_scc1 {Lk1}""")
    for kh in range(2):
        if kh == 1:
            k.put(Lk1)
        keep = [2 * kh, 2 * kh + 1]
        send = [2 - 2 * kh, 3 - 2 * kh]
        for i, st in enumerate(send):
            for t in range(9):
                k(f"ds_write_b128 v22, {acc(t*4+st)} offset:{(i*9+t)*1024}")
        k("""s_waitcnt lgkmcnt(0)
s_barrier""")
        for i, st in enumerate(send):
            for t in range(9):
                k(f"ds_read_b128 {acc(t*4+st)}, v23 offset:{(i*9+t)*1024}")
        n = 18
        for i in range(2):
            for t in range(9):
                n -= 1
                k(f"s_waitcnt lgkmcnt({min(n,15)})")
                a = 32 + 4 * (t * 4 + keep[i])
                b = 32 + 4 * (t * 4 + send[i])
                k(f"""v_pk_add_f32 v[{a}:{a+1}], v[{a}:{a+1}], v[{b}:{b+1}]
v_pk_add_f32 v[{a+2}:{a+3}], v[{a+2}:{a+3}], v[{b+2}:{b+3}]""")
                so = "s36" if t < 4 else ("s37" if t < 8 else "s38")
                k(f"buffer_store_dwordx4 v[{a}:{a+3}], v{24+i}, s[32:35], {so} offen offset:{1024*(t%4)}")
        k.stamp(12)
        if k.stamps:
            k("s_waitcnt vmcnt(0) lgkmcnt(0)")
            k("s_mov_b32 s88, s98")
            k("s_mov_b32 s89, s69")
        k.stamp(4)
        k.stamp(5, real=True)
        k.stamp_flush()
        if kh == 0:
            k("s_endpgm")
    k.put(Lexit)
    k("s_endpgm")
    return k
```

```python
import sys
from asmlib import *

import os
K.stamps = os.environ.get("STAMP", "0") == "1"
S, D, F = 2048, 576, 4608
RS = 4352
WS_UR0 = 0x0
WS_UR1 = 0x280000
WS_Y2T = 0x500000
WS_X1 = 0x780000
WS_H2 = 0xA00000
WS_MODP = 0xC80000
WS_GBV = 0xC84000
WS_CNT = 0xC88000
WS_HM = 0xD00000
WS_PART = 0x2000000
SD2 = S * D * 2
HM_BYTES = S * F * 2
PART1 = S * D * 4

ARG = dict(q=0, k=8, v=16, shift=24, ssmk=32, ssmD=40, bx=48, wg=56, wu=64, wd=72, c=80, wmod=88, out=96, dbg=104, ws=112)


def rnd_pair(k, lo, hi, tmp, smask):
    k(f"""v_cvt_pk_bf16_f32 v{tmp}, v{lo}, v{hi}
v_lshlrev_b32 v{lo}, 16, v{tmp}
v_and_b32 v{hi}, s{smask}, v{tmp}""")


def gen_k1():
    k = K("prep_kernel")
    k.kid = 0
    Lexit = k.label("exit")
    Lmod = k.label("mod")
    k(f"""s_cmp_ge_u32 s2, 342
s_cbranch_scc1 {Lexit}""")
    k.stamp_init()
    k(f"""
s_load_dwordx4 s[4:7], s[0:1], {ARG['k']}
s_load_dwordx2 s[8:9], s[0:1], {ARG['shift']}
s_load_dwordx4 s[12:15], s[0:1], {ARG['c']}
s_load_dwordx2 s[10:11], s[0:1], {ARG['ws']}
s_mov_b32 s40, 0xffff0000
v_and_b32 v1, 7, v0
v_lshrrev_b32 v2, 3, v0
s_cmp_ge_u32 s2, 288
s_cbranch_scc1 {Lmod}
s_lshr_b32 s16, s2, 5
s_and_b32 s17, s2, 31
s_waitcnt lgkmcnt(0)""")
    k.srd(20, 4, 5, SD2)
    k.srd(24, 6, 7, SD2)
    k.srd(28, 8, 9, D * 8)
    k.srd(32, 10, 11, WS_Y2T)
    k(f"""s_lshl_b32 s18, s17, 6
v_lshl_add_u32 v3, v2, 1, s18
s_movk_i32 s19, 1152
v_mul_lo_u32 v3, v3, s19
s_lshl_b32 s18, s16, 7
v_lshl_add_u32 v4, v1, 4, s18
v_add_u32 v3, v3, v4""")
    A0 = 4
    for r in range(6):
        off = (r - 4) * 1152
        k(f"v_add_u32 v{A0+r}, {off & 0xffffffff:#x}, v3")
    KR = 12
    VR = 36
    WR = 48
    for r in range(6):
        k(f"buffer_load_dwordx4 v[{KR+4*r}:{KR+4*r+3}], v{A0+r}, s[20:23], 0 offen")
    for r in range(3):
        k(f"buffer_load_dwordx4 v[{VR+4*r}:{VR+4*r+3}], v{A0+3+r}, s[24:27], 0 offen")
    k(f"""s_lshl_b32 s18, s16, 9
v_lshl_add_u32 v10, v1, 6, s18""")
    for i in range(4):
        k(f"buffer_load_dwordx4 v[{WR+4*i}:{WR+4*i+3}], v10, s[28:31], 0 offen offset:{16*i}")
    k(f"""v_sub_u32 v10, 31, v2
v_lshlrev_b32 v11, 2, v1
v_xor_b32 v10, v10, v11
v_lshlrev_b32 v10, 2, v10
v_lshl_add_u32 v10, v1, 10, v10""")
    WF = 64
    KF = 96
    VF = 144
    U = 168
    P = 192
    k("s_waitcnt vmcnt(0)")
    k.stamp(2)
    for j in range(8):
        k(f"""v_lshlrev_b32 v{WF+0*8+j}, 16, v{WR+2*j}
v_and_b32 v{WF+1*8+j}, s40, v{WR+2*j}
v_lshlrev_b32 v{WF+2*8+j}, 16, v{WR+2*j+1}
v_and_b32 v{WF+3*8+j}, s40, v{WR+2*j+1}""")
    for r in range(6):
        for q in range(4):
            k(f"""v_lshlrev_b32 v{KF+8*r+2*q}, 16, v{KR+4*r+q}
v_and_b32 v{KF+8*r+2*q+1}, s40, v{KR+4*r+q}""")
    for r in range(3):
        for q in range(4):
            k(f"""v_lshlrev_b32 v{VF+8*r+2*q}, 16, v{VR+4*r+q}
v_and_b32 v{VF+8*r+2*q+1}, s40, v{VR+4*r+q}""")
    for o in range(3):
        for q in range(4):
            for t in range(4):
                k(f"v_pk_mul_f32 v[{P+2*t}:{P+2*t+1}], v[{KF+8*(o+t)+2*q}:{KF+8*(o+t)+2*q+1}], v[{WF+8*(3-t)+2*q}:{WF+8*(3-t)+2*q+1}]")
            for t in range(4):
                rnd_pair(k, P + 2 * t, P + 2 * t + 1, 200 + t, 40)
            for t in range(1, 4):
                k(f"v_pk_add_f32 v[{P}:{P+1}], v[{P}:{P+1}], v[{P+2*t}:{P+2*t+1}]")
                rnd_pair(k, P, P + 1, 200, 40)
            k(f"v_pk_mul_f32 v[{U+8*o+2*q}:{U+8*o+2*q+1}], v[{P}:{P+1}], v[{VF+8*o+2*q}:{VF+8*o+2*q+1}]")
    for j in range(8):
        k(f"""v_cvt_pk_bf16_f32 v{P+(j&1)*2}, v{U+16+j}, v{U+8+j}
v_cvt_pk_bf16_f32 v{P+(j&1)*2+1}, v{U+8+j}, v{U+j}
ds_write_b32 v10, v{P+(j&1)*2} offset:{j*128}
ds_write_b32 v10, v{P+(j&1)*2+1} offset:{8192+j*128}""")
    k(f"""v_lshrrev_b32 v4, 3, v0
v_and_b32 v5, 7, v0
v_lshrrev_b32 v6, 3, v4
v_xor_b32 v7, v5, v6
v_lshlrev_b32 v7, 4, v7
v_lshl_add_u32 v7, v4, 7, v7
v_xor_b32 v8, 64, v7
v_add_u32 v8, 4096, v8
s_mul_i32 s18, s16, {64*RS}
s_lshl_b32 s19, s17, 7
s_sub_u32 s18, s18, s19
s_add_u32 s18, s18, 3968
v_mul_u32_u24 v9, {RS}, v4
v_lshl_add_u32 v9, v5, 4, v9
v_add_u32 v9, s18, v9
v_add_u32 v11, {32*RS}, v9
s_waitcnt lgkmcnt(0)
s_barrier
ds_read_b128 v[12:15], v7
ds_read_b128 v[16:19], v8
ds_read_b128 v[20:23], v7 offset:8192
ds_read_b128 v[24:27], v8 offset:8192
s_mov_b32 s18, {WS_UR1}
s_waitcnt lgkmcnt(3)
buffer_store_dwordx4 v[12:15], v9, s[32:35], 0 offen
s_waitcnt lgkmcnt(2)
buffer_store_dwordx4 v[16:19], v11, s[32:35], 0 offen
s_waitcnt lgkmcnt(1)
buffer_store_dwordx4 v[20:23], v9, s[32:35], s18 offen
s_waitcnt lgkmcnt(0)
buffer_store_dwordx4 v[24:27], v11, s[32:35], s18 offen""")
    k.stamp(3)
    if k.stamps:
        k("s_waitcnt vmcnt(0)")
    k.stamp(4)
    k.stamp(5, real=True)
    k.stamp_flush()
    k("s_endpgm")
    k.put(Lmod)
    k(f"""s_sub_u32 s16, s2, 288
s_waitcnt lgkmcnt(0)""")
    k.srd(20, 12, 13, D * 2)
    k.srd(24, 14, 15, D * 6 * D * 2)
    k.srd_off(28, 10, 11, WS_MODP, 0x8000)
    WL = 32
    CL = 8
    k(f"""s_movk_i32 s19, 6912
v_mul_lo_u32 v3, v2, s19
s_lshl_b32 s18, s16, 7
v_lshl_add_u32 v4, v1, 4, s18
v_add_u32 v3, v3, v4
v_lshlrev_b32 v4, 1, v2""")
    for i in range(18):
        k(f"v_mov_b32 v{CL+i}, 0")
    for i in range(18):
        k(f"buffer_load_short_d16_hi v{CL+i}, v4, s[20:23], 0 offen offset:{64*i}")
    k("s_mov_b32 s18, 0")
    for i in range(18):
        k(f"buffer_load_dwordx4 v[{WL+4*i}:{WL+4*i+3}], v3, s[24:27], s18 offen")
        if i < 17:
            k(f"s_add_u32 s18, s18, {32*6912}")
    k("s_mov_b32 s19, 0xbfb8aa3b")
    k("s_waitcnt vmcnt(18)")
    for i in range(18):
        k(f"v_mul_f32 v{104+i}, s19, v{CL+i}")
    for i in range(18):
        k(f"v_exp_f32 v{104+i}, v{104+i}")
    for i in range(18):
        k(f"v_add_f32 v{104+i}, 1.0, v{104+i}")
    for i in range(18):
        k(f"v_rcp_f32 v{104+i}, v{104+i}")
    k("s_nop 0")
    for i in range(18):
        k(f"v_mul_f32 v{CL+i}, v{CL+i}, v{104+i}")
    for i in range(0, 18, 2):
        rnd_pair(k, CL + i, CL + i + 1, 104 + i, 40)
    ACC = 124
    for j in range(8):
        k(f"v_mov_b32 v{ACC+j}, 0")
    for i in range(18):
        k(f"s_waitcnt vmcnt({17-i})")
        for q in range(4):
            k(f"""v_lshlrev_b32 v{104+2*q}, 16, v{WL+4*i+q}
v_and_b32 v{104+2*q+1}, s40, v{WL+4*i+q}""")
        for j in range(8):
            k(f"v_fmac_f32 v{ACC+j}, v{CL+i}, v{104+j}")
    k(f"""v_lshlrev_b32 v4, 8, v2
v_lshl_add_u32 v4, v1, 5, v4
ds_write_b128 v4, v[{ACC}:{ACC+3}]
ds_write_b128 v4, v[{ACC+4}:{ACC+7}] offset:16
v_lshlrev_b32 v5, 2, v0
s_waitcnt lgkmcnt(0)
s_barrier
v_cmp_gt_u32 vcc, 64, v0
s_and_saveexec_b64 s[36:37], vcc
s_cbranch_execz {Lexit}""")
    for i in range(32):
        k(f"ds_read_b32 v{32+i}, v5 offset:{256*i}")
    k("s_waitcnt lgkmcnt(0)")
    for st in (16, 8, 4, 2, 1):
        for i in range(st):
            k(f"v_add_f32 v{32+i}, v{32+i}, v{32+i+st}")
    k(f"""s_mul_i32 s17, s16, 7282
s_lshr_b32 s17, s17, 16
s_mul_i32 s18, s17, 9
s_sub_u32 s18, s16, s18
v_cvt_pk_bf16_f32 v33, v32, v32
v_and_b32 v32, s40, v33
v_add_f32 v34, 1.0, v32
v_cvt_pk_bf16_f32 v34, v34, v34
s_cmp_eq_u32 s17, 1
s_cselect_b32 s19, 1, 0
s_cmp_eq_u32 s17, 4
s_cselect_b32 s19, 1, s19
s_cmp_eq_u32 s19, 1
s_cselect_b64 vcc, -1, 0
s_lshl_b32 s18, s18, 6
v_add_u32 v6, s18, v0
v_cndmask_b32 v33, v33, v34, vcc
v_lshlrev_b32 v7, 4, v6
s_lshl_b32 s19, s17, 1
buffer_store_short v33, v7, s[28:31], s19 offen
s_cmp_lg_u32 s17, 5
s_cbranch_scc1 {Lexit}
v_lshlrev_b32 v7, 2, v6
s_movk_i32 s19, 0x4000
buffer_store_dword v32, v7, s[28:31], s19 offen""")
    k.put(Lexit)
    k("s_endpgm")
    k.vgpr = 208
    k.sgpr = 48
    return k


SU = 4160
SK = 4640
KB = 4 * SU
K2_LDS = KB + 2 * SK
PFW = os.environ.get('PFW', '1') == '1'


def gen_k2():
    k = K("conv_kernel")
    k.kid = 1
    Lexit = k.label("exit")
    k(f"""s_cmp_ge_u32 s2, 576
s_cbranch_scc1 {Lexit}""")
    k.stamp_init()
    k(f"""
s_and_b32 s3, s2, 7
s_mul_i32 s3, s3, 72
s_lshr_b32 s16, s2, 3
s_add_u32 s3, s3, s16
s_load_dwordx4 s[4:7], s[0:1], {ARG['ssmk']}
s_load_dwordx2 s[10:11], s[0:1], {ARG['ws']}
s_load_dwordx4 s[48:51], s[0:1], {ARG['wg']}
s_load_dwordx2 s[44:45], s[0:1], {ARG['wd']}
s_mov_b32 s40, 0xffff0000
v_mov_b32 v4, 0
v_mov_b32 v5, 0
v_mov_b32 v6, 0
v_mov_b32 v7, 0
v_and_b32 v1, 15, v0
v_lshrrev_b32 v2, 4, v0
v_lshrrev_b32 v3, 2, v1
v_and_b32 v8, 3, v0
s_movk_i32 s16, {SU}
v_mul_u32_u24 v9, s16, v3
v_lshl_add_u32 v9, v8, 4, v9
ds_write_b128 v9, v[4:7] offset:4096
v_lshrrev_b32 v9, 5, v0
s_movk_i32 s17, {SK}
v_mul_u32_u24 v9, s17, v9
v_and_b32 v10, 31, v0
v_lshl_add_u32 v9, v10, 4, v9
ds_write_b128 v9, v[4:7] offset:{KB}
s_lshl_b32 s18, s3, 12
s_lshl_b32 s19, s3, 1
s_and_b32 s19, s19, 0xfffffffc
v_lshlrev_b32 v11, 4, v0
s_waitcnt lgkmcnt(0)
s_load_dword s41, s[6:7], s19""")
    k.srd_off(20, 4, 5, "s18", 4096)
    k(f"""s_mul_i32 s18, s3, {RS}
s_add_u32 s12, s10, s18
s_addc_u32 s13, s11, 0""")
    k.srd_off(24, 12, 13, WS_UR0, 4096)
    k.srd_off(28, 12, 13, WS_UR1, 4096)
    k.srd_off(32, 10, 11, WS_Y2T, SD2)
    k.srd(52, 48, 49, D * F * 2)
    k.srd(56, 50, 51, D * F * 2)
    k.srd(60, 44, 45, D * F * 2)
    k("s_mul_i32 s47, s2, 9216")
    copies = [(20, KB + 456), (20, KB + SK + 448), (28, 12), (24, SU + 12), (28, 2 * SU + 16), (24, 3 * SU + 16)]
    for srd, dst in copies:
        k(f"s_movk_i32 m0, {dst}")
        k("s_nop 0")
        for i in range(4):
            k(f"buffer_load_dwordx4 v11, s[{srd}:{srd+3}], 0 offen offset:{1024*i} lds")
    k(f"""v_mul_u32_u24 v12, s16, v8
v_sub_u32 v13, v2, v3
v_lshl_add_u32 v12, v13, 4, v12
v_add_u32 v12, 48, v12
v_and_b32 v13, 1, v0
v_mul_u32_u24 v13, s17, v13
v_lshrrev_b32 v14, 1, v1
v_lshl_add_u32 v13, v14, 6, v13
v_lshl_add_u32 v13, v2, 4, v13
v_add_u32 v13, {KB}, v13
v_and_b32 v15, 1, v0
v_lshlrev_b32 v15, 3, v15
v_lshl_add_u32 v15, v14, 6, v15
v_lshl_add_u32 v15, v2, 4, v15
v_sub_u32 v16, {3*SU + 4104 - 3584}, v15
v_lshl_add_u32 v15, v14, 2, v2
v_mul_u32_u24 v15, 9216, v15
v_and_b32 v17, 1, v0
v_lshl_add_u32 v15, v17, 3, v15
s_lshl_b32 s46, s3, 4""")
    ACC = 20
    FR = 52
    for i in range(32):
        k(f"v_mov_b32 v{ACC+i}, 0")

    def reads(r):
        st = r & 1
        out = []
        for n in range(8):
            out.append(f"ds_read_b128 v[{FR+64*st+4*n}:{FR+64*st+4*n+3}], v12 offset:{3648 - 48 + 64*r - 512*n}")
            out.append(f"ds_read_b128 v[{FR+64*st+32+4*n}:{FR+64*st+32+4*n+3}], v13 offset:{64*r + 512*n}")
        return out

    pfl = []
    for i in range(9):
        for srd in (52, 56):
            pfl.append(f"buffer_load_dwordx4 v[{FR+128}:{FR+131}], v11, s[{srd}:{srd+3}], s47 offen offset:{1024*(i%4)}" + ("\ns_add_u32 s47, s47, 4096" if (i % 4 == 3 and srd == 56) else ""))
    k("s_waitcnt vmcnt(0)")
    k.stamp(2)
    for ln in reads(0):
        k(ln)
    for r in range(8):
        st = r & 1
        nxt = reads(r + 1) if r < 7 else []
        k("s_waitcnt lgkmcnt(0)")
        mf = []
        for w in range(8):
            for q in range(8 - w):
                t = q + w
                mf.append(f"v_mfma_f32_16x16x32_bf16 v[{ACC+4*t}:{ACC+4*t+3}], v[{FR+64*st+4*w}:{FR+64*st+4*w+3}], v[{FR+64*st+32+4*q}:{FR+64*st+32+4*q+3}], v[{ACC+4*t}:{ACC+4*t+3}]")
        for i, m in enumerate(mf):
            k(m)
            if i < len(nxt):
                k(nxt[i])
            if PFW and i >= 16 and (i - 16) % 6 == 0 and pfl:
                k(pfl.pop(0))
    k.stamp(3)
    UV = FR
    for t in range(8):
        k(f"ds_read_b64 v[{UV+2*t}:{UV+2*t+1}], v16 offset:{512*(7-t)}")
    k(f"""s_and_b32 s42, s3, 1
s_lshl_b32 s43, s41, 16
s_and_b32 s41, s41, s40
s_cmp_eq_u32 s42, 0
s_cselect_b32 s41, s43, s41
s_waitcnt lgkmcnt(0)""")
    T = FR + 32
    for t in range(8):
        a = ACC + 4 * t
        u0, u1 = UV + 2 * t, UV + 2 * t + 1
        b = T + 8 * (t & 1)
        k(f"""v_and_b32 v{b}, s40, v{u1}
v_lshlrev_b32 v{b+1}, 16, v{u1}
v_and_b32 v{b+2}, s40, v{u0}
v_lshlrev_b32 v{b+3}, 16, v{u0}
v_mul_f32 v{b}, s41, v{b}
v_mul_f32 v{b+1}, s41, v{b+1}
v_mul_f32 v{b+2}, s41, v{b+2}
v_mul_f32 v{b+3}, s41, v{b+3}""")
        rnd_pair(k, b, b + 1, b + 4, 40)
        rnd_pair(k, b + 2, b + 3, b + 5, 40)
        rnd_pair(k, a, a + 1, b + 4, 40)
        rnd_pair(k, a + 2, a + 3, b + 5, 40)
        k(f"""v_add_f32 v{b}, v{b}, v{a}
v_add_f32 v{b+1}, v{b+1}, v{a+1}
v_add_f32 v{b+2}, v{b+2}, v{a+2}
v_add_f32 v{b+3}, v{b+3}, v{a+3}
v_cvt_pk_bf16_f32 v{b+6}, v{b}, v{b+1}
v_cvt_pk_bf16_f32 v{b+7}, v{b+2}, v{b+3}
buffer_store_dwordx2 v[{b+6}:{b+7}], v15, s[32:35], s46 offen
s_add_u32 s46, s46, 294912""")
    if k.stamps:
        k("s_waitcnt vmcnt(0)")
    k.stamp(4)
    k.stamp(5, real=True)
    k.stamp_flush()
    k.put(Lexit)
    k("s_endpgm")
    k.vgpr = FR + 132
    k.sgpr = 64
    return k


def wave_sum(k, v, t):
    k(f"""s_nop 1
v_add_f32 v{v}, v{v}, v{v} quad_perm:[1,0,3,2] row_mask:0xf bank_mask:0xf
s_nop 1
v_add_f32 v{v}, v{v}, v{v} quad_perm:[2,3,0,1] row_mask:0xf bank_mask:0xf
s_nop 1
v_add_f32 v{v}, v{v}, v{v} row_half_mirror row_mask:0xf bank_mask:0xf
s_nop 1
v_add_f32 v{v}, v{v}, v{v} row_mirror row_mask:0xf bank_mask:0xf
v_mov_b32 v{t}, v{v}
s_nop 1
v_permlane16_swap_b32 v{v}, v{t}
v_add_f32 v{v}, v{v}, v{t}
v_mov_b32 v{t}, v{v}
s_nop 1
v_permlane32_swap_b32 v{v}, v{t}
v_add_f32 v{v}, v{v}, v{t}""")


def rnd_list(k, regs, tmp, smask):
    i = 0
    while i < len(regs):
        if i + 1 < len(regs):
            rnd_pair(k, regs[i], regs[i + 1], tmp + (i // 2) % 4, smask)
            i += 2
        else:
            k(f"""v_cvt_pk_bf16_f32 v{tmp}, v{regs[i]}, v{regs[i]}
v_and_b32 v{regs[i]}, s{smask}, v{tmp}""")
            i += 1


def layernorm(k, X, O, T, R):
    s, t2, m = R, R + 1, R + 2
    k(f"v_add_f32 v{s}, v{X}, v{X+1}")
    for i in range(2, 9):
        k(f"v_add_f32 v{s}, v{s}, v{X+i}")
    wave_sum(k, s, t2)
    k(f"v_mul_f32 v{m}, s44, v{s}")
    for i in range(9):
        k(f"v_sub_f32 v{O+i}, v{X+i}, v{m}")
    k(f"v_mul_f32 v{s}, v{O}, v{O}")
    for i in range(1, 9):
        k(f"v_fmac_f32 v{s}, v{O+i}, v{O+i}")
    wave_sum(k, s, t2)
    k(f"v_mul_f32 v{s}, s44, v{s}")
    rnd_pair(k, m, s, T, 40)
    k(f"v_add_f32 v{s}, s45, v{s}")
    k(f"""v_cvt_pk_bf16_f32 v{T}, v{s}, v{s}
v_and_b32 v{s}, s40, v{T}
v_sqrt_f32 v{s}, v{s}
s_nop 0
v_cvt_pk_bf16_f32 v{T}, v{s}, v{s}
v_and_b32 v{s}, s40, v{T}
v_rcp_f32 v{t2}, v{s}""")
    for i in range(9):
        k(f"v_sub_f32 v{O+i}, v{X+i}, v{m}")
    rnd_list(k, [O + i for i in range(9)], T, 40)
    for i in range(9):
        k(f"""v_mul_f32 v{T}, v{O+i}, v{t2}
v_fma_f32 v{T+1}, -v{T}, v{s}, v{O+i}
v_fma_f32 v{O+i}, v{T+1}, v{t2}, v{T}""")
    rnd_list(k, [O + i for i in range(9)], T, 40)


def gen_k3():
    k = K("rows_kernel")
    k.kid = 2
    Lexit = k.label("exit")
    L1 = k.label("no9")
    L2 = k.label("no2nd")
    k(f"""s_cmp_ge_u32 s2, 256
s_cbranch_scc1 {Lexit}""")
    k.stamp_init()
    k(f"""
s_load_dwordx2 s[4:5], s[0:1], {ARG['q']}
s_load_dwordx2 s[10:11], s[0:1], {ARG['ws']}
s_mov_b32 s40, 0xffff0000
s_mov_b32 s44, 0x3ae38e39
s_mov_b32 s45, 0x3727c5ac
v_and_b32 v1, 63, v0
v_lshrrev_b32 v2, 6, v0
s_nop 0
v_readfirstlane_b32 s16, v2
s_waitcnt lgkmcnt(0)""")
    k.srd(20, 4, 5, SD2)
    k.srd_off(24, 10, 11, WS_Y2T, SD2)
    k.srd_off(28, 10, 11, WS_MODP, 9216)
    k.srd_off(32, 10, 11, WS_X1, SD2)
    k.srd_off(36, 10, 11, WS_H2, SD2)
    Lnz = k.label("nozero")
    k(f"""s_cmp_lg_u32 s2, 0
s_cbranch_scc1 {Lnz}""")
    k.srd_off(48, 10, 11, WS_CNT, 12288)
    k(f"""v_mov_b32 v8, 0
v_mov_b32 v9, 0
v_mov_b32 v10, 0
v_mov_b32 v11, 0
v_lshlrev_b32 v3, 4, v0
buffer_store_dwordx4 v[8:11], v3, s[48:51], 0 offen
buffer_store_dwordx4 v[8:11], v3, s[48:51], 0 offen offset:0
v_add_u32 v3, 8192, v3
buffer_store_dwordx4 v[8:11], v3, s[48:51], 0 offen""")
    k.put(Lnz)
    X = 8
    Y = 18
    MP = 28
    O = 64
    T = 74
    R = 78
    k(f"""s_mul_i32 s17, s2, 9216
s_lshl_b32 s19, s16, 10
s_add_u32 s17, s17, s19
v_lshlrev_b32 v3, 4, v1
s_mov_b32 m0, s19
s_nop 0
buffer_load_dwordx4 v3, s[24:27], s17 offen lds
s_cmp_lg_u32 s16, 0
s_cbranch_scc1 {L1}
s_add_u32 s17, s17, 8192
s_movk_i32 m0, 8192
s_nop 0
buffer_load_dwordx4 v3, s[24:27], s17 offen lds""")
    k.put(L1)
    for i in range(9):
        k(f"v_mov_b32 v{X+i}, 0")
        k(f"v_mov_b32 v{Y+i}, 0")
    k(f"""s_lshl_b32 s17, s2, 3
s_add_u32 s17, s17, s16
s_mul_i32 s17, s17, 1152
v_lshlrev_b32 v4, 1, v1
v_lshlrev_b32 v5, 4, v1
s_movk_i32 s18, 4096
s_movk_i32 s19, 8192""")
    for i in range(9):
        k(f"buffer_load_short_d16_hi v{X+i}, v4, s[20:23], s17 offen offset:{128*i}")
    for i in range(9):
        so = "0" if i < 4 else ("s18" if i < 8 else "s19")
        k(f"buffer_load_dwordx4 v[{MP+4*i}:{MP+4*i+3}], v5, s[28:31], {so} offen offset:{1024*(i%4)}")
    k(f"""v_lshl_add_u32 v6, v2, 1, v5
v_lshrrev_b32 v7, 5, v1
v_lshlrev_b32 v7, 9, v7
v_bfe_u32 v3, v1, 2, 2
v_lshl_add_u32 v7, v3, 7, v7
v_lshl_add_u32 v7, v2, 4, v7
v_bfe_u32 v3, v1, 4, 1
v_lshl_add_u32 v7, v3, 3, v7
v_and_b32 v3, 3, v1
v_lshl_add_u32 v7, v3, 1, v7
s_waitcnt vmcnt(9)""")
    k.stamp(2)
    layernorm(k, X, O, T, R)
    k("""s_waitcnt vmcnt(0)
s_barrier""")
    k.stamp(3)
    for i in range(9):
        k(f"ds_read_u16_d16_hi v{Y+i}, v6 offset:{1024*i}")
    for i in range(9):
        k(f"""v_and_b32 v{T}, s40, v{MP+4*i}
v_mul_f32 v{O+i}, v{O+i}, v{T}""")
    rnd_list(k, [O + i for i in range(9)], T, 40)
    for i in range(9):
        k(f"""v_lshlrev_b32 v{T}, 16, v{MP+4*i}
v_add_f32 v{O+i}, v{O+i}, v{T}""")
    rnd_list(k, [O + i for i in range(9)], T, 40)
    k("s_waitcnt lgkmcnt(0)")
    for i in range(9):
        k(f"v_mul_f32 v{O+i}, v{O+i}, v{Y+i}")
    rnd_list(k, [O + i for i in range(9)], T, 40)
    for i in range(9):
        k(f"""v_lshlrev_b32 v{T}, 16, v{MP+4*i+1}
v_mul_f32 v{O+i}, v{O+i}, v{T}""")
    rnd_list(k, [O + i for i in range(9)], T, 40)
    for i in range(9):
        k(f"v_add_f32 v{X+i}, v{X+i}, v{O+i}")
    rnd_list(k, [X + i for i in range(9)], T, 40)
    for i in range(9):
        k(f"buffer_store_short_d16_hi v{X+i}, v4, s[32:35], s17 offen offset:{128*i}")
    layernorm(k, X, O, T, R)
    for i in range(9):
        k(f"""v_lshlrev_b32 v{T}, 16, v{MP+4*i+2}
v_mul_f32 v{O+i}, v{O+i}, v{T}""")
    rnd_list(k, [O + i for i in range(9)], T, 40)
    for i in range(9):
        k(f"""v_and_b32 v{T}, s40, v{MP+4*i+1}
v_add_f32 v{O+i}, v{O+i}, v{T}
v_cvt_pk_bf16_f32 v{O+i}, v{O+i}, v{O+i}
ds_write_b16 v7, v{O+i} offset:{9216+1024*i}""")
    k(f"""v_lshlrev_b32 v6, 4, v0
v_lshrrev_b32 v7, 3, v0
v_lshlrev_b32 v7, 8, v7
v_and_b32 v3, 7, v0
v_lshl_add_u32 v7, v3, 4, v7
s_lshr_b32 s17, s2, 1
s_mul_i32 s17, s17, 18432
s_and_b32 s18, s2, 1
s_lshl_b32 s18, s18, 7
s_add_u32 s17, s17, s18
s_waitcnt lgkmcnt(0)
s_barrier
ds_read_b128 v[8:11], v6 offset:9216
s_cmp_lg_u32 s16, 0
s_cbranch_scc1 {L2}
ds_read_b128 v[12:15], v6 offset:{9216+8192}
s_add_u32 s18, s17, 16384
s_waitcnt lgkmcnt(0)
buffer_store_dwordx4 v[12:15], v7, s[36:39], s18 offen""")
    k.put(L2)
    k(f"""s_waitcnt lgkmcnt(0)
buffer_store_dwordx4 v[8:11], v7, s[36:39], s17 offen""")
    k.stamp(6)
    if k.stamps:
        k("s_waitcnt vmcnt(0)")
    k.stamp(4)
    k.stamp(5, real=True)
    k.stamp_flush()
    k.put(Lexit)
    k("s_endpgm")
    k.vgpr = 84
    k.sgpr = 56
    return k


STG = 36864
NBUF = 4
G_LDS = STG * NBUF
EXACT_GU = os.environ.get("EXACT_GU", "0") == "1"


def gen_gemm(which):
    g1 = which == 1
    k = K("gemm1_kernel" if g1 else "gemm2_kernel")
    Lexit = k.label("exit")
    NT = 18 if g1 else 9
    NACC = NT * 4
    DAH = 4
    RING = 6
    NV = min(NACC, 56)
    def acc(ti):
        return vr(32 + 4 * ti, 4) if ti < NV else ar(4 * (ti - NV), 4)
    AB = 4 * (NACC - NV)
    NXS = 2 if g1 else 4
    XR = AB
    WRG = AB + 32 * NXS
    def xfrag(xs, kk, st):
        return ar(XR + 32 * xs + 16 * kk + 4 * st, 4)
    def wfrag(slot, half=None):
        if half is None:
            return ar(WRG + 4 * slot, 4)
        return ar(WRG + 4 * slot + 2 * half, 2)
    DUM = WRG + 4 * RING
    k.agpr = DUM + 4
    k.vgpr = 32 + 4 * NV
    k.sgpr = 64
    VX = 4
    VD = 8
    VB = 12
    k.kid = 3 if g1 else 4
    k(f"""s_cmp_ge_u32 s2, 256
s_cbranch_scc1 {Lexit}""")
    k.stamp_init()
    k(f"""s_load_dwordx4 s[4:7], s[0:1], {ARG['wg']}
s_load_dwordx2 s[8:9], s[0:1], {ARG['wd']}
s_load_dwordx2 s[10:11], s[0:1], {ARG['ws']}
v_and_b32 v1, 63, v0
v_lshrrev_b32 v2, 6, v0
s_and_b32 s16, s2, 7
s_lshr_b32 s17, s2, 3
v_readfirstlane_b32 s18, v2
s_nop 3
s_lshr_b32 s19, s18, 1
s_and_b32 s20, s18, 1""")
    PITCH = F * 2 if g1 else D * 2
    XST = 18432 if g1 else 147456
    if g1:
        k(f"""s_and_b32 s21, s17, 3
s_lshl_b32 s16, s16, 2
s_add_u32 s21, s21, s16
s_lshr_b32 s22, s17, 2
s_lshl_b32 s23, s22, 4
s_lshl_b32 s36, s18, 2
s_add_u32 s23, s23, s36
s_mul_i32 s36, s23, {XST}
s_mov_b32 s38, 0""")
    else:
        k(f"""s_and_b32 s21, s17, 3
s_and_b32 s39, s16, 3
s_lshr_b32 s16, s16, 2
s_lshl_b32 s16, s16, 3
s_lshr_b32 s22, s17, 2
s_add_u32 s22, s22, s16
s_lshl_b32 s23, s22, 3
s_lshl_b32 s36, s20, 2
s_add_u32 s23, s23, s36
s_mul_i32 s36, s23, {XST}
s_lshl_b32 s37, s39, 1
s_add_u32 s37, s37, s19
s_mul_i32 s38, s37, {18*1024}
s_add_u32 s36, s36, s38
s_mul_i32 s38, s37, {576*PITCH}""")
    k(f"""s_lshr_b32 s52, s21, 2
s_and_b32 s53, s21, 3
s_mul_i32 s37, s52, 1152
s_add_u32 s38, s38, s37
s_mul_i32 s37, s20, {32*PITCH}
s_add_u32 s38, s38, s37
s_lshl_b32 s37, s53, 8
s_add_u32 s40, s38, s37
s_lshl_b32 s37, s53, 5
s_add_u32 s41, s38, s37
s_add_u32 s41, s41, 1024
s_movk_i32 s37, {PITCH}""")
    k(f"v_lshl_add_u32 v{VX}, v1, 4, s36")
    for st in range(1, 4):
        k(f"v_add_u32 v{VX+st}, {XST}, v{VX+st-1}")
    k(f"""v_lshrrev_b32 v22, 4, v1
v_and_b32 v23, 15, v1
v_mul_lo_u32 v24, v22, s37
v_add_u32 v24, s40, v24
v_lshlrev_b32 v25, 1, v22
v_xor_b32 v25, v23, v25
v_lshl_add_u32 v{VD}, v25, 4, v24
v_xor_b32 v25, 8, v25
v_lshl_add_u32 v{VD+1}, v25, 4, v24
v_add_u32 v{VD+1}, {4*PITCH}, v{VD+1}
v_lshrrev_b32 v22, 1, v1
v_mul_lo_u32 v24, v22, s37
v_and_b32 v23, 1, v1
v_lshl_add_u32 v24, v23, 4, v24
v_add_u32 v{VD+2}, s41, v24""")
    k(f"""s_mul_i32 s42, s19, 18432
s_lshl_b32 s36, s20, 10
s_add_u32 s43, s42, s36
s_add_u32 s43, s43, 16384
s_lshl_b32 s36, s20, 13
s_add_u32 s42, s42, s36""")
    k(f"""v_lshrrev_b32 v22, 2, v1
v_and_b32 v23, 3, v1
v_lshlrev_b32 v23, 3, v23
v_lshl_add_u32 v24, v22, 8, v23
v_and_b32 v25, 7, v22""")
    if not g1:
        k(f"""s_mul_i32 s36, s19, 18432
v_add_u32 v24, s36, v24
v_add_u32 v23, s36, v23""")
    for t in range(8):
        k(f"""v_xor_b32 v26, {t}, v25
v_lshl_add_u32 v{VB+t}, v26, 5, v24""")
    k(f"""v_lshl_add_u32 v{VB+8}, v22, 5, v23
v_add_u32 v{VB+8}, 16384, v{VB+8}""")
    k("s_waitcnt lgkmcnt(0)")
    k.stamp(8)
    if g1:
        k(f"""s_cmp_eq_u32 s19, 0
s_cselect_b32 s12, s4, s6
s_cselect_b32 s13, s5, s7""")
        k.srd(24, 12, 13, D * F * 2)
        k.srd_off(28, 10, 11, WS_H2, SD2)
        k.srd_off(32, 10, 11, WS_HM, HM_BYTES)
        k.srd(56, 8, 9, D * F * 2)
        k(f"""s_lshl_b32 s36, s2, 12
v_lshl_add_u32 v21, v0, 4, s36
s_mov_b32 s60, 0""")
    else:
        k.srd(24, 8, 9, D * F * 2)
        k.srd_off(28, 10, 11, WS_HM, HM_BYTES)
        k.srd_off(32, 10, 11, WS_PART, 4 * PART1)

    def dma_list():
        out = []
        for n in range(8):
            out.append(f"""s_add_u32 s54, s45, s42
s_add_u32 m0, s54, {1024*n}
s_add_u32 s55, s44, {(n>>1)*8*PITCH}
buffer_load_dwordx4 v{VD+(n&1)}, s[24:27], s55 offen lds""")
        out.append(f"""s_add_u32 m0, s45, s43
s_nop 0
buffer_load_dwordx4 v{VD+2}, s[24:27], s44 offen lds
s_add_u32 s44, s44, {64*PITCH}
s_add_u32 s45, s45, {STG}
s_cmp_ge_u32 s45, {STG*NBUF}
s_cselect_b32 s45, 0, s45""")
        return out
    def xload_list(xs):
        out = []
        for kk in range(2):
            for st in range(4):
                out.append(f"buffer_load_dwordx4 {xfrag(xs, kk, st)}, v{VX+st}, s[28:31], s46 offen offset:{1024*kk}")
        out[-1] += "\ns_add_u32 s46, s46, 2048"
        return out
    k(f"""s_mov_b32 s44, 0
s_mov_b32 s45, 0
s_mov_b32 s46, 0""")
    zl = []
    for ti in range(NACC):
        for r in range(4):
            if ti < NV:
                zl.append(f"v_mov_b32 v{32+4*ti+r}, 0")
            else:
                zl.append(f"v_accvgpr_write_b32 a{4*(ti-NV)+r}, 0")
    if g1:
        pl = dma_list() + xload_list(0) + dma_list()
        W0 = 9
    else:
        pl = dma_list() + xload_list(0) + xload_list(1) + dma_list() + xload_list(2)
        W0 = 25
    per = (len(zl) + len(pl) - 1) // len(pl)
    k.stamp(9)
    for i, ln in enumerate(pl):
        k(ln)
        if i >= 8:
            for z in range(per + 6):
                if zl:
                    k(zl.pop(0))
    while zl:
        k(zl.pop(0))
    NF = 2 * NT

    def frag_info(f):
        kk = f // NT
        r = f % NT
        return kk, r % 9, r // 9

    def tr_reads(f, slot):
        kk, t, m = frag_info(f)
        if t < 8:
            off = m * 18432 + kk * 8192
            hs = 4096
        else:
            off = m * 18432 + kk * 1024
            hs = 512
        return [f"ds_read_b64_tr_b16 {wfrag(slot, 0)}, v{VB+t} offset:{off}",
                f"ds_read_b64_tr_b16 {wfrag(slot, 1)}, v{VB+t} offset:{off + hs}"]

    k.stamp(6)
    k(f"""s_waitcnt vmcnt({W0})
s_barrier""")
    k.stamp(2)
    if k.stamps:
        k("s_waitcnt lgkmcnt(0)")
    assert NF % RING == 0
    for f in range(DAH):
        for ln in tr_reads(f, f % RING):
            k(ln)

    def stage(xs, last):
        if last:
            vm = []
        elif g1:
            vm = xload_list(1 - xs) + dma_list()
            if PFW:
                vm.append(f"buffer_load_dwordx4 {ar(DUM, 4)}, v21, s[56:59], s60 offen\ns_add_u32 s60, s60, 0x100000")
        else:
            vm = dma_list() + xload_list((xs + NXS - 1) % NXS)
        nvm = len(vm)
        WB = nvm if g1 else nvm + 8
        PB = NF - DAH
        slots = {}
        for i in range(nvm):
            slots.setdefault(i * PB // nvm, []).append(vm[i])
        if not last:
            k(f"""s_add_u32 s48, s48, {STG}
s_cmp_ge_u32 s48, {STG*NBUF}
s_cselect_b32 s49, {(-STG*(NBUF-1)) & 0xffffffff:#x}, s50
s_cselect_b32 s48, 0, s48""")
        for f in range(NF):
            kk, t, m = frag_info(f)
            fa = f + DAH
            if f == PB and not last:
                k(f"s_waitcnt vmcnt({WB})")
                k("s_barrier")
            rd = []
            upd = None
            if fa < NF:
                rd = tr_reads(fa, fa % RING)
                if fa >= NF - 9 and not last:
                    upd = f"v_add_u32 v{VB + frag_info(fa)[1]}, s49, v{VB + frag_info(fa)[1]}"
            elif not last:
                rd = tr_reads(fa - NF, fa % RING)
            rem = min(DAH - 1, (NF - 1 - f) if last else DAH - 1)
            k(f"s_waitcnt lgkmcnt({2*rem})")
            ti_base = (m * 9 + t) * 4
            extra = list(slots.get(f, []))
            for st in range(4):
                k(f"v_mfma_f32_16x16x32_bf16 {acc(ti_base+st)}, {wfrag(f % RING)}, {xfrag(xs, kk, st)}, {acc(ti_base+st)}")
                if st == 0 and rd:
                    k(rd[0])
                if st == 1 and rd:
                    k(rd[1])
                    if upd:
                        k(upd)
                if st >= 2 and extra:
                    k(extra.pop(0))
            while extra:
                k(extra.pop(0))
        if not last and g1:
            k(f"s_waitcnt vmcnt({nvm - 8})")

    k(f"""s_mov_b32 s48, 0
s_mov_b32 s50, {STG}
s_mov_b32 s51, 0""")
    Lloop = k.label("loop")
    k.put(Lloop)
    for xs in range(NXS):
        stage(xs, False)
    k(f"""s_add_u32 s51, s51, 1
s_cmp_lt_u32 s51, {8 // NXS}
s_cbranch_scc1 {Lloop}""")
    stage(0, True)
    k.stamp(3)
    k("s_nop 7")
    k("s_nop 7")

    def accreg(ti, r, tmp):
        if ti < NV:
            return f"v{32+4*ti+r}"
        k(f"v_accvgpr_read_b32 v{tmp}, a{4*(ti-NV)+r}")
        return f"v{tmp}"

    if g1:
        k(f"""s_mul_i32 s36, s52, 18
s_lshl_b32 s37, s53, 2
s_add_u32 s38, s36, s37
s_lshl_b32 s38, s38, 10
s_lshr_b32 s37, s53, 1
s_add_u32 s39, s36, s37
s_add_u32 s39, s39, 16
s_lshl_b32 s39, s39, 10
s_and_b32 s37, s53, 1
s_lshl_b32 s37, s37, 3
s_add_u32 s39, s39, s37
s_mul_i32 s36, s23, 147456
s_mov_b32 s40, 0xffff0000
v_lshl_add_u32 v{VX}, v1, 4, s36""")
        for st in range(1, 4):
            k(f"v_add_u32 v{VX+st}, 147456, v{VX+st-1}")
        cnt = 0
        for st in range(4):
            for pr in range(5):
                tiles = [2 * pr, 2 * pr + 1] if pr < 4 else [8]
                ob = 8 + 4 * (cnt % 2)
                cnt += 1
                for hi, t in enumerate(tiles):
                    tg = t * 4 + st
                    tu = (9 + t) * 4 + st
                    gn = [accreg(tg, r, 16 + r) for r in range(4)]
                    un = [accreg(tu, r, 20 + r) for r in range(4)]
                    if EXACT_GU:
                        for h2 in range(2):
                            k(f"""v_cvt_pk_bf16_f32 v28, {gn[2*h2]}, {gn[2*h2+1]}
v_cvt_pk_bf16_f32 v29, {un[2*h2]}, {un[2*h2+1]}
v_pk_max_i16 v28, v28, 0
v_lshlrev_b32 v30, 16, v29
v_and_b32 v31, s40, v29
v_lshlrev_b32 v{24+2*h2}, 16, v28
v_and_b32 v{25+2*h2}, s40, v28
v_mul_f32 v{24+2*h2}, v{24+2*h2}, v30
v_mul_f32 v{25+2*h2}, v{25+2*h2}, v31""")
                    else:
                        for r in range(4):
                            k(f"v_max_f32 v{24+r}, 0, {gn[r]}")
                            k(f"v_mul_f32 v{24+r}, v{24+r}, {un[r]}")
                    k(f"""v_cvt_pk_bf16_f32 v{ob+2*hi}, v24, v25
v_cvt_pk_bf16_f32 v{ob+2*hi+1}, v26, v27""")
                if pr < 4:
                    k(f"buffer_store_dwordx4 v[{ob}:{ob+3}], v{VX+st}, s[32:35], s38 offen offset:{1024*pr}")
                else:
                    k(f"buffer_store_dwordx2 v[{ob}:{ob+1}], v{VX+st}, s[32:35], s39 offen")
        k.stamp(7)
        if k.stamps:
            k("s_waitcnt vmcnt(0)")
        k.stamp(4)
        k.stamp(5, real=True)
        k.stamp_flush()
    else:
        Lk1 = k.label("kh1")
        k(f"""s_waitcnt vmcnt(0)
s_barrier
s_mul_i32 s36, s18, 18432
v_lshl_add_u32 v22, v1, 4, s36
s_xor_b32 s37, s18, 2
s_mul_i32 s37, s37, 18432
v_lshl_add_u32 v23, v1, 4, s37
s_lshl_b32 s36, s19, 1
s_add_u32 s36, s36, s23
s_mul_i32 s36, s36, 36
s_lshl_b32 s36, s36, 10
s_mul_i32 s37, s39, {PART1}
s_add_u32 s36, s36, s37
v_lshl_add_u32 v24, v1, 4, s36
v_add_u32 v25, {36*1024}, v24
s_lshl_b32 s36, s53, 13
s_add_u32 s37, s36, 4096
s_lshl_b32 s38, s53, 10
s_add_u32 s38, s38, 32768
s_cmp_eq_u32 s19, 1
s_cbranch_scc1 {Lk1}""")
        for kh in range(2):
            if kh == 1:
                k.put(Lk1)
            keep = [2 * kh, 2 * kh + 1]
            send = [2 - 2 * kh, 3 - 2 * kh]
            for i, st in enumerate(send):
                for t in range(9):
                    k(f"ds_write_b128 v22, {acc(t*4+st)} offset:{(i*9+t)*1024}")
            k("""s_waitcnt lgkmcnt(0)
s_barrier""")
            for i, st in enumerate(send):
                for t in range(9):
                    k(f"ds_read_b128 {acc(t*4+st)}, v23 offset:{(i*9+t)*1024}")
            n = 18
            for i in range(2):
                for t in range(9):
                    n -= 1
                    k(f"s_waitcnt lgkmcnt({min(n,15)})")
                    a = 32 + 4 * (t * 4 + keep[i])
                    b = 32 + 4 * (t * 4 + send[i])
                    k(f"""v_pk_add_f32 v[{a}:{a+1}], v[{a}:{a+1}], v[{b}:{b+1}]
v_pk_add_f32 v[{a+2}:{a+3}], v[{a+2}:{a+3}], v[{b+2}:{b+3}]""")
                    so = "s36" if t < 4 else ("s37" if t < 8 else "s38")
                    k(f"buffer_store_dwordx4 v[{a}:{a+3}], v{24+i}, s[32:35], {so} offen offset:{1024*(t%4)}")
            k.stamp(7)
            if k.stamps:
                k("s_waitcnt vmcnt(0)")
            k.stamp(4)
            k.stamp(5, real=True)
            k.stamp_flush()
            if kh == 0:
                k("s_endpgm")
    k.put(Lexit)
    k("s_endpgm")
    return k


def gen_k6():
    k = K("final_kernel")
    k.kid = 4 if os.environ.get("FUSED", "1") == "1" else 5
    Lexit = k.label("exit")
    k(f"""s_cmp_ge_u32 s2, 1152
s_cbranch_scc1 {Lexit}""")
    k.stamp_init()
    k(f"""
s_load_dwordx2 s[4:5], s[0:1], {ARG['out']}
s_load_dwordx2 s[10:11], s[0:1], {ARG['ws']}
s_mov_b32 s40, 0xffff0000
v_and_b32 v1, 63, v0
v_lshrrev_b32 v2, 6, v0
s_lshl_b32 s16, s2, 2
v_readfirstlane_b32 s17, v2
s_nop 3
s_add_u32 s16, s16, s17
s_mov_b32 s18, 0x71c71c8
s_mul_hi_u32 s17, s16, s18
s_mul_i32 s18, s17, 36
s_sub_u32 s18, s16, s18
s_waitcnt lgkmcnt(0)""")
    k.srd(20, 4, 5, SD2)
    k.srd_off(24, 10, 11, WS_PART, 4 * PART1)
    k.srd_off(28, 10, 11, WS_X1, SD2)
    k.srd_off(32, 10, 11, WS_GBV, D * 4)
    k(f"""s_lshl_b32 s19, s16, 10
v_lshl_add_u32 v3, v1, 4, s19
s_mov_b32 s36, {PART1}
s_mov_b32 s37, {2*PART1}
s_mov_b32 s38, {3*PART1}
buffer_load_dwordx4 v[8:11], v3, s[24:27], 0 offen
buffer_load_dwordx4 v[12:15], v3, s[24:27], s36 offen
buffer_load_dwordx4 v[16:19], v3, s[24:27], s37 offen
buffer_load_dwordx4 v[20:23], v3, s[24:27], s38 offen
v_and_b32 v4, 15, v1
v_lshrrev_b32 v5, 4, v1
s_lshl_b32 s19, s17, 4
v_add_u32 v4, s19, v4
s_movk_i32 s19, 1152
v_mul_lo_u32 v4, v4, s19
s_lshl_b32 s19, s18, 5
v_lshl_add_u32 v6, v5, 3, s19
v_add_u32 v4, v4, v6
v_lshlrev_b32 v6, 1, v6
buffer_load_dwordx2 v[24:25], v4, s[28:31], 0 offen
buffer_load_dwordx4 v[28:31], v6, s[32:35], 0 offen
s_waitcnt vmcnt(4)
v_pk_add_f32 v[8:9], v[8:9], v[12:13]
v_pk_add_f32 v[10:11], v[10:11], v[14:15]
s_waitcnt vmcnt(2)
v_pk_add_f32 v[16:17], v[16:17], v[20:21]
v_pk_add_f32 v[18:19], v[18:19], v[22:23]
v_pk_add_f32 v[8:9], v[8:9], v[16:17]
v_pk_add_f32 v[10:11], v[10:11], v[18:19]""")
    rnd_pair(k, 8, 9, 12, 40)
    rnd_pair(k, 10, 11, 13, 40)
    k("""s_waitcnt vmcnt(0)
v_pk_mul_f32 v[8:9], v[8:9], v[28:29]
v_pk_mul_f32 v[10:11], v[10:11], v[30:31]""")
    rnd_pair(k, 8, 9, 12, 40)
    rnd_pair(k, 10, 11, 13, 40)
    k("""v_lshlrev_b32 v16, 16, v24
v_and_b32 v17, s40, v24
v_lshlrev_b32 v18, 16, v25
v_and_b32 v19, s40, v25
v_pk_add_f32 v[8:9], v[8:9], v[16:17]
v_pk_add_f32 v[10:11], v[10:11], v[18:19]
v_cvt_pk_bf16_f32 v12, v8, v9
v_cvt_pk_bf16_f32 v13, v10, v11
buffer_store_dwordx2 v[12:13], v4, s[20:23], 0 offen""")
    k.stamp(3)
    if k.stamps:
        k("s_waitcnt vmcnt(0)")
    k.stamp(4)
    k.stamp(5, real=True)
    k.stamp_flush()
    k.put(Lexit)
    k("s_endpgm")
    k.vgpr = 32
    k.sgpr = 48
    return k


HEADER = open("adaLN_cond__ssm_conv_h3__glu_gated_reglu__prompt.s.ref").read().split("; Override launch geometry")[0]


def build(path):
    import gen_mlp
    if os.environ.get("FUSED", "1") == "1":
        ks = [(gen_k1(), 342, 256, 16384), (gen_k2(), 576, 64, K2_LDS), (gen_k3(), 256, 512, 18432),
              (gen_mlp.gen_mlp(), 256, 256, gen_mlp.M_LDS), (gen_k6(), 1152, 256, 0)]
    else:
        ks = [(gen_k1(), 342, 256, 16384), (gen_k2(), 576, 64, K2_LDS), (gen_k3(), 256, 512, 18432),
              (gen_gemm(1), 256, 256, G_LDS), (gen_gemm(2), 256, 256, G_LDS), (gen_k6(), 1152, 256, 0)]
    out = HEADER
    for kk, g, b, lds in ks:
        out += f"; @launch kernel={kk.name} grid=({g},1,1) block=({b},1,1) lds={lds}\n"
    out += '.amdgcn_target "amdgcn-amd-amdhsa--gfx950"\n.text\n'
    for kk, *_ in ks:
        out += kk.text()
    out += '.section .rodata,"a"\n'
    for kk, *_ in ks:
        out += kk.desc()
    open(path, "w").write(out)


if __name__ == "__main__":
    build(sys.argv[1] if len(sys.argv) > 1 else "adaLN_cond__ssm_conv_h3__glu_gated_reglu__prompt.s")
```

```python
import sys
from asmlib import *

import os
K.stamps = os.environ.get("STAMP", "0") == "1"
S, D, F = 2048, 576, 4608
RS = 4352
WS_UR0 = 0x0
WS_UR1 = 0x280000
WS_Y2T = 0x500000
WS_X1 = 0x780000
WS_H2 = 0xA00000
WS_MODP = 0xC80000
WS_GBV = 0xC84000
WS_CNT = 0xC88000
WS_HM = 0xD00000
WS_PART = 0x2000000
SD2 = S * D * 2
HM_BYTES = S * F * 2
PART1 = S * D * 4

ARG = dict(q=0, k=8, v=16, shift=24, ssmk=32, ssmD=40, bx=48, wg=56, wu=64, wd=72, c=80, wmod=88, out=96, dbg=104, ws=112)


def rnd_pair(k, lo, hi, tmp, smask):
    k(f"""v_cvt_pk_bf16_f32 v{tmp}, v{lo}, v{hi}
v_lshlrev_b32 v{lo}, 16, v{tmp}
v_and_b32 v{hi}, s{smask}, v{tmp}""")


NWARM = int(os.environ.get('NWARM', '8'))


def gen_k1():
    k = K("prep_kernel")
    k.kid = 0
    Lexit = k.label("exit")
    Lmod = k.label("mod")
    Lwarm = k.label("warm")
    k(f"""s_cmp_ge_u32 s2, {342 + NWARM}
s_cbranch_scc1 {Lexit}
s_cmp_lt_u32 s2, {NWARM}
s_cbranch_scc1 {Lwarm}
s_sub_u32 s2, s2, {NWARM}""")
    k.stamp_init()
    k(f"""
s_load_dwordx4 s[4:7], s[0:1], {ARG['k']}
s_load_dwordx2 s[8:9], s[0:1], {ARG['shift']}
s_load_dwordx4 s[12:15], s[0:1], {ARG['c']}
s_load_dwordx2 s[10:11], s[0:1], {ARG['ws']}
s_mov_b32 s40, 0xffff0000
v_and_b32 v1, 7, v0
v_lshrrev_b32 v2, 3, v0
s_cmp_ge_u32 s2, 288
s_cbranch_scc1 {Lmod}
s_lshr_b32 s16, s2, 5
s_and_b32 s17, s2, 31
s_waitcnt lgkmcnt(0)""")
    k.srd(20, 4, 5, SD2)
    k.srd(24, 6, 7, SD2)
    k.srd(28, 8, 9, D * 8)
    k.srd(32, 10, 11, WS_Y2T)
    k(f"""s_lshl_b32 s18, s17, 6
v_lshl_add_u32 v3, v2, 1, s18
s_movk_i32 s19, 1152
v_mul_lo_u32 v3, v3, s19
s_lshl_b32 s18, s16, 7
v_lshl_add_u32 v4, v1, 4, s18
v_add_u32 v3, v3, v4""")
    A0 = 4
    for r in range(6):
        off = (r - 4) * 1152
        k(f"v_add_u32 v{A0+r}, {off & 0xffffffff:#x}, v3")
    KR = 12
    VR = 36
    WR = 48
    for r in range(6):
        k(f"buffer_load_dwordx4 v[{KR+4*r}:{KR+4*r+3}], v{A0+r}, s[20:23], 0 offen")
    for r in range(3):
        k(f"buffer_load_dwordx4 v[{VR+4*r}:{VR+4*r+3}], v{A0+3+r}, s[24:27], 0 offen")
    k(f"""s_lshl_b32 s18, s16, 9
v_lshl_add_u32 v10, v1, 6, s18""")
    for i in range(4):
        k(f"buffer_load_dwordx4 v[{WR+4*i}:{WR+4*i+3}], v10, s[28:31], 0 offen offset:{16*i}")
    k(f"""v_sub_u32 v10, 31, v2
v_lshlrev_b32 v11, 2, v1
v_xor_b32 v10, v10, v11
v_lshlrev_b32 v10, 2, v10
v_lshl_add_u32 v10, v1, 10, v10""")
    WF = 64
    KF = 96
    VF = 144
    U = 168
    P = 192
    k("s_waitcnt vmcnt(0)")
    k.stamp(2)
    for j in range(8):
        k(f"""v_lshlrev_b32 v{WF+0*8+j}, 16, v{WR+2*j}
v_and_b32 v{WF+1*8+j}, s40, v{WR+2*j}
v_lshlrev_b32 v{WF+2*8+j}, 16, v{WR+2*j+1}
v_and_b32 v{WF+3*8+j}, s40, v{WR+2*j+1}""")
    for r in range(6):
        for q in range(4):
            k(f"""v_lshlrev_b32 v{KF+8*r+2*q}, 16, v{KR+4*r+q}
v_and_b32 v{KF+8*r+2*q+1}, s40, v{KR+4*r+q}""")
    for r in range(3):
        for q in range(4):
            k(f"""v_lshlrev_b32 v{VF+8*r+2*q}, 16, v{VR+4*r+q}
v_and_b32 v{VF+8*r+2*q+1}, s40, v{VR+4*r+q}""")
    for o in range(3):
        for q in range(4):
            for t in range(4):
                k(f"v_pk_mul_f32 v[{P+2*t}:{P+2*t+1}], v[{KF+8*(o+t)+2*q}:{KF+8*(o+t)+2*q+1}], v[{WF+8*(3-t)+2*q}:{WF+8*(3-t)+2*q+1}]")
            for t in range(4):
                rnd_pair(k, P + 2 * t, P + 2 * t + 1, 200 + t, 40)
            for t in range(1, 4):
                k(f"v_pk_add_f32 v[{P}:{P+1}], v[{P}:{P+1}], v[{P+2*t}:{P+2*t+1}]")
                rnd_pair(k, P, P + 1, 200, 40)
            k(f"v_pk_mul_f32 v[{U+8*o+2*q}:{U+8*o+2*q+1}], v[{P}:{P+1}], v[{VF+8*o+2*q}:{VF+8*o+2*q+1}]")
    for j in range(8):
        k(f"""v_cvt_pk_bf16_f32 v{P+(j&1)*2}, v{U+16+j}, v{U+8+j}
v_cvt_pk_bf16_f32 v{P+(j&1)*2+1}, v{U+8+j}, v{U+j}
ds_write_b32 v10, v{P+(j&1)*2} offset:{j*128}
ds_write_b32 v10, v{P+(j&1)*2+1} offset:{8192+j*128}""")
    k(f"""v_lshrrev_b32 v4, 3, v0
v_and_b32 v5, 7, v0
v_lshrrev_b32 v6, 3, v4
v_xor_b32 v7, v5, v6
v_lshlrev_b32 v7, 4, v7
v_lshl_add_u32 v7, v4, 7, v7
v_xor_b32 v8, 64, v7
v_add_u32 v8, 4096, v8
s_mul_i32 s18, s16, {64*RS}
s_lshl_b32 s19, s17, 7
s_sub_u32 s18, s18, s19
s_add_u32 s18, s18, 3968
v_mul_u32_u24 v9, {RS}, v4
v_lshl_add_u32 v9, v5, 4, v9
v_add_u32 v9, s18, v9
v_add_u32 v11, {32*RS}, v9
s_waitcnt lgkmcnt(0)
s_barrier
ds_read_b128 v[12:15], v7
ds_read_b128 v[16:19], v8
ds_read_b128 v[20:23], v7 offset:8192
ds_read_b128 v[24:27], v8 offset:8192
s_mov_b32 s18, {WS_UR1}
s_waitcnt lgkmcnt(3)
buffer_store_dwordx4 v[12:15], v9, s[32:35], 0 offen
s_waitcnt lgkmcnt(2)
buffer_store_dwordx4 v[16:19], v11, s[32:35], 0 offen
s_waitcnt lgkmcnt(1)
buffer_store_dwordx4 v[20:23], v9, s[32:35], s18 offen
s_waitcnt lgkmcnt(0)
buffer_store_dwordx4 v[24:27], v11, s[32:35], s18 offen""")
    k.stamp(3)
    if k.stamps:
        k("s_waitcnt vmcnt(0)")
    k.stamp(4)
    k.stamp(5, real=True)
    k.stamp_flush()
    k("s_endpgm")
    k.put(Lmod)
    k(f"""s_sub_u32 s16, s2, 288
s_waitcnt lgkmcnt(0)""")
    k.srd(20, 12, 13, D * 2)
    k.srd(24, 14, 15, D * 6 * D * 2)
    k.srd_off(28, 10, 11, WS_MODP, 0x8000)
    WL = 32
    CL = 8
    k(f"""s_movk_i32 s19, 6912
v_mul_lo_u32 v3, v2, s19
s_lshl_b32 s18, s16, 7
v_lshl_add_u32 v4, v1, 4, s18
v_add_u32 v3, v3, v4
v_lshlrev_b32 v4, 1, v2""")
    for i in range(18):
        k(f"v_mov_b32 v{CL+i}, 0")
    for i in range(18):
        k(f"buffer_load_short_d16_hi v{CL+i}, v4, s[20:23], 0 offen offset:{64*i}")
    k("s_mov_b32 s18, 0")
    for i in range(18):
        k(f"buffer_load_dwordx4 v[{WL+4*i}:{WL+4*i+3}], v3, s[24:27], s18 offen")
        if i < 17:
            k(f"s_add_u32 s18, s18, {32*6912}")
    k("s_mov_b32 s19, 0xbfb8aa3b")
    k("s_waitcnt vmcnt(18)")
    for i in range(18):
        k(f"v_mul_f32 v{104+i}, s19, v{CL+i}")
    for i in range(18):
        k(f"v_exp_f32 v{104+i}, v{104+i}")
    for i in range(18):
        k(f"v_add_f32 v{104+i}, 1.0, v{104+i}")
    for i in range(18):
        k(f"v_rcp_f32 v{104+i}, v{104+i}")
    k("s_nop 0")
    for i in range(18):
        k(f"v_mul_f32 v{CL+i}, v{CL+i}, v{104+i}")
    for i in range(0, 18, 2):
        rnd_pair(k, CL + i, CL + i + 1, 104 + i, 40)
    ACC = 124
    for j in range(8):
        k(f"v_mov_b32 v{ACC+j}, 0")
    for i in range(18):
        k(f"s_waitcnt vmcnt({17-i})")
        for q in range(4):
            k(f"""v_lshlrev_b32 v{104+2*q}, 16, v{WL+4*i+q}
v_and_b32 v{104+2*q+1}, s40, v{WL+4*i+q}""")
        for j in range(8):
            k(f"v_fmac_f32 v{ACC+j}, v{CL+i}, v{104+j}")
    k(f"""v_lshlrev_b32 v4, 8, v2
v_lshl_add_u32 v4, v1, 5, v4
ds_write_b128 v4, v[{ACC}:{ACC+3}]
ds_write_b128 v4, v[{ACC+4}:{ACC+7}] offset:16
v_lshlrev_b32 v5, 2, v0
s_waitcnt lgkmcnt(0)
s_barrier
v_cmp_gt_u32 vcc, 64, v0
s_and_saveexec_b64 s[36:37], vcc
s_cbranch_execz {Lexit}""")
    for i in range(32):
        k(f"ds_read_b32 v{32+i}, v5 offset:{256*i}")
    k("s_waitcnt lgkmcnt(0)")
    for st in (16, 8, 4, 2, 1):
        for i in range(st):
            k(f"v_add_f32 v{32+i}, v{32+i}, v{32+i+st}")
    k(f"""s_mul_i32 s17, s16, 7282
s_lshr_b32 s17, s17, 16
s_mul_i32 s18, s17, 9
s_sub_u32 s18, s16, s18
v_cvt_pk_bf16_f32 v33, v32, v32
v_and_b32 v32, s40, v33
v_add_f32 v34, 1.0, v32
v_cvt_pk_bf16_f32 v34, v34, v34
s_cmp_eq_u32 s17, 1
s_cselect_b32 s19, 1, 0
s_cmp_eq_u32 s17, 4
s_cselect_b32 s19, 1, s19
s_cmp_eq_u32 s19, 1
s_cselect_b64 vcc, -1, 0
s_lshl_b32 s18, s18, 6
v_add_u32 v6, s18, v0
v_cndmask_b32 v33, v33, v34, vcc
v_lshlrev_b32 v7, 4, v6
s_lshl_b32 s19, s17, 1
buffer_store_short v33, v7, s[28:31], s19 offen
s_cmp_lg_u32 s17, 5
s_cbranch_scc1 {Lexit}
v_lshlrev_b32 v7, 2, v6
s_movk_i32 s19, 0x4000
buffer_store_dword v32, v7, s[28:31], s19 offen""")
    k("s_endpgm")
    k.put(Lwarm)
    k(f"""s_getpc_b64 s[4:5]
s_add_u32 s4, s4, code_begin@rel32@lo+4
s_addc_u32 s5, s5, code_begin@rel32@hi+12
s_getpc_b64 s[6:7]
s_add_u32 s6, s6, desc_begin@rel32@lo+4
s_addc_u32 s7, s7, desc_begin@rel32@hi+12
v_lshlrev_b32 v1, 7, v0
v_min_u32 v2, code_end-code_begin-4, v1
v_add_u32 v3, 32768, v1
v_min_u32 v3, code_end-code_begin-4, v3
v_and_b32 v4, 7, v0
v_lshlrev_b32 v4, 6, v4
v_min_u32 v4, desc_end-desc_begin-4, v4
global_load_dword v5, v2, s[4:5]
global_load_dword v6, v3, s[4:5]
global_load_dword v7, v4, s[6:7]
s_waitcnt vmcnt(0)""")
    k.put(Lexit)
    k("s_endpgm")
    k.vgpr = 208
    k.sgpr = 48
    return k


SU = 4160
SK = 4640
KB = 4 * SU
K2_LDS = KB + 2 * SK
PFW = os.environ.get('PFW', '1') == '1'


def gen_k2():
    k = K("conv_kernel")
    k.kid = 1
    Lexit = k.label("exit")
    k(f"""s_cmp_ge_u32 s2, 576
s_cbranch_scc1 {Lexit}""")
    k.stamp_init()
    k(f"""
s_and_b32 s3, s2, 7
s_mul_i32 s3, s3, 72
s_lshr_b32 s16, s2, 3
s_add_u32 s3, s3, s16
s_load_dwordx4 s[4:7], s[0:1], {ARG['ssmk']}
s_load_dwordx2 s[10:11], s[0:1], {ARG['ws']}
s_load_dwordx4 s[48:51], s[0:1], {ARG['wg']}
s_load_dwordx2 s[44:45], s[0:1], {ARG['wd']}
s_mov_b32 s40, 0xffff0000
v_mov_b32 v4, 0
v_mov_b32 v5, 0
v_mov_b32 v6, 0
v_mov_b32 v7, 0
v_and_b32 v1, 15, v0
v_lshrrev_b32 v2, 4, v0
v_lshrrev_b32 v3, 2, v1
v_and_b32 v8, 3, v0
s_movk_i32 s16, {SU}
v_mul_u32_u24 v9, s16, v3
v_lshl_add_u32 v9, v8, 4, v9
ds_write_b128 v9, v[4:7] offset:4096
v_lshrrev_b32 v9, 5, v0
s_movk_i32 s17, {SK}
v_mul_u32_u24 v9, s17, v9
v_and_b32 v10, 31, v0
v_lshl_add_u32 v9, v10, 4, v9
ds_write_b128 v9, v[4:7] offset:{KB}
s_lshl_b32 s18, s3, 12
s_lshl_b32 s19, s3, 1
s_and_b32 s19, s19, 0xfffffffc
v_lshlrev_b32 v11, 4, v0
s_waitcnt lgkmcnt(0)
s_load_dword s41, s[6:7], s19""")
    k.srd_off(20, 4, 5, "s18", 4096)
    k(f"""s_mul_i32 s18, s3, {RS}
s_add_u32 s12, s10, s18
s_addc_u32 s13, s11, 0""")
    k.srd_off(24, 12, 13, WS_UR0, 4096)
    k.srd_off(28, 12, 13, WS_UR1, 4096)
    k.srd_off(32, 10, 11, WS_Y2T, SD2)
    k.srd(52, 48, 49, D * F * 2)
    k.srd(56, 50, 51, D * F * 2)
    k.srd(60, 44, 45, D * F * 2)
    k("s_mul_i32 s47, s2, 9216")
    copies = [(20, KB + 456), (20, KB + SK + 448), (28, 12), (24, SU + 12), (28, 2 * SU + 16), (24, 3 * SU + 16)]
    for srd, dst in copies:
        k(f"s_movk_i32 m0, {dst}")
        k("s_nop 0")
        for i in range(4):
            k(f"buffer_load_dwordx4 v11, s[{srd}:{srd+3}], 0 offen offset:{1024*i} lds")
    k(f"""v_mul_u32_u24 v12, s16, v8
v_sub_u32 v13, v2, v3
v_lshl_add_u32 v12, v13, 4, v12
v_add_u32 v12, 48, v12
v_and_b32 v13, 1, v0
v_mul_u32_u24 v13, s17, v13
v_lshrrev_b32 v14, 1, v1
v_lshl_add_u32 v13, v14, 6, v13
v_lshl_add_u32 v13, v2, 4, v13
v_add_u32 v13, {KB}, v13
v_and_b32 v15, 1, v0
v_lshlrev_b32 v15, 3, v15
v_lshl_add_u32 v15, v14, 6, v15
v_lshl_add_u32 v15, v2, 4, v15
v_sub_u32 v16, {3*SU + 4104 - 3584}, v15
v_lshl_add_u32 v15, v14, 2, v2
v_mul_u32_u24 v15, 9216, v15
v_and_b32 v17, 1, v0
v_lshl_add_u32 v15, v17, 3, v15
s_lshl_b32 s46, s3, 4""")
    ACC = 20
    FR = 52
    for i in range(32):
        k(f"v_mov_b32 v{ACC+i}, 0")

    def reads(r):
        st = r & 1
        out = []
        for n in range(8):
            out.append(f"ds_read_b128 v[{FR+64*st+4*n}:{FR+64*st+4*n+3}], v12 offset:{3648 - 48 + 64*r - 512*n}")
            out.append(f"ds_read_b128 v[{FR+64*st+32+4*n}:{FR+64*st+32+4*n+3}], v13 offset:{64*r + 512*n}")
        return out

    pfl = []
    for i in range(9):
        for srd in (52, 56):
            pfl.append(f"buffer_load_dwordx4 v[{FR+128}:{FR+131}], v11, s[{srd}:{srd+3}], s47 offen offset:{1024*(i%4)}" + ("\ns_add_u32 s47, s47, 4096" if (i % 4 == 3 and srd == 56) else ""))
    k("s_waitcnt vmcnt(0)")
    k.stamp(2)
    for ln in reads(0):
        k(ln)
    for r in range(8):
        st = r & 1
        nxt = reads(r + 1) if r < 7 else []
        k("s_waitcnt lgkmcnt(0)")
        mf = []
        for w in range(8):
            for q in range(8 - w):
                t = q + w
                mf.append(f"v_mfma_f32_16x16x32_bf16 v[{ACC+4*t}:{ACC+4*t+3}], v[{FR+64*st+4*w}:{FR+64*st+4*w+3}], v[{FR+64*st+32+4*q}:{FR+64*st+32+4*q+3}], v[{ACC+4*t}:{ACC+4*t+3}]")
        for i, m in enumerate(mf):
            k(m)
            if i < len(nxt):
                k(nxt[i])
            if PFW and i >= 16 and (i - 16) % 6 == 0 and pfl:
                k(pfl.pop(0))
    k.stamp(3)
    UV = FR
    for t in range(8):
        k(f"ds_read_b64 v[{UV+2*t}:{UV+2*t+1}], v16 offset:{512*(7-t)}")
    k(f"""s_and_b32 s42, s3, 1
s_lshl_b32 s43, s41, 16
s_and_b32 s41, s41, s40
s_cmp_eq_u32 s42, 0
s_cselect_b32 s41, s43, s41
s_waitcnt lgkmcnt(0)""")
    T = FR + 32
    for t in range(8):
        a = ACC + 4 * t
        u0, u1 = UV + 2 * t, UV + 2 * t + 1
        b = T + 8 * (t & 1)
        k(f"""v_and_b32 v{b}, s40, v{u1}
v_lshlrev_b32 v{b+1}, 16, v{u1}
v_and_b32 v{b+2}, s40, v{u0}
v_lshlrev_b32 v{b+3}, 16, v{u0}
v_mul_f32 v{b}, s41, v{b}
v_mul_f32 v{b+1}, s41, v{b+1}
v_mul_f32 v{b+2}, s41, v{b+2}
v_mul_f32 v{b+3}, s41, v{b+3}""")
        rnd_pair(k, b, b + 1, b + 4, 40)
        rnd_pair(k, b + 2, b + 3, b + 5, 40)
        rnd_pair(k, a, a + 1, b + 4, 40)
        rnd_pair(k, a + 2, a + 3, b + 5, 40)
        k(f"""v_add_f32 v{b}, v{b}, v{a}
v_add_f32 v{b+1}, v{b+1}, v{a+1}
v_add_f32 v{b+2}, v{b+2}, v{a+2}
v_add_f32 v{b+3}, v{b+3}, v{a+3}
v_cvt_pk_bf16_f32 v{b+6}, v{b}, v{b+1}
v_cvt_pk_bf16_f32 v{b+7}, v{b+2}, v{b+3}
buffer_store_dwordx2 v[{b+6}:{b+7}], v15, s[32:35], s46 offen
s_add_u32 s46, s46, 294912""")
    if k.stamps:
        k("s_waitcnt vmcnt(0)")
    k.stamp(4)
    k.stamp(5, real=True)
    k.stamp_flush()
    k.put(Lexit)
    k("s_endpgm")
    k.vgpr = FR + 132
    k.sgpr = 64
    return k


def wave_sum(k, v, t):
    k(f"""s_nop 1
v_add_f32 v{v}, v{v}, v{v} quad_perm:[1,0,3,2] row_mask:0xf bank_mask:0xf
s_nop 1
v_add_f32 v{v}, v{v}, v{v} quad_perm:[2,3,0,1] row_mask:0xf bank_mask:0xf
s_nop 1
v_add_f32 v{v}, v{v}, v{v} row_half_mirror row_mask:0xf bank_mask:0xf
s_nop 1
v_add_f32 v{v}, v{v}, v{v} row_mirror row_mask:0xf bank_mask:0xf
v_mov_b32 v{t}, v{v}
s_nop 1
v_permlane16_swap_b32 v{v}, v{t}
v_add_f32 v{v}, v{v}, v{t}
v_mov_b32 v{t}, v{v}
s_nop 1
v_permlane32_swap_b32 v{v}, v{t}
v_add_f32 v{v}, v{v}, v{t}""")


def rnd_list(k, regs, tmp, smask):
    i = 0
    while i < len(regs):
        if i + 1 < len(regs):
            rnd_pair(k, regs[i], regs[i + 1], tmp + (i // 2) % 4, smask)
            i += 2
        else:
            k(f"""v_cvt_pk_bf16_f32 v{tmp}, v{regs[i]}, v{regs[i]}
v_and_b32 v{regs[i]}, s{smask}, v{tmp}""")
            i += 1


def layernorm(k, X, O, T, R):
    s, t2, m = R, R + 1, R + 2
    k(f"v_add_f32 v{s}, v{X}, v{X+1}")
    for i in range(2, 9):
        k(f"v_add_f32 v{s}, v{s}, v{X+i}")
    wave_sum(k, s, t2)
    k(f"v_mul_f32 v{m}, s44, v{s}")
    for i in range(9):
        k(f"v_sub_f32 v{O+i}, v{X+i}, v{m}")
    k(f"v_mul_f32 v{s}, v{O}, v{O}")
    for i in range(1, 9):
        k(f"v_fmac_f32 v{s}, v{O+i}, v{O+i}")
    wave_sum(k, s, t2)
    k(f"v_mul_f32 v{s}, s44, v{s}")
    rnd_pair(k, m, s, T, 40)
    k(f"v_add_f32 v{s}, s45, v{s}")
    k(f"""v_cvt_pk_bf16_f32 v{T}, v{s}, v{s}
v_and_b32 v{s}, s40, v{T}
v_sqrt_f32 v{s}, v{s}
s_nop 0
v_cvt_pk_bf16_f32 v{T}, v{s}, v{s}
v_and_b32 v{s}, s40, v{T}
v_rcp_f32 v{t2}, v{s}""")
    for i in range(9):
        k(f"v_sub_f32 v{O+i}, v{X+i}, v{m}")
    rnd_list(k, [O + i for i in range(9)], T, 40)
    for i in range(9):
        k(f"""v_mul_f32 v{T}, v{O+i}, v{t2}
v_fma_f32 v{T+1}, -v{T}, v{s}, v{O+i}
v_fma_f32 v{O+i}, v{T+1}, v{t2}, v{T}""")
    rnd_list(k, [O + i for i in range(9)], T, 40)


def gen_k3():
    k = K("rows_kernel")
    k.kid = 2
    Lexit = k.label("exit")
    L1 = k.label("no9")
    L2 = k.label("no2nd")
    k(f"""s_cmp_ge_u32 s2, 256
s_cbranch_scc1 {Lexit}""")
    k.stamp_init()
    k(f"""
s_load_dwordx2 s[4:5], s[0:1], {ARG['q']}
s_load_dwordx2 s[10:11], s[0:1], {ARG['ws']}
s_mov_b32 s40, 0xffff0000
s_mov_b32 s44, 0x3ae38e39
s_mov_b32 s45, 0x3727c5ac
v_and_b32 v1, 63, v0
v_lshrrev_b32 v2, 6, v0
s_nop 0
v_readfirstlane_b32 s16, v2
s_waitcnt lgkmcnt(0)""")
    k.srd(20, 4, 5, SD2)
    k.srd_off(24, 10, 11, WS_Y2T, SD2)
    k.srd_off(28, 10, 11, WS_MODP, 9216)
    k.srd_off(32, 10, 11, WS_X1, SD2)
    k.srd_off(36, 10, 11, WS_H2, SD2)
    Lnz = k.label("nozero")
    k(f"""s_cmp_lg_u32 s2, 0
s_cbranch_scc1 {Lnz}""")
    k.srd_off(48, 10, 11, WS_CNT, 12288)
    k(f"""v_mov_b32 v8, 0
v_mov_b32 v9, 0
v_mov_b32 v10, 0
v_mov_b32 v11, 0
v_lshlrev_b32 v3, 4, v0
buffer_store_dwordx4 v[8:11], v3, s[48:51], 0 offen
buffer_store_dwordx4 v[8:11], v3, s[48:51], 0 offen offset:0
v_add_u32 v3, 8192, v3
buffer_store_dwordx4 v[8:11], v3, s[48:51], 0 offen""")
    k.put(Lnz)
    X = 8
    Y = 18
    MP = 28
    O = 64
    T = 74
    R = 78
    k(f"""s_mul_i32 s17, s2, 9216
s_lshl_b32 s19, s16, 10
s_add_u32 s17, s17, s19
v_lshlrev_b32 v3, 4, v1
s_mov_b32 m0, s19
s_nop 0
buffer_load_dwordx4 v3, s[24:27], s17 offen lds
s_cmp_lg_u32 s16, 0
s_cbranch_scc1 {L1}
s_add_u32 s17, s17, 8192
s_movk_i32 m0, 8192
s_nop 0
buffer_load_dwordx4 v3, s[24:27], s17 offen lds""")
    k.put(L1)
    for i in range(9):
        k(f"v_mov_b32 v{X+i}, 0")
        k(f"v_mov_b32 v{Y+i}, 0")
    k(f"""s_lshl_b32 s17, s2, 3
s_add_u32 s17, s17, s16
s_mul_i32 s17, s17, 1152
v_lshlrev_b32 v4, 1, v1
v_lshlrev_b32 v5, 4, v1
s_movk_i32 s18, 4096
s_movk_i32 s19, 8192""")
    for i in range(9):
        k(f"buffer_load_short_d16_hi v{X+i}, v4, s[20:23], s17 offen offset:{128*i}")
    for i in range(9):
        so = "0" if i < 4 else ("s18" if i < 8 else "s19")
        k(f"buffer_load_dwordx4 v[{MP+4*i}:{MP+4*i+3}], v5, s[28:31], {so} offen offset:{1024*(i%4)}")
    k(f"""v_lshl_add_u32 v6, v2, 1, v5
v_lshrrev_b32 v7, 5, v1
v_lshlrev_b32 v7, 9, v7
v_bfe_u32 v3, v1, 2, 2
v_lshl_add_u32 v7, v3, 7, v7
v_lshl_add_u32 v7, v2, 4, v7
v_bfe_u32 v3, v1, 4, 1
v_lshl_add_u32 v7, v3, 3, v7
v_and_b32 v3, 3, v1
v_lshl_add_u32 v7, v3, 1, v7
s_waitcnt vmcnt(9)""")
    k.stamp(2)
    layernorm(k, X, O, T, R)
    k("""s_waitcnt vmcnt(0)
s_barrier""")
    k.stamp(3)
    for i in range(9):
        k(f"ds_read_u16_d16_hi v{Y+i}, v6 offset:{1024*i}")
    for i in range(9):
        k(f"""v_and_b32 v{T}, s40, v{MP+4*i}
v_mul_f32 v{O+i}, v{O+i}, v{T}""")
    rnd_list(k, [O + i for i in range(9)], T, 40)
    for i in range(9):
        k(f"""v_lshlrev_b32 v{T}, 16, v{MP+4*i}
v_add_f32 v{O+i}, v{O+i}, v{T}""")
    rnd_list(k, [O + i for i in range(9)], T, 40)
    k("s_waitcnt lgkmcnt(0)")
    for i in range(9):
        k(f"v_mul_f32 v{O+i}, v{O+i}, v{Y+i}")
    rnd_list(k, [O + i for i in range(9)], T, 40)
    for i in range(9):
        k(f"""v_lshlrev_b32 v{T}, 16, v{MP+4*i+1}
v_mul_f32 v{O+i}, v{O+i}, v{T}""")
    rnd_list(k, [O + i for i in range(9)], T, 40)
    for i in range(9):
        k(f"v_add_f32 v{X+i}, v{X+i}, v{O+i}")
    rnd_list(k, [X + i for i in range(9)], T, 40)
    for i in range(9):
        k(f"buffer_store_short_d16_hi v{X+i}, v4, s[32:35], s17 offen offset:{128*i}")
    layernorm(k, X, O, T, R)
    for i in range(9):
        k(f"""v_lshlrev_b32 v{T}, 16, v{MP+4*i+2}
v_mul_f32 v{O+i}, v{O+i}, v{T}""")
    rnd_list(k, [O + i for i in range(9)], T, 40)
    for i in range(9):
        k(f"""v_and_b32 v{T}, s40, v{MP+4*i+1}
v_add_f32 v{O+i}, v{O+i}, v{T}
v_cvt_pk_bf16_f32 v{O+i}, v{O+i}, v{O+i}
ds_write_b16 v7, v{O+i} offset:{9216+1024*i}""")
    k(f"""v_lshlrev_b32 v6, 4, v0
v_lshrrev_b32 v7, 3, v0
v_lshlrev_b32 v7, 8, v7
v_and_b32 v3, 7, v0
v_lshl_add_u32 v7, v3, 4, v7
s_lshr_b32 s17, s2, 1
s_mul_i32 s17, s17, 18432
s_and_b32 s18, s2, 1
s_lshl_b32 s18, s18, 7
s_add_u32 s17, s17, s18
s_waitcnt lgkmcnt(0)
s_barrier
ds_read_b128 v[8:11], v6 offset:9216
s_cmp_lg_u32 s16, 0
s_cbranch_scc1 {L2}
ds_read_b128 v[12:15], v6 offset:{9216+8192}
s_add_u32 s18, s17, 16384
s_waitcnt lgkmcnt(0)
buffer_store_dwordx4 v[12:15], v7, s[36:39], s18 offen""")
    k.put(L2)
    k(f"""s_waitcnt lgkmcnt(0)
buffer_store_dwordx4 v[8:11], v7, s[36:39], s17 offen""")
    k.stamp(6)
    if k.stamps:
        k("s_waitcnt vmcnt(0)")
    k.stamp(4)
    k.stamp(5, real=True)
    k.stamp_flush()
    k.put(Lexit)
    k("s_endpgm")
    k.vgpr = 84
    k.sgpr = 56
    return k


STG = 36864
NBUF = 4
G_LDS = STG * NBUF
EXACT_GU = os.environ.get("EXACT_GU", "0") == "1"


def gen_gemm(which):
    g1 = which == 1
    k = K("gemm1_kernel" if g1 else "gemm2_kernel")
    Lexit = k.label("exit")
    NT = 18 if g1 else 9
    NACC = NT * 4
    DAH = 4
    RING = 6
    NV = min(NACC, 56)
    def acc(ti):
        return vr(32 + 4 * ti, 4) if ti < NV else ar(4 * (ti - NV), 4)
    AB = 4 * (NACC - NV)
    NXS = 2 if g1 else 4
    XR = AB
    WRG = AB + 32 * NXS
    def xfrag(xs, kk, st):
        return ar(XR + 32 * xs + 16 * kk + 4 * st, 4)
    def wfrag(slot, half=None):
        if half is None:
            return ar(WRG + 4 * slot, 4)
        return ar(WRG + 4 * slot + 2 * half, 2)
    DUM = WRG + 4 * RING
    k.agpr = DUM + 4
    k.vgpr = 32 + 4 * NV
    k.sgpr = 64
    VX = 4
    VD = 8
    VB = 12
    k.kid = 3 if g1 else 4
    k(f"""s_cmp_ge_u32 s2, 256
s_cbranch_scc1 {Lexit}""")
    k.stamp_init()
    k(f"""s_load_dwordx4 s[4:7], s[0:1], {ARG['wg']}
s_load_dwordx2 s[8:9], s[0:1], {ARG['wd']}
s_load_dwordx2 s[10:11], s[0:1], {ARG['ws']}
v_and_b32 v1, 63, v0
v_lshrrev_b32 v2, 6, v0
s_and_b32 s16, s2, 7
s_lshr_b32 s17, s2, 3
v_readfirstlane_b32 s18, v2
s_nop 3
s_lshr_b32 s19, s18, 1
s_and_b32 s20, s18, 1""")
    PITCH = F * 2 if g1 else D * 2
    XST = 18432 if g1 else 147456
    if g1:
        k(f"""s_and_b32 s21, s17, 3
s_lshl_b32 s16, s16, 2
s_add_u32 s21, s21, s16
s_lshr_b32 s22, s17, 2
s_lshl_b32 s23, s22, 4
s_lshl_b32 s36, s18, 2
s_add_u32 s23, s23, s36
s_mul_i32 s36, s23, {XST}
s_mov_b32 s38, 0""")
    else:
        k(f"""s_and_b32 s21, s17, 3
s_and_b32 s39, s16, 3
s_lshr_b32 s16, s16, 2
s_lshl_b32 s16, s16, 3
s_lshr_b32 s22, s17, 2
s_add_u32 s22, s22, s16
s_lshl_b32 s23, s22, 3
s_lshl_b32 s36, s20, 2
s_add_u32 s23, s23, s36
s_mul_i32 s36, s23, {XST}
s_lshl_b32 s37, s39, 1
s_add_u32 s37, s37, s19
s_mul_i32 s38, s37, {18*1024}
s_add_u32 s36, s36, s38
s_mul_i32 s38, s37, {576*PITCH}""")
    k(f"""s_lshr_b32 s52, s21, 2
s_and_b32 s53, s21, 3
s_mul_i32 s37, s52, 1152
s_add_u32 s38, s38, s37
s_mul_i32 s37, s20, {32*PITCH}
s_add_u32 s38, s38, s37
s_lshl_b32 s37, s53, 8
s_add_u32 s40, s38, s37
s_lshl_b32 s37, s53, 5
s_add_u32 s41, s38, s37
s_add_u32 s41, s41, 1024
s_movk_i32 s37, {PITCH}""")
    k(f"v_lshl_add_u32 v{VX}, v1, 4, s36")
    for st in range(1, 4):
        k(f"v_add_u32 v{VX+st}, {XST}, v{VX+st-1}")
    k(f"""v_lshrrev_b32 v22, 4, v1
v_and_b32 v23, 15, v1
v_mul_lo_u32 v24, v22, s37
v_add_u32 v24, s40, v24
v_lshlrev_b32 v25, 1, v22
v_xor_b32 v25, v23, v25
v_lshl_add_u32 v{VD}, v25, 4, v24
v_xor_b32 v25, 8, v25
v_lshl_add_u32 v{VD+1}, v25, 4, v24
v_add_u32 v{VD+1}, {4*PITCH}, v{VD+1}
v_lshrrev_b32 v22, 1, v1
v_mul_lo_u32 v24, v22, s37
v_and_b32 v23, 1, v1
v_lshl_add_u32 v24, v23, 4, v24
v_add_u32 v{VD+2}, s41, v24""")
    k(f"""s_mul_i32 s42, s19, 18432
s_lshl_b32 s36, s20, 10
s_add_u32 s43, s42, s36
s_add_u32 s43, s43, 16384
s_lshl_b32 s36, s20, 13
s_add_u32 s42, s42, s36""")
    k(f"""v_lshrrev_b32 v22, 2, v1
v_and_b32 v23, 3, v1
v_lshlrev_b32 v23, 3, v23
v_lshl_add_u32 v24, v22, 8, v23
v_and_b32 v25, 7, v22""")
    if not g1:
        k(f"""s_mul_i32 s36, s19, 18432
v_add_u32 v24, s36, v24
v_add_u32 v23, s36, v23""")
    for t in range(8):
        k(f"""v_xor_b32 v26, {t}, v25
v_lshl_add_u32 v{VB+t}, v26, 5, v24""")
    k(f"""v_lshl_add_u32 v{VB+8}, v22, 5, v23
v_add_u32 v{VB+8}, 16384, v{VB+8}""")
    k("s_waitcnt lgkmcnt(0)")
    k.stamp(8)
    if g1:
        k(f"""s_cmp_eq_u32 s19, 0
s_cselect_b32 s12, s4, s6
s_cselect_b32 s13, s5, s7""")
        k.srd(24, 12, 13, D * F * 2)
        k.srd_off(28, 10, 11, WS_H2, SD2)
        k.srd_off(32, 10, 11, WS_HM, HM_BYTES)
        k.srd(56, 8, 9, D * F * 2)
        k(f"""s_lshl_b32 s36, s2, 12
v_lshl_add_u32 v21, v0, 4, s36
s_mov_b32 s60, 0""")
    else:
        k.srd(24, 8, 9, D * F * 2)
        k.srd_off(28, 10, 11, WS_HM, HM_BYTES)
        k.srd_off(32, 10, 11, WS_PART, 4 * PART1)

    def dma_list():
        out = []
        for n in range(8):
            out.append(f"""s_add_u32 s54, s45, s42
s_add_u32 m0, s54, {1024*n}
s_add_u32 s55, s44, {(n>>1)*8*PITCH}
buffer_load_dwordx4 v{VD+(n&1)}, s[24:27], s55 offen lds""")
        out.append(f"""s_add_u32 m0, s45, s43
s_nop 0
buffer_load_dwordx4 v{VD+2}, s[24:27], s44 offen lds
s_add_u32 s44, s44, {64*PITCH}
s_add_u32 s45, s45, {STG}
s_cmp_ge_u32 s45, {STG*NBUF}
s_cselect_b32 s45, 0, s45""")
        return out
    def xload_list(xs):
        out = []
        for kk in range(2):
            for st in range(4):
                out.append(f"buffer_load_dwordx4 {xfrag(xs, kk, st)}, v{VX+st}, s[28:31], s46 offen offset:{1024*kk}")
        out[-1] += "\ns_add_u32 s46, s46, 2048"
        return out
    k(f"""s_mov_b32 s44, 0
s_mov_b32 s45, 0
s_mov_b32 s46, 0""")
    zl = []
    for ti in range(NACC):
        for r in range(4):
            if ti < NV:
                zl.append(f"v_mov_b32 v{32+4*ti+r}, 0")
            else:
                zl.append(f"v_accvgpr_write_b32 a{4*(ti-NV)+r}, 0")
    if g1:
        pl = dma_list() + xload_list(0) + dma_list()
        W0 = 9
    else:
        pl = dma_list() + xload_list(0) + xload_list(1) + dma_list() + xload_list(2)
        W0 = 25
    per = (len(zl) + len(pl) - 1) // len(pl)
    k.stamp(9)
    for i, ln in enumerate(pl):
        k(ln)
        if i >= 8:
            for z in range(per + 6):
                if zl:
                    k(zl.pop(0))
    while zl:
        k(zl.pop(0))
    NF = 2 * NT

    def frag_info(f):
        kk = f // NT
        r = f % NT
        return kk, r % 9, r // 9

    def tr_reads(f, slot):
        kk, t, m = frag_info(f)
        if t < 8:
            off = m * 18432 + kk * 8192
            hs = 4096
        else:
            off = m * 18432 + kk * 1024
            hs = 512
        return [f"ds_read_b64_tr_b16 {wfrag(slot, 0)}, v{VB+t} offset:{off}",
                f"ds_read_b64_tr_b16 {wfrag(slot, 1)}, v{VB+t} offset:{off + hs}"]

    k.stamp(6)
    k(f"""s_waitcnt vmcnt({W0})
s_barrier""")
    k.stamp(2)
    if k.stamps:
        k("s_waitcnt lgkmcnt(0)")
    assert NF % RING == 0
    for f in range(DAH):
        for ln in tr_reads(f, f % RING):
            k(ln)

    def stage(xs, last):
        if last:
            vm = []
        elif g1:
            vm = xload_list(1 - xs) + dma_list()
            if PFW:
                vm.append(f"buffer_load_dwordx4 {ar(DUM, 4)}, v21, s[56:59], s60 offen\ns_add_u32 s60, s60, 0x100000")
        else:
            vm = dma_list() + xload_list((xs + NXS - 1) % NXS)
        nvm = len(vm)
        WB = nvm if g1 else nvm + 8
        PB = NF - DAH
        slots = {}
        for i in range(nvm):
            slots.setdefault(i * PB // nvm, []).append(vm[i])
        if not last:
            k(f"""s_add_u32 s48, s48, {STG}
s_cmp_ge_u32 s48, {STG*NBUF}
s_cselect_b32 s49, {(-STG*(NBUF-1)) & 0xffffffff:#x}, s50
s_cselect_b32 s48, 0, s48""")
        for f in range(NF):
            kk, t, m = frag_info(f)
            fa = f + DAH
            if f == PB and not last:
                k(f"s_waitcnt vmcnt({WB})")
                k("s_barrier")
            rd = []
            upd = None
            if fa < NF:
                rd = tr_reads(fa, fa % RING)
                if fa >= NF - 9 and not last:
                    upd = f"v_add_u32 v{VB + frag_info(fa)[1]}, s49, v{VB + frag_info(fa)[1]}"
            elif not last:
                rd = tr_reads(fa - NF, fa % RING)
            rem = min(DAH - 1, (NF - 1 - f) if last else DAH - 1)
            k(f"s_waitcnt lgkmcnt({2*rem})")
            ti_base = (m * 9 + t) * 4
            extra = list(slots.get(f, []))
            for st in range(4):
                k(f"v_mfma_f32_16x16x32_bf16 {acc(ti_base+st)}, {wfrag(f % RING)}, {xfrag(xs, kk, st)}, {acc(ti_base+st)}")
                if st == 0 and rd:
                    k(rd[0])
                if st == 1 and rd:
                    k(rd[1])
                    if upd:
                        k(upd)
                if st >= 2 and extra:
                    k(extra.pop(0))
            while extra:
                k(extra.pop(0))
        if not last and g1:
            k(f"s_waitcnt vmcnt({nvm - 8})")

    k(f"""s_mov_b32 s48, 0
s_mov_b32 s50, {STG}
s_mov_b32 s51, 0""")
    Lloop = k.label("loop")
    k.put(Lloop)
    for xs in range(NXS):
        stage(xs, False)
    k(f"""s_add_u32 s51, s51, 1
s_cmp_lt_u32 s51, {8 // NXS}
s_cbranch_scc1 {Lloop}""")
    stage(0, True)
    k.stamp(3)
    k("s_nop 7")
    k("s_nop 7")

    def accreg(ti, r, tmp):
        if ti < NV:
            return f"v{32+4*ti+r}"
        k(f"v_accvgpr_read_b32 v{tmp}, a{4*(ti-NV)+r}")
        return f"v{tmp}"

    if g1:
        k(f"""s_mul_i32 s36, s52, 18
s_lshl_b32 s37, s53, 2
s_add_u32 s38, s36, s37
s_lshl_b32 s38, s38, 10
s_lshr_b32 s37, s53, 1
s_add_u32 s39, s36, s37
s_add_u32 s39, s39, 16
s_lshl_b32 s39, s39, 10
s_and_b32 s37, s53, 1
s_lshl_b32 s37, s37, 3
s_add_u32 s39, s39, s37
s_mul_i32 s36, s23, 147456
s_mov_b32 s40, 0xffff0000
v_lshl_add_u32 v{VX}, v1, 4, s36""")
        for st in range(1, 4):
            k(f"v_add_u32 v{VX+st}, 147456, v{VX+st-1}")
        cnt = 0
        for st in range(4):
            for pr in range(5):
                tiles = [2 * pr, 2 * pr + 1] if pr < 4 else [8]
                ob = 8 + 4 * (cnt % 2)
                cnt += 1
                for hi, t in enumerate(tiles):
                    tg = t * 4 + st
                    tu = (9 + t) * 4 + st
                    gn = [accreg(tg, r, 16 + r) for r in range(4)]
                    un = [accreg(tu, r, 20 + r) for r in range(4)]
                    if EXACT_GU:
                        for h2 in range(2):
                            k(f"""v_cvt_pk_bf16_f32 v28, {gn[2*h2]}, {gn[2*h2+1]}
v_cvt_pk_bf16_f32 v29, {un[2*h2]}, {un[2*h2+1]}
v_pk_max_i16 v28, v28, 0
v_lshlrev_b32 v30, 16, v29
v_and_b32 v31, s40, v29
v_lshlrev_b32 v{24+2*h2}, 16, v28
v_and_b32 v{25+2*h2}, s40, v28
v_mul_f32 v{24+2*h2}, v{24+2*h2}, v30
v_mul_f32 v{25+2*h2}, v{25+2*h2}, v31""")
                    else:
                        for r in range(4):
                            k(f"v_max_f32 v{24+r}, 0, {gn[r]}")
                            k(f"v_mul_f32 v{24+r}, v{24+r}, {un[r]}")
                    k(f"""v_cvt_pk_bf16_f32 v{ob+2*hi}, v24, v25
v_cvt_pk_bf16_f32 v{ob+2*hi+1}, v26, v27""")
                if pr < 4:
                    k(f"buffer_store_dwordx4 v[{ob}:{ob+3}], v{VX+st}, s[32:35], s38 offen offset:{1024*pr}")
                else:
                    k(f"buffer_store_dwordx2 v[{ob}:{ob+1}], v{VX+st}, s[32:35], s39 offen")
        k.stamp(7)
        if k.stamps:
            k("s_waitcnt vmcnt(0)")
        k.stamp(4)
        k.stamp(5, real=True)
        k.stamp_flush()
    else:
        Lk1 = k.label("kh1")
        k(f"""s_waitcnt vmcnt(0)
s_barrier
s_mul_i32 s36, s18, 18432
v_lshl_add_u32 v22, v1, 4, s36
s_xor_b32 s37, s18, 2
s_mul_i32 s37, s37, 18432
v_lshl_add_u32 v23, v1, 4, s37
s_lshl_b32 s36, s19, 1
s_add_u32 s36, s36, s23
s_mul_i32 s36, s36, 36
s_lshl_b32 s36, s36, 10
s_mul_i32 s37, s39, {PART1}
s_add_u32 s36, s36, s37
v_lshl_add_u32 v24, v1, 4, s36
v_add_u32 v25, {36*1024}, v24
s_lshl_b32 s36, s53, 13
s_add_u32 s37, s36, 4096
s_lshl_b32 s38, s53, 10
s_add_u32 s38, s38, 32768
s_cmp_eq_u32 s19, 1
s_cbranch_scc1 {Lk1}""")
        for kh in range(2):
            if kh == 1:
                k.put(Lk1)
            keep = [2 * kh, 2 * kh + 1]
            send = [2 - 2 * kh, 3 - 2 * kh]
            for i, st in enumerate(send):
                for t in range(9):
                    k(f"ds_write_b128 v22, {acc(t*4+st)} offset:{(i*9+t)*1024}")
            k("""s_waitcnt lgkmcnt(0)
s_barrier""")
            for i, st in enumerate(send):
                for t in range(9):
                    k(f"ds_read_b128 {acc(t*4+st)}, v23 offset:{(i*9+t)*1024}")
            n = 18
            for i in range(2):
                for t in range(9):
                    n -= 1
                    k(f"s_waitcnt lgkmcnt({min(n,15)})")
                    a = 32 + 4 * (t * 4 + keep[i])
                    b = 32 + 4 * (t * 4 + send[i])
                    k(f"""v_pk_add_f32 v[{a}:{a+1}], v[{a}:{a+1}], v[{b}:{b+1}]
v_pk_add_f32 v[{a+2}:{a+3}], v[{a+2}:{a+3}], v[{b+2}:{b+3}]""")
                    so = "s36" if t < 4 else ("s37" if t < 8 else "s38")
                    k(f"buffer_store_dwordx4 v[{a}:{a+3}], v{24+i}, s[32:35], {so} offen offset:{1024*(t%4)}")
            k.stamp(7)
            if k.stamps:
                k("s_waitcnt vmcnt(0)")
            k.stamp(4)
            k.stamp(5, real=True)
            k.stamp_flush()
            if kh == 0:
                k("s_endpgm")
    k.put(Lexit)
    k("s_endpgm")
    return k


def gen_k6():
    k = K("final_kernel")
    k.kid = 4 if os.environ.get("FUSED", "1") == "1" else 5
    Lexit = k.label("exit")
    k(f"""s_cmp_ge_u32 s2, 1152
s_cbranch_scc1 {Lexit}""")
    k.stamp_init()
    k(f"""
s_load_dwordx2 s[4:5], s[0:1], {ARG['out']}
s_load_dwordx2 s[10:11], s[0:1], {ARG['ws']}
s_mov_b32 s40, 0xffff0000
v_and_b32 v1, 63, v0
v_lshrrev_b32 v2, 6, v0
s_lshl_b32 s16, s2, 2
v_readfirstlane_b32 s17, v2
s_nop 3
s_add_u32 s16, s16, s17
s_mov_b32 s18, 0x71c71c8
s_mul_hi_u32 s17, s16, s18
s_mul_i32 s18, s17, 36
s_sub_u32 s18, s16, s18
s_waitcnt lgkmcnt(0)""")
    k.srd(20, 4, 5, SD2)
    k.srd_off(24, 10, 11, WS_PART, 4 * PART1)
    k.srd_off(28, 10, 11, WS_X1, SD2)
    k.srd_off(32, 10, 11, WS_GBV, D * 4)
    k(f"""s_lshl_b32 s19, s16, 10
v_lshl_add_u32 v3, v1, 4, s19
s_mov_b32 s36, {PART1}
s_mov_b32 s37, {2*PART1}
s_mov_b32 s38, {3*PART1}
buffer_load_dwordx4 v[8:11], v3, s[24:27], 0 offen
buffer_load_dwordx4 v[12:15], v3, s[24:27], s36 offen
buffer_load_dwordx4 v[16:19], v3, s[24:27], s37 offen
buffer_load_dwordx4 v[20:23], v3, s[24:27], s38 offen
v_and_b32 v4, 15, v1
v_lshrrev_b32 v5, 4, v1
s_lshl_b32 s19, s17, 4
v_add_u32 v4, s19, v4
s_movk_i32 s19, 1152
v_mul_lo_u32 v4, v4, s19
s_lshl_b32 s19, s18, 5
v_lshl_add_u32 v6, v5, 3, s19
v_add_u32 v4, v4, v6
v_lshlrev_b32 v6, 1, v6
buffer_load_dwordx2 v[24:25], v4, s[28:31], 0 offen
buffer_load_dwordx4 v[28:31], v6, s[32:35], 0 offen
s_waitcnt vmcnt(4)
v_pk_add_f32 v[8:9], v[8:9], v[12:13]
v_pk_add_f32 v[10:11], v[10:11], v[14:15]
s_waitcnt vmcnt(2)
v_pk_add_f32 v[16:17], v[16:17], v[20:21]
v_pk_add_f32 v[18:19], v[18:19], v[22:23]
v_pk_add_f32 v[8:9], v[8:9], v[16:17]
v_pk_add_f32 v[10:11], v[10:11], v[18:19]""")
    rnd_pair(k, 8, 9, 12, 40)
    rnd_pair(k, 10, 11, 13, 40)
    k("""s_waitcnt vmcnt(0)
v_pk_mul_f32 v[8:9], v[8:9], v[28:29]
v_pk_mul_f32 v[10:11], v[10:11], v[30:31]""")
    rnd_pair(k, 8, 9, 12, 40)
    rnd_pair(k, 10, 11, 13, 40)
    k("""v_lshlrev_b32 v16, 16, v24
v_and_b32 v17, s40, v24
v_lshlrev_b32 v18, 16, v25
v_and_b32 v19, s40, v25
v_pk_add_f32 v[8:9], v[8:9], v[16:17]
v_pk_add_f32 v[10:11], v[10:11], v[18:19]
v_cvt_pk_bf16_f32 v12, v8, v9
v_cvt_pk_bf16_f32 v13, v10, v11
buffer_store_dwordx2 v[12:13], v4, s[20:23], 0 offen""")
    k.stamp(3)
    if k.stamps:
        k("s_waitcnt vmcnt(0)")
    k.stamp(4)
    k.stamp(5, real=True)
    k.stamp_flush()
    k.put(Lexit)
    k("s_endpgm")
    k.vgpr = 32
    k.sgpr = 48
    return k


HEADER = open("adaLN_cond__ssm_conv_h3__glu_gated_reglu__prompt.s.ref").read().split("; Override launch geometry")[0]


def build(path):
    import gen_mlp
    if os.environ.get("FUSED", "1") == "1":
        ks = [(gen_k1(), 342 + NWARM, 256, 16384), (gen_k2(), 576, 64, K2_LDS), (gen_k3(), 256, 512, 18432),
              (gen_mlp.gen_mlp(), 256, 256, gen_mlp.M_LDS), (gen_k6(), 1152, 256, 0)]
    else:
        ks = [(gen_k1(), 342 + NWARM, 256, 16384), (gen_k2(), 576, 64, K2_LDS), (gen_k3(), 256, 512, 18432),
              (gen_gemm(1), 256, 256, G_LDS), (gen_gemm(2), 256, 256, G_LDS), (gen_k6(), 1152, 256, 0)]
    out = HEADER
    for kk, g, b, lds in ks:
        out += f"; @launch kernel={kk.name} grid=({g},1,1) block=({b},1,1) lds={lds}\n"
    out += '.amdgcn_target "amdgcn-amd-amdhsa--gfx950"\n.text\n'
    for i, (kk, *_) in enumerate(ks):
        if i == 1:
            out += ".p2align 8\ncode_begin:\n"
        out += kk.text()
    out += "code_end:\n"
    out += '.section .rodata,"a"\n.p2align 6\ndesc_begin:\n'
    for kk, *_ in ks:
        out += kk.desc()
    out += "desc_end:\n"
    open(path, "w").write(out)


if __name__ == "__main__":
    build(sys.argv[1] if len(sys.argv) > 1 else "adaLN_cond__ssm_conv_h3__glu_gated_reglu__prompt.s")
```

```python
class K:
    def __init__(self, name):
        self.name = name
        self.lines = []
        self.nlab = 0
        self.vgpr = 0
        self.agpr = 0
        self.sgpr = 0
        self.wgy = False
    def __call__(self, s):
        for ln in s.strip("\n").split("\n"):
            ln = ln.strip()
            if ln:
                self.lines.append("  " + ln)
    def label(self, base="L"):
        self.nlab += 1
        return f"{self.name}_{base}{self.nlab}"
    def put(self, lab):
        self.lines.append(lab + ":")
    def srd(self, d, lo, hi, nbytes):
        self(f"""s_mov_b32 s{d}, s{lo}
s_mov_b32 s{d+1}, s{hi}
s_mov_b32 s{d+2}, {nbytes}
s_mov_b32 s{d+3}, 0x00020000""")
    def srd_off(self, d, lo, hi, off, nbytes):
        self(f"""s_add_u32 s{d}, s{lo}, {off}
s_addc_u32 s{d+1}, s{hi}, 0
s_mov_b32 s{d+2}, {nbytes}
s_mov_b32 s{d+3}, 0x00020000""")
    stamps = False
    kid = 0
    wsg = 99
    def stamp(self, i, real=False):
        if not self.stamps:
            return
        self(f"s_memtime s[{70+2*i}:{71+2*i}]" if not real else f"s_memrealtime s[{70+2*i}:{71+2*i}]")
        self.nst = max(getattr(self, "nst", 0), i + 1)
    def stamp_flush(self, ws_lo=10, ws_hi=11, vt=0):
        if not self.stamps:
            return
        n = self.nst
        self(f"""s_waitcnt lgkmcnt(0)
s_add_u32 s64, s{ws_lo}, {0x8000000 + self.kid * 0x400000}
s_addc_u32 s65, s{ws_hi}, 0
s_mov_b32 s66, 0x400000
s_mov_b32 s67, 0x00020000
s_mov_b64 exec, 1
s_lshl_b32 s68, s2, 11
s_lshl_b32 s69, s{self.wsg}, 7
s_add_u32 s68, s68, s69
v_mov_b32 v{vt}, s68""")
        for i in range(n):
            self(f"""v_mov_b32 v{vt+2}, s{70+2*i}
v_mov_b32 v{vt+3}, s{71+2*i}
buffer_store_dwordx2 v[{vt+2}:{vt+3}], v{vt}, s[64:67], 0 offen offset:{8*i}
s_nop 1""")
    def stamp_init(self):
        if not self.stamps:
            return
        self(f"""v_lshrrev_b32 v1, 6, v0
s_nop 0
v_readfirstlane_b32 s{self.wsg}, v1""")
        self.stamp(0, real=True)
        self.stamp(1)
    def text(self):
        out = [f".globl {self.name}", ".p2align 8", f".type {self.name},@function", f"{self.name}:"]
        out += self.lines
        return "\n".join(out) + "\n"
    def desc(self):
        acc_off = (self.vgpr + 3) // 4 * 4
        nfv = acc_off + self.agpr if self.agpr else self.vgpr
        s = f""".p2align 6
.amdhsa_kernel {self.name}
  .amdhsa_next_free_vgpr {nfv}
  .amdhsa_next_free_sgpr {102 if self.stamps else self.sgpr}
  .amdhsa_accum_offset {acc_off}
  .amdhsa_group_segment_fixed_size 0
  .amdhsa_kernarg_size 120
  .amdhsa_user_sgpr_count 2
  .amdhsa_user_sgpr_kernarg_segment_ptr 1
  .amdhsa_system_sgpr_workgroup_id_x 1
  .amdhsa_float_denorm_mode_32 3
  .amdhsa_float_denorm_mode_16_64 3
.end_amdhsa_kernel
"""
        return s

def vr(a, n=1):
    return f"v{a}" if n == 1 else f"v[{a}:{a+n-1}]"
def ar(a, n=1):
    return f"a{a}" if n == 1 else f"a[{a}:{a+n-1}]"
def sr(a, n=1):
    return f"s{a}" if n == 1 else f"s[{a}:{a+n-1}]"
```

```python
import os
from asmlib import *
from gen import (S, D, F, ARG, RS, WS_UR0, WS_UR1, WS_Y2T, WS_X1, WS_H2, WS_MODP, WS_GBV, WS_HM, WS_PART, WS_CNT,
                 SD2, HM_BYTES, PART1, rnd_pair, rnd_list, SU, SK, KB, K2_LDS)

STG = 36864
NBUF = 4
M_LDS = STG * NBUF
SPIN_MAX = 1 << 22
F0, F1, F2, F3, FREG = 0, 2048, 3072, 4096, 5120
CONV_LDS = 26112
YT_LDS = 4 * CONV_LDS
ROW_LDS = 3 * STG
NONCE_LDS = M_LDS - 16
P0_LDS = 3 * STG
NKV = 198
NHMT = int(os.environ.get('NHMT', '2'))
PFD = int(os.environ.get('PFD', '3'))
PF_WD = os.environ.get('PF_WD', '0') == '1'
G1_HM = os.environ.get('G1_HM', '1') == '1'
G1_WD = os.environ.get('G1_WD', '1') == '1'
NREP = int(os.environ.get('NREP', '16'))
REPS = 8192 + 768
SL1 = int(os.environ.get('SL1', '6'))


def wave_sum2(k, va, vb, ta, tb):
    for ctl in ("quad_perm:[1,0,3,2]", "quad_perm:[2,3,0,1]", "row_half_mirror", "row_mirror"):
        k(f"""s_nop 0
v_add_f32 v{va}, v{va}, v{va} {ctl} row_mask:0xf bank_mask:0xf
v_add_f32 v{vb}, v{vb}, v{vb} {ctl} row_mask:0xf bank_mask:0xf""")
    for op in ("v_permlane16_swap_b32", "v_permlane32_swap_b32"):
        k(f"""v_mov_b32 v{ta}, v{va}
v_mov_b32 v{tb}, v{vb}
s_nop 1
{op} v{va}, v{ta}
{op} v{vb}, v{tb}
v_add_f32 v{va}, v{va}, v{ta}
v_add_f32 v{vb}, v{vb}, v{tb}""")


def rnd18(k, O, T):
    for i in range(9):
        rnd_pair(k, O + 2 * i, O + 2 * i + 1, T + (i % 4), 40)


def pk(op, d, a, b, c=None, mods=""):
    s = f"v_pk_{op}_f32 v[{d}:{d+1}], v[{a}:{a+1}], v[{b}:{b+1}]"
    if c is not None:
        s += f", v[{c}:{c+1}]"
    return s + (" " + mods if mods else "")


def layernorm2(k, X, O, T, R):
    s, t2, m, q = R, R + 2, R + 4, R + 6
    k(pk("add", s, X, X + 2))
    for i in range(2, 9):
        k(pk("add", s, s, X + 2 * i))
    k("s_nop 0")
    wave_sum2(k, s, s + 1, t2, t2 + 1)
    k(f"""v_mul_f32 v{m}, s44, v{s}
v_mul_f32 v{m+1}, s44, v{s+1}""")
    for i in range(9):
        k(pk("add", O + 2 * i, X + 2 * i, m, mods="neg_lo:[0,1] neg_hi:[0,1]"))
    k(pk("mul", s, O, O))
    for i in range(1, 9):
        k(pk("fma", s, O + 2 * i, O + 2 * i, s))
    k("s_nop 0")
    wave_sum2(k, s, s + 1, t2, t2 + 1)
    k(f"""v_mul_f32 v{s}, s44, v{s}
v_mul_f32 v{s+1}, s44, v{s+1}""")
    rnd_pair(k, m, m + 1, T, 40)
    rnd_pair(k, s, s + 1, T + 1, 40)
    k(f"""v_add_f32 v{s}, s45, v{s}
v_add_f32 v{s+1}, s45, v{s+1}""")
    rnd_pair(k, s, s + 1, T, 40)
    k(f"""v_sqrt_f32 v{s}, v{s}
v_sqrt_f32 v{s+1}, v{s+1}
s_nop 0""")
    rnd_pair(k, s, s + 1, T, 40)
    k(f"""v_rcp_f32 v{t2}, v{s}
v_rcp_f32 v{t2+1}, v{s+1}""")
    for i in range(9):
        k(pk("add", O + 2 * i, X + 2 * i, m, mods="neg_lo:[0,1] neg_hi:[0,1]"))
    rnd18(k, O, T)
    for i in range(9):
        a = T + 2 * (i & 1)
        k(pk("mul", a, O + 2 * i, t2))
        k(pk("fma", q, a, s, O + 2 * i, mods="neg_lo:[1,0,0] neg_hi:[1,0,0]"))
        k(pk("fma", O + 2 * i, q, t2, a))
    rnd18(k, O, T)


def gen_mega(exact=True):
    k = K("mega_kernel")
    k.kid = 0
    k.wsg = 18
    Lexit = k.label("exit")
    DAH = 4
    RING = 6
    NV = 56
    WRG = 192
    DUM = WRG + 4 * RING
    k.agpr = DUM + 4
    k.vgpr = 256
    k.sgpr = 70
    VX, VD, VB, VD2 = 4, 8, 12, 27
    P1, P2 = F * 2, D * 2

    def publish(off_sgpr_or_imm):
        Lw = k.label("pubskip")
        k(f"""s_waitcnt vmcnt(0) lgkmcnt(0)
s_barrier
s_cmp_lg_u32 s18, 0
s_cbranch_scc1 {Lw}
s_mov_b64 exec, {(1 << NREP) - 1}
v_mul_u32_u24 v2, {REPS}, v1
v_add_u32 v2, {off_sgpr_or_imm}, v2
v_mov_b32 v3, s3
global_store_dword v2, v3, s[12:13] sc1
s_mov_b64 exec, -1""")
        k.put(Lw)

    def wait_flags(base, nlanes, barrier=True, sleep=1, x4=True, rep=True):
        Lw = k.label("wskip")
        Lp = k.label("poll")
        Lq = k.label("pdone")
        k(f"""s_cmp_lg_u32 s18, 0
s_cbranch_scc1 {Lw}
v_min_u32 v2, {nlanes-1}, v1
v_lshlrev_b32 v2, {4 if x4 else 2}, v2
v_add_u32 v2, {base}, v2
s_and_b32 s36, s2, {NREP - 1}
s_mul_i32 s36, s36, {REPS if rep else 0}
v_add_u32 v2, s36, v2
s_mov_b32 s36, 0""")
        k.put(Lp)
        if x4:
            k(f"""global_load_dwordx4 v[28:31], v2, s[12:13] sc1
s_add_u32 s36, s36, 1
s_waitcnt vmcnt(0)
v_xor_b32 v28, s3, v28
v_xor_b32 v29, s3, v29
v_xor_b32 v30, s3, v30
v_xor_b32 v31, s3, v31
v_or3_b32 v28, v28, v29, v30
v_or_b32 v28, v28, v31
v_cmp_ne_u32 vcc, 0, v28""")
        else:
            k(f"""global_load_dword v28, v2, s[12:13] sc1
s_add_u32 s36, s36, 1
s_waitcnt vmcnt(0)
v_cmp_ne_u32 vcc, s3, v28""")
        k(f"""s_cmp_ge_u32 s36, {SPIN_MAX}
s_cbranch_scc1 {Lq}
s_cbranch_vccz {Lq}
s_sleep {sleep}
s_branch {Lp}""")
        k.put(Lq)
        k.put(Lw)
        if barrier:
            k("s_barrier")

    def modflag_load():
        k(f"""v_min_u32 v2, 53, v1
v_lshlrev_b32 v2, 2, v2
s_and_b32 s36, s2, {NREP - 1}
s_mul_i32 s36, s36, {REPS}
s_add_u32 s36, s36, {F1 + 144 * 4}
v_add_u32 v2, s36, v2
global_load_dword v28, v2, s[12:13] sc1""")

    def modp_issue():
        k.srd_off(56, 10, 11, WS_MODP, 9216)
        k("""s_movk_i32 s36, 4096
s_movk_i32 s37, 8192
v_lshlrev_b32 v29, 4, v1""")
        for i in range(9):
            so = "0" if i < 4 else ("s36" if i < 8 else "s37")
            k(f"buffer_load_dwordx4 a[{4*i}:{4*i+3}], v29, s[56:59], {so} offen offset:{1024*(i%4)} sc1")
        k("s_mov_b32 s33, 1" if False else "s_mov_b32 s47, 1")

    def modp_blocking():
        Lp = k.label("mpoll")
        Lq = k.label("mdone")
        k("s_mov_b32 s38, 0")
        k.put(Lp)
        modflag_load()
        k(f"""s_add_u32 s38, s38, 1
s_waitcnt vmcnt(0)
v_cmp_ne_u32 vcc, s3, v28
s_cmp_ge_u32 s38, {SPIN_MAX}
s_cbranch_scc1 {Lq}
s_cbranch_vccz {Lq}
s_sleep 8
s_branch {Lp}""")
        k.put(Lq)
        modp_issue()

    k(f"""s_cmp_ge_u32 s2, 256
s_cbranch_scc1 {Lexit}""")
    k.stamp_init()
    Lp0mod = k.label("p0mod")
    Lp0idle = k.label("p0idle")
    Lp0done = k.label("p0done")
    Lnw0 = k.label("nonce_skip")
    k(f"""s_load_dwordx4 s[4:7], s[0:1], {ARG['k']}
s_load_dwordx2 s[8:9], s[0:1], {ARG['shift']}
s_load_dwordx4 s[48:51], s[0:1], {ARG['c']}
s_load_dwordx4 s[52:55], s[0:1], {ARG['dbg']}
s_load_dwordx2 s[64:65], s[0:1], {ARG['ssmk']}
s_load_dwordx2 s[66:67], s[0:1], {ARG['q']}
s_memrealtime s[56:57]
s_getreg_b32 s69, hwreg(HW_REG_XCC_ID, 0, 4)
s_mov_b32 s40, 0xffff0000
v_and_b32 v1, 63, v0
v_lshrrev_b32 v2, 6, v0
s_nop 0
v_readfirstlane_b32 s18, v2
v_and_b32 v4, 7, v0
v_lshrrev_b32 v5, 3, v0
s_waitcnt lgkmcnt(0)
s_mov_b32 s10, s54
s_mov_b32 s11, s55
s_add_u32 s12, s10, {WS_CNT}
s_addc_u32 s13, s11, 0
v_mov_b32 v252, 0
s_cmp_lg_u32 s18, 0
s_cbranch_scc1 {Lnw0}
s_cmp_lg_u32 s2, 255
s_cbranch_scc1 {Lnw0}
s_or_b32 s56, s56, 1
s_lshl_b32 s56, s56, 4
s_mov_b64 exec, 1
v_mov_b32 v250, s56
global_store_dword v252, v250, s[52:53] sc1
s_mov_b64 exec, -1""")
    k.put(Lnw0)
    if os.environ.get("ST0"):
        k.stamp(14)

    def nonce_resolve():
        L = k.label("nres")
        Lp = k.label("npoll")
        Lq = k.label("ndone")
        k(f"""s_cmp_lg_u32 s18, 0
s_cbranch_scc1 {L}
s_mov_b32 s36, 0""")
        k.put(Lp)
        k(f"""global_load_dword v253, v252, s[52:53] sc1
s_add_u32 s36, s36, 1
s_waitcnt vmcnt(0)
v_readfirstlane_b32 s3, v253
s_cmp_ge_u32 s36, {SPIN_MAX}
s_cbranch_scc1 {Lq}
s_cmp_eq_u32 s3, 0
s_cbranch_scc1 {Lp}""")
        k.put(Lq)
        k(f"""v_mov_b32 v250, s3
v_mov_b32 v251, {NONCE_LDS}
ds_write_b32 v251, v250
s_add_u32 s36, s69, 1
s_or_b32 s36, s36, s3
s_lshl_b32 s37, s2, 2
s_add_u32 s37, s37, {FREG}
s_mov_b64 exec, 1
v_mov_b32 v250, s36
v_mov_b32 v251, s37
global_store_dword v251, v250, s[12:13] sc1
s_mov_b64 exec, -1""")
        k.put(L)

    def conv_early():
        L = k.label("noconv_early")
        k(f"""s_cmp_ge_u32 s2, 144
s_cbranch_scc1 {L}
s_mul_i32 s14, s18, {CONV_LDS}
s_lshl_b32 s15, s2, 2
s_add_u32 s15, s15, s18
v_mov_b32 v244, 0
v_mov_b32 v245, 0
v_mov_b32 v246, 0
v_mov_b32 v247, 0
v_bfe_u32 v240, v1, 2, 2
v_and_b32 v241, 3, v1
v_mul_u32_u24 v240, {SU}, v240
v_lshl_add_u32 v240, v241, 4, v240
v_add_u32 v240, s14, v240
ds_write_b128 v240, v[244:247] offset:4096
v_lshrrev_b32 v240, 5, v1
v_mul_u32_u24 v240, {SK}, v240
v_and_b32 v241, 31, v1
v_lshl_add_u32 v240, v241, 4, v240
v_add_u32 v240, s14, v240
ds_write_b128 v240, v[244:247] offset:{KB}
s_lshl_b32 s36, s15, 12
v_lshlrev_b32 v240, 4, v1""")
        k.srd_off(60, 64, 65, "s36", 4096)
        k("s_waitcnt lgkmcnt(0)")
        for dst in (KB + 456, KB + SK + 448):
            k(f"s_add_u32 m0, s14, {dst}")
            k("s_nop 0")
            for i in range(4):
                k(f"buffer_load_dwordx4 v240, s[60:63], 0 offen offset:{1024*i} lds")
        k.put(L)

    X = 200
    O = 218

    def x_loads():
        k.srd(56, 66, 67, SD2)
        for i in range(18):
            k(f"v_mov_b32 v{X+i}, 0")
        k(f"""s_lshl_b32 s68, s2, 3
s_lshl_b32 s37, s18, 1
s_add_u32 s68, s68, s37
s_mul_i32 s68, s68, 1152
v_lshlrev_b32 v236, 1, v1""")
        for r in range(2):
            for i in range(9):
                k(f"buffer_load_short_d16_hi v{X+2*i+r}, v236, s[56:59], s68 offen offset:{1152*r + 128*i}")

    k(f"""s_cmp_ge_u32 s2, {NKV + 54}
s_cbranch_scc1 {Lp0idle}
s_cmp_ge_u32 s2, {NKV}
s_cbranch_scc1 {Lp0mod}""")
    k.srd(20, 4, 5, SD2)
    k.srd(24, 6, 7, SD2)
    k.srd(28, 8, 9, D * 8)
    k.srd(32, 10, 11, WS_Y2T)
    k(f"""s_mul_i32 s16, s2, 2979
s_lshr_b32 s16, s16, 16
s_mul_i32 s17, s16, 22
s_sub_u32 s17, s2, s17
v_and_b32 v4, 15, v0
v_lshrrev_b32 v5, 4, v0
s_mul_i32 s36, s17, {96*1152}
v_mul_u32_u24 v3, {6*1152}, v5
s_lshl_b32 s37, s16, 7
s_add_u32 s36, s36, s37
v_lshl_add_u32 v3, v4, 3, v3
v_add_u32 v3, s36, v3""")
    A0 = 6
    for r in range(4):
        k(f"v_add_u32 v{A0+r}, {((r - 4) * 1152) & 0xffffffff:#x}, v3")
    k("v_add_u32 v10, 3456, v3")

    def rowaddr(r):
        if r < 4:
            return f"v{A0+r}", 0
        if r < 7:
            return "v3", 1152 * (r - 4)
        return "v10", 1152 * (r - 7)
    KR = 16
    VR = 36
    WR = 52
    for r in range(10):
        a, o = rowaddr(r)
        k(f"buffer_load_dwordx2 v[{KR+2*r}:{KR+2*r+1}], {a}, s[20:23], 0 offen offset:{o}")
    for r in range(7):
        a, o = rowaddr(r + 3)
        k(f"buffer_load_dwordx2 v[{VR+2*r}:{VR+2*r+1}], {a}, s[24:27], 0 offen offset:{o}")
    k(f"""s_lshl_b32 s36, s16, 9
v_lshl_add_u32 v11, v4, 5, s36""")
    for i in range(2):
        k(f"buffer_load_dwordx4 v[{WR+4*i}:{WR+4*i+3}], v11, s[28:31], 0 offen offset:{16*i}")
    conv_early()
    x_loads()
    k("""v_sub_u32 v11, 15, v5
v_mul_u32_u24 v11, 3, v11""")
    for e in range(3):
        k(f"""v_add_u32 v15, {e}, v11
v_lshrrev_b32 v{12+e}, 2, v15
v_xor_b32 v{12+e}, v{12+e}, v4
v_lshlrev_b32 v{12+e}, 4, v{12+e}
v_and_b32 v15, 3, v15
v_lshl_add_u32 v{12+e}, v15, 2, v{12+e}
v_lshl_add_u32 v{12+e}, v4, 10, v{12+e}
v_add_u32 v{12+e}, {P0_LDS}, v{12+e}""")
    WF = 60
    KF = 76
    U = 116
    P = 144
    Lwa = k.label("kvw_a")
    Lwb = k.label("kvw_b")
    k(f"""s_cmp_ge_u32 s2, 144
s_cbranch_scc1 {Lwa}
s_waitcnt vmcnt(26)
s_branch {Lwb}""")
    k.put(Lwa)
    k("s_waitcnt vmcnt(18)")
    k.put(Lwb)
    k.stamp(2)
    for j in range(4):
        k(f"""v_lshlrev_b32 v{WF+0*4+j}, 16, v{WR+2*j}
v_and_b32 v{WF+1*4+j}, s40, v{WR+2*j}
v_lshlrev_b32 v{WF+2*4+j}, 16, v{WR+2*j+1}
v_and_b32 v{WF+3*4+j}, s40, v{WR+2*j+1}""")
    for r in range(10):
        for q in range(2):
            k(f"""v_lshlrev_b32 v{KF+4*r+2*q}, 16, v{KR+2*r+q}
v_and_b32 v{KF+4*r+2*q+1}, s40, v{KR+2*r+q}""")
    for o in range(7):
        for q in range(2):
            for t in range(4):
                k(f"v_pk_mul_f32 v[{P+2*t}:{P+2*t+1}], v[{KF+4*(o+t)+2*q}:{KF+4*(o+t)+2*q+1}], v[{WF+4*(3-t)+2*q}:{WF+4*(3-t)+2*q+1}]")
            k(f"""v_lshlrev_b32 v{P+12}, 16, v{VR+2*o+q}
v_and_b32 v{P+13}, s40, v{VR+2*o+q}""")
            for t in range(4):
                rnd_pair(k, P + 2 * t, P + 2 * t + 1, P + 8 + t, 40)
            for t in range(1, 4):
                k(f"v_pk_add_f32 v[{P}:{P+1}], v[{P}:{P+1}], v[{P+2*t}:{P+2*t+1}]")
                rnd_pair(k, P, P + 1, P + 8, 40)
            k(f"v_pk_mul_f32 v[{U+4*o+2*q}:{U+4*o+2*q+1}], v[{P}:{P+1}], v[{P+12}:{P+13}]")
    n = 0
    for j in range(4):
        for e in range(3):
            hi = 6 - 2 * e
            b = P + 2 * (n % 4)
            n += 1
            k(f"""v_cvt_pk_bf16_f32 v{b}, v{U+4*hi+j}, v{U+4*(hi-1)+j}
v_cvt_pk_bf16_f32 v{b+1}, v{U+4*(hi-1)+j}, v{U+4*(hi-2)+j}
ds_write_b32 v{12+e}, v{b} offset:{j*256}
ds_write_b32 v{12+e}, v{b+1} offset:{16384+j*256}""")
    nonce_resolve()
    k(f"""v_lshrrev_b32 v8, 2, v5
v_xor_b32 v8, v4, v8
v_lshlrev_b32 v8, 4, v8
v_lshl_add_u32 v8, v5, 8, v8
v_add_u32 v8, {P0_LDS}, v8
s_mul_i32 s36, s16, {64*RS}
s_mul_i32 s37, s17, 192
s_sub_u32 s36, s36, s37
s_add_u32 s36, s36, {4096 - 192}
v_mul_u32_u24 v9, {RS}, v5
v_lshl_add_u32 v9, v4, 4, v9
v_add_u32 v9, s36, v9
v_cmp_gt_u32 vcc, 12, v4
s_waitcnt lgkmcnt(0)
s_barrier""")
    for it in range(4):
        k(f"v_xor_b32 v{10+it}, {64*it}, v8")
    k(f"v_mov_b32 v250, {NONCE_LDS}\nds_read_b32 v250, v250")
    for a in range(2):
        for it in range(4):
            k(f"ds_read_b128 v[{16+16*a+4*it}:{16+16*a+4*it+3}], v{10+it} offset:{16384*a + 4096*it}")
    k("s_mov_b64 exec, vcc")
    for a in range(2):
        for it in range(4):
            k(f"""v_add_u32 v15, {WS_UR1*a + 16*RS*it}, v9
s_waitcnt lgkmcnt({7 - 4*a - it})
buffer_store_dwordx4 v[{16+16*a+4*it}:{16+16*a+4*it+3}], v15, s[32:35], 0 offen sc1""")
    k(f"""s_mov_b64 exec, -1
v_readfirstlane_b32 s3, v250
s_branch {Lp0done}""")

    k.put(Lp0mod)
    k(f"s_sub_u32 s16, s2, {NKV}")
    k.srd(20, 48, 49, D * 2)
    k.srd(24, 50, 51, D * 6 * D * 2)
    k.srd_off(28, 10, 11, WS_MODP, 0x8000)
    WL = 32
    CL = 8
    k(f"""s_movk_i32 s37, 6912
v_mul_lo_u32 v3, v5, s37
s_lshl_b32 s36, s16, 7
v_lshl_add_u32 v6, v4, 4, s36
v_add_u32 v3, v3, v6
v_lshlrev_b32 v6, 1, v5""")
    for i in range(18):
        k(f"v_mov_b32 v{CL+i}, 0")
    for i in range(18):
        k(f"buffer_load_short_d16_hi v{CL+i}, v6, s[20:23], 0 offen offset:{64*i}")
    k("s_mov_b32 s36, 0")
    for i in range(18):
        k(f"buffer_load_dwordx4 v[{WL+4*i}:{WL+4*i+3}], v3, s[24:27], s36 offen")
        if i < 17:
            k(f"s_add_u32 s36, s36, {32*6912}")
    k("s_mov_b32 s37, 0xbfb8aa3b")
    k("s_waitcnt vmcnt(18)")
    for i in range(18):
        k(f"v_mul_f32 v{104+i}, s37, v{CL+i}")
    for i in range(18):
        k(f"v_exp_f32 v{104+i}, v{104+i}")
    for i in range(18):
        k(f"v_add_f32 v{104+i}, 1.0, v{104+i}")
    for i in range(18):
        k(f"v_rcp_f32 v{104+i}, v{104+i}")
    k("s_nop 0")
    for i in range(18):
        k(f"v_mul_f32 v{CL+i}, v{CL+i}, v{104+i}")
    for i in range(0, 18, 2):
        rnd_pair(k, CL + i, CL + i + 1, 104 + i, 40)
    ACC = 124
    for j in range(8):
        k(f"v_mov_b32 v{ACC+j}, 0")
    for i in range(18):
        k(f"s_waitcnt vmcnt({17-i})")
        for q in range(4):
            k(f"""v_lshlrev_b32 v{104+2*q}, 16, v{WL+4*i+q}
v_and_b32 v{104+2*q+1}, s40, v{WL+4*i+q}""")
        for j in range(8):
            k(f"v_fmac_f32 v{ACC+j}, v{CL+i}, v{104+j}")
    x_loads()
    nonce_resolve()
    Lm1 = k.label("mod_w0")
    k(f"""v_lshlrev_b32 v6, 8, v5
v_lshl_add_u32 v6, v4, 5, v6
ds_write_b128 v6, v[{ACC}:{ACC+3}]
ds_write_b128 v6, v[{ACC+4}:{ACC+7}] offset:16
v_lshlrev_b32 v7, 2, v0
s_waitcnt lgkmcnt(0)
s_barrier
v_mov_b32 v250, {NONCE_LDS}
ds_read_b32 v250, v250
s_waitcnt lgkmcnt(0)
v_readfirstlane_b32 s3, v250
s_cmp_lg_u32 s18, 0
s_cbranch_scc1 {Lp0done}""")
    for i in range(32):
        k(f"ds_read_b32 v{32+i}, v7 offset:{256*i}")
    k("s_waitcnt lgkmcnt(0)")
    for st in (16, 8, 4, 2, 1):
        for i in range(st):
            k(f"v_add_f32 v{32+i}, v{32+i}, v{32+i+st}")
    k(f"""s_mul_i32 s17, s16, 7282
s_lshr_b32 s17, s17, 16
s_mul_i32 s36, s17, 9
s_sub_u32 s36, s16, s36
v_cvt_pk_bf16_f32 v33, v32, v32
v_and_b32 v32, s40, v33
v_add_f32 v34, 1.0, v32
v_cvt_pk_bf16_f32 v34, v34, v34
s_cmp_eq_u32 s17, 1
s_cselect_b32 s37, 1, 0
s_cmp_eq_u32 s17, 4
s_cselect_b32 s37, 1, s37
s_cmp_eq_u32 s37, 1
s_cselect_b64 vcc, -1, 0
s_lshl_b32 s36, s36, 6
v_add_u32 v8, s36, v0
v_cndmask_b32 v33, v33, v34, vcc
v_lshlrev_b32 v9, 4, v8
s_lshl_b32 s37, s17, 1
buffer_store_short v33, v9, s[28:31], s37 offen sc1
s_cmp_lg_u32 s17, 5
s_cbranch_scc1 {Lp0done}
v_lshlrev_b32 v9, 2, v8
s_movk_i32 s37, 0x4000
buffer_store_dword v32, v9, s[28:31], s37 offen
s_branch {Lp0done}""")

    k.put(Lp0idle)
    k(f"""s_getpc_b64 s[4:5]
s_add_u32 s4, s4, code_begin@rel32@lo+4
s_addc_u32 s5, s5, code_begin@rel32@hi+12
s_getpc_b64 s[6:7]
s_add_u32 s6, s6, desc_begin@rel32@lo+4
s_addc_u32 s7, s7, desc_begin@rel32@hi+12
v_lshlrev_b32 v6, 7, v0
v_min_u32 v7, code_end-code_begin-4, v6
v_add_u32 v8, 32768, v6
v_min_u32 v8, code_end-code_begin-4, v8
v_lshlrev_b32 v9, 6, v4
v_min_u32 v9, desc_end-desc_begin-4, v9
global_load_dword v10, v7, s[4:5]
global_load_dword v11, v8, s[4:5]
global_load_dword v12, v9, s[6:7]""")
    x_loads()
    nonce_resolve()
    k(f"""s_waitcnt lgkmcnt(0)
s_barrier
v_mov_b32 v250, {NONCE_LDS}
ds_read_b32 v250, v250
s_waitcnt lgkmcnt(0)
v_readfirstlane_b32 s3, v250""")
    k.put(Lp0done)
    k.stamp(3)
    k(f"""s_load_dwordx4 s[4:7], s[0:1], {ARG['ssmk']}
s_load_dwordx4 s[48:51], s[0:1], {ARG['wg']}
s_load_dwordx2 s[8:9], s[0:1], {ARG['wd']}
s_lshl_b32 s36, s16, 5
s_add_u32 s36, s36, s17
s_lshl_b32 s36, s36, 2
s_lshl_b32 s37, s2, 2
s_add_u32 s37, s37, {F1 - 54*4}
s_cmp_lt_u32 s2, {NKV}
s_cselect_b32 s37, s36, s37""")
    publish("s37")
    if os.environ.get("ST1"):
        k.stamp(14)
    k("""s_mov_b32 s44, 0x3ae38e39
s_mov_b32 s45, 0x3727c5ac""")
    Lp1pf = k.label("p1pf")
    Lp1done = k.label("p1done")
    Lln = k.label("ln1")
    Lpf2 = k.label("p1pf2")
    k(f"""s_cmp_ge_u32 s2, 144
s_cbranch_scc1 {Lp1pf}""")
    k.put(Lln)
    layernorm2(k, X, O, 240, 244)
    k(f"""s_cmp_ge_u32 s2, 144
s_cbranch_scc1 {Lpf2}""")
    k(f"""v_and_b32 v17, 15, v1
v_lshrrev_b32 v18, 4, v1
v_lshrrev_b32 v19, 2, v17
v_and_b32 v8, 3, v1
s_movk_i32 s16, {SU}
s_movk_i32 s17, {SK}
s_lshl_b32 s37, s15, 1
s_and_b32 s37, s37, 0xfffffffc
v_lshlrev_b32 v11, 4, v1
s_load_dword s41, s[6:7], s37
s_mul_i32 s36, s15, {RS}
s_add_u32 s38, s10, s36
s_addc_u32 s39, s11, 0""")
    k.srd_off(24, 38, 39, WS_UR0, 4096)
    k.srd_off(28, 38, 39, WS_UR1, 4096)
    k.srd_off(32, 10, 11, WS_Y2T, SD2)

    def dma_copy(srd, dst, sc):
        k(f"s_add_u32 m0, s14, {dst}")
        k("s_nop 0")
        for i in range(4):
            k(f"buffer_load_dwordx4 v11, s[{srd}:{srd+3}], 0 offen offset:{1024*i}{sc} lds")
    k(f"""v_mul_u32_u24 v12, s16, v8
v_sub_u32 v13, v18, v19
v_lshl_add_u32 v12, v13, 4, v12
v_add_u32 v12, 48, v12
v_add_u32 v12, s14, v12
v_and_b32 v13, 1, v1
v_mul_u32_u24 v13, s17, v13
v_lshrrev_b32 v14, 1, v17
v_lshl_add_u32 v13, v14, 6, v13
v_lshl_add_u32 v13, v18, 4, v13
v_add_u32 v13, {KB}, v13
v_add_u32 v13, s14, v13
v_and_b32 v15, 1, v1
v_lshlrev_b32 v15, 3, v15
v_lshl_add_u32 v16, v14, 6, v15
v_lshl_add_u32 v16, v18, 4, v16
v_sub_u32 v16, {3*SU + 4104 - 3584}, v16
v_add_u32 v16, s14, v16
v_lshrrev_b32 v9, 1, v18
v_lshl_add_u32 v14, v14, 1, v9
v_lshl_add_u32 v15, v14, 7, v15
v_and_b32 v9, 1, v18
v_lshl_add_u32 v15, v9, 4, v15
s_lshl_b32 s36, s18, 5
s_add_u32 s36, s36, {YT_LDS}
v_add_u32 v15, s36, v15""")
    CACC = 32
    FR = 64
    for i in range(32):
        k(f"v_mov_b32 v{CACC+i}, 0")
    k(f"""s_lshr_b32 s36, s2, 4
s_lshl_b32 s37, s36, 7""")
    if os.environ.get("ST1"):
        k.stamp(15)
        k("s_waitcnt vmcnt(0)")
        k.stamp(13)
    wait_flags("s37", 22, x4=False)
    k.stamp(6)
    for srd, dst in [(28, 12), (24, SU + 12), (28, 2 * SU + 16), (24, 3 * SU + 16)]:
        dma_copy(srd, dst, " sc1")
    modflag_load()

    def creads(r):
        st = r & 1
        out = []
        for n in range(8):
            out.append(f"ds_read_b128 v[{FR+64*st+4*n}:{FR+64*st+4*n+3}], v12 offset:{3648 - 48 + 64*r - 512*n}")
            out.append(f"ds_read_b128 v[{FR+64*st+32+4*n}:{FR+64*st+32+4*n+3}], v13 offset:{64*r + 512*n}")
        return out
    Lnm = k.label("nomodp")
    k("s_waitcnt vmcnt(0)")
    k.stamp(7)
    for ln in creads(0):
        k(ln)
    k(f"""v_cmp_ne_u32 vcc, s3, v28
s_mov_b32 s47, 0
s_nop 3
s_cbranch_vccnz {Lnm}""")
    modp_issue()
    k.put(Lnm)
    Lc = k.label("cloop")
    k("s_mov_b32 s37, 0")
    k.put(Lc)
    for rr in range(2):
        st = rr
        nxt = creads(rr + 1)
        k("s_waitcnt lgkmcnt(0)")
        i = 0
        for w in range(8):
            for q in range(8 - w):
                t = q + w
                k(f"v_mfma_f32_16x16x32_bf16 v[{CACC+4*t}:{CACC+4*t+3}], v[{FR+64*st+4*w}:{FR+64*st+4*w+3}], v[{FR+64*st+32+4*q}:{FR+64*st+32+4*q+3}], v[{CACC+4*t}:{CACC+4*t+3}]")
                if i < len(nxt):
                    k(nxt[i])
                i += 1
    k(f"""v_add_u32 v12, 128, v12
v_add_u32 v13, 128, v13
s_add_u32 s37, s37, 1
s_cmp_lt_u32 s37, 4
s_cbranch_scc1 {Lc}
s_waitcnt lgkmcnt(0)""")
    k.stamp(8)
    UV = FR
    for t in range(8):
        k(f"ds_read_b64 v[{UV+2*t}:{UV+2*t+1}], v16 offset:{512*(7-t)}")
    k(f"""s_and_b32 s42, s15, 1
s_lshl_b32 s43, s41, 16
s_and_b32 s41, s41, s40
s_cmp_eq_u32 s42, 0
s_cselect_b32 s41, s43, s41
s_waitcnt lgkmcnt(0)""")
    T = FR + 32
    for t in range(8):
        a = CACC + 4 * t
        u0, u1 = UV + 2 * t, UV + 2 * t + 1
        b = T + 8 * (t & 1)
        k(f"""v_and_b32 v{b}, s40, v{u1}
v_lshlrev_b32 v{b+1}, 16, v{u1}
v_and_b32 v{b+2}, s40, v{u0}
v_lshlrev_b32 v{b+3}, 16, v{u0}
v_pk_mul_f32 v[{b}:{b+1}], v[{b}:{b+1}], s[42:43] op_sel_hi:[1,0]
v_pk_mul_f32 v[{b+2}:{b+3}], v[{b+2}:{b+3}], s[42:43] op_sel_hi:[1,0]""" if False else f"""v_and_b32 v{b}, s40, v{u1}
v_lshlrev_b32 v{b+1}, 16, v{u1}
v_and_b32 v{b+2}, s40, v{u0}
v_lshlrev_b32 v{b+3}, 16, v{u0}
v_mul_f32 v{b}, s41, v{b}
v_mul_f32 v{b+1}, s41, v{b+1}
v_mul_f32 v{b+2}, s41, v{b+2}
v_mul_f32 v{b+3}, s41, v{b+3}""")
        rnd_pair(k, b, b + 1, b + 4, 40)
        rnd_pair(k, b + 2, b + 3, b + 5, 40)
        rnd_pair(k, a, a + 1, b + 4, 40)
        rnd_pair(k, a + 2, a + 3, b + 5, 40)
        k(f"""v_pk_add_f32 v[{b}:{b+1}], v[{b}:{b+1}], v[{a}:{a+1}]
v_pk_add_f32 v[{b+2}:{b+3}], v[{b+2}:{b+3}], v[{a+2}:{a+3}]
v_cvt_pk_bf16_f32 v{b+6}, v{b}, v{b+1}
v_cvt_pk_bf16_f32 v{b+7}, v{b+2}, v{b+3}
ds_write_b64 v15, v[{b+6}:{b+7}] offset:{2048*t}""")
    k(f"""v_lshlrev_b32 v4, 4, v0
v_add_u32 v4, {YT_LDS}, v4
v_lshrrev_b32 v5, 3, v0
v_mul_u32_u24 v5, 18432, v5
v_and_b32 v6, 7, v0
v_lshl_add_u32 v5, v6, 4, v5
s_lshl_b32 s36, s2, 7
s_waitcnt lgkmcnt(0)
s_barrier""")
    for it in range(4):
        k(f"ds_read_b128 v[{32+4*it}:{35+4*it}], v4 offset:{4096*it}")
    for it in range(4):
        k(f"""s_waitcnt lgkmcnt({3-it})
buffer_store_dwordx4 v[{32+4*it}:{35+4*it}], v5, s[32:35], s36 offen sc1
s_add_u32 s36, s36, {32*18432}""")
    k(f"""s_lshl_b32 s37, s2, 2
s_add_u32 s37, s37, {F1}""")
    publish("s37")
    k(f"s_branch {Lp1done}")
    k.put(Lp1pf)
    k.srd(20, 48, 49, D * F * 2)
    k(f"""s_sub_u32 s38, s2, 144
s_lshl_b32 s38, s38, 2
s_add_u32 s38, s38, s18
s_lshl_b32 s38, s38, 13
s_add_u32 s39, s38, {448*8192}
v_lshlrev_b32 v4, 7, v1
buffer_load_dword v254, v4, s[20:23], s38 offen
buffer_load_dword v255, v4, s[20:23], s39 offen""")
    wait_flags("0", 22, sleep=16, x4=False)
    k(f"s_branch {Lln}")
    k.put(Lpf2)
    k("""s_mov_b32 s42, s38""")
    modp_blocking()
    k("""s_mov_b32 s38, s42""")
    k.srd(24, 50, 51, D * F * 2)
    k.srd(28, 8, 9, D * F * 2)
    k.srd_off(32, 10, 11, WS_HM, HM_BYTES)
    k(f"""buffer_load_dword v254, v4, s[24:27], s38 offen
buffer_load_dword v255, v4, s[24:27], s39 offen""")
    k(f"""s_sub_u32 s36, s2, 144
s_lshr_b32 s36, s36, 3
s_lshl_b32 s36, s36, 2
s_add_u32 s36, s36, s18
s_lshl_b32 s36, s36, 1
v_lshrrev_b32 v5, 5, v1
v_add_u32 v5, s36, v5
v_and_b32 v6, 31, v1
v_lshlrev_b32 v6, 7, v6
s_bfe_u32 s36, s2, 0x10002
s_mul_i32 s36, s36, {64*147456}
s_and_b32 s37, s2, 3
s_mul_i32 s37, s37, 36864
s_add_u32 s36, s36, s37
v_add_u32 v6, s36, v6
s_movk_i32 s37, 7282
s_mov_b32 s41, {147456 - 9*4096}""")
    for it in range(NHMT):
        k(f"""v_min_u32 v7, 575, v5
v_mul_lo_u32 v8, v7, s37
v_lshrrev_b32 v8, 16, v8
v_mul_lo_u32 v8, v8, s41
v_lshl_add_u32 v8, v7, 12, v8
v_add_u32 v8, v8, v6
v_add_u32 v5, 112, v5
s_waitcnt vmcnt({PFD - 1})
buffer_load_dword v254, v8, s[32:35], 0 offen sc1""")
    if PF_WD:
        k(f"""s_waitcnt vmcnt({PFD - 1})
buffer_load_dword v254, v4, s[28:31], s38 offen
s_waitcnt vmcnt({PFD - 1})
buffer_load_dword v255, v4, s[28:31], s39 offen""")
    k.put(Lp1done)
    k.stamp(9)

    k(f"""s_waitcnt lgkmcnt(0)
s_mov_b32 s4, s48
s_mov_b32 s5, s49
s_mov_b32 s6, s50
s_mov_b32 s7, s51
s_and_b32 s16, s2, 7
s_lshr_b32 s17, s2, 3
s_lshr_b32 s19, s18, 1
s_and_b32 s20, s18, 1
s_and_b32 s53, s17, 3
s_and_b32 s62, s16, 3
s_lshr_b32 s37, s16, 2
s_lshl_b32 s52, s62, 1
s_bfe_u32 s36, s17, 0x10002
s_add_u32 s52, s52, s36
s_lshl_b32 s22, s37, 2
s_lshr_b32 s36, s17, 3
s_add_u32 s22, s22, s36
s_lshl_b32 s23, s22, 4
s_lshl_b32 s36, s18, 2
s_add_u32 s23, s23, s36
s_lshl_b32 s63, s37, 3
s_lshr_b32 s36, s17, 2
s_add_u32 s63, s63, s36
s_lshl_b32 s64, s63, 3
s_lshl_b32 s37, s20, 2
s_add_u32 s64, s64, s37
s_mul_i32 s36, s23, 18432""")
    Y = 50
    T = 86
    R = 90
    MP = 100
    k(f"v_lshl_add_u32 v{VX}, v1, 4, s36")
    for st in range(1, 4):
        k(f"v_add_u32 v{VX+st}, 18432, v{VX+st-1}")

    def dma_voffs(vd, pitch):
        k(f"""s_mul_i32 s37, s20, {32*pitch}
s_add_u32 s38, s38, s37
s_lshl_b32 s37, s53, 8
s_add_u32 s39, s38, s37
s_lshl_b32 s37, s53, 5
s_add_u32 s41, s38, s37
s_add_u32 s41, s41, 1024
s_movk_i32 s37, {pitch}
v_lshrrev_b32 v22, 4, v1
v_and_b32 v23, 15, v1
v_mul_lo_u32 v24, v22, s37
v_add_u32 v24, s39, v24
v_lshlrev_b32 v25, 1, v22
v_xor_b32 v25, v23, v25
v_lshl_add_u32 v{vd}, v25, 4, v24
v_xor_b32 v25, 8, v25
v_lshl_add_u32 v{vd+1}, v25, 4, v24
v_add_u32 v{vd+1}, {4*pitch}, v{vd+1}
v_lshrrev_b32 v22, 1, v1
v_mul_lo_u32 v24, v22, s37
v_and_b32 v23, 1, v1
v_lshl_add_u32 v24, v23, 4, v24
v_add_u32 v{vd+2}, s41, v24""")
    VD2 = 25
    k("s_mul_i32 s38, s52, 1152")
    dma_voffs(VD, P1)
    k(f"""s_mul_i32 s42, s19, 18432
s_lshl_b32 s36, s20, 10
s_add_u32 s43, s42, s36
s_add_u32 s43, s43, 16384
s_lshl_b32 s36, s20, 13
s_add_u32 s42, s42, s36
v_lshrrev_b32 v22, 2, v1
v_and_b32 v23, 3, v1
v_lshlrev_b32 v23, 3, v23
v_lshl_add_u32 v24, v22, 8, v23
v_and_b32 v25, 7, v22""")
    for t in range(8):
        k(f"""v_xor_b32 v26, {t}, v25
v_lshl_add_u32 v{VB+t}, v26, 5, v24""")
    k(f"""v_lshl_add_u32 v{VB+8}, v22, 5, v23
v_add_u32 v{VB+8}, 16384, v{VB+8}
s_mov_b32 s54, 0
s_mov_b32 s55, 0
s_mov_b32 s46, 0
s_mov_b32 s65, {8*P1}
s_mov_b32 s66, {64*P1}
s_cmp_eq_u32 s19, 0
s_cselect_b32 s14, s4, s6
s_cselect_b32 s15, s5, s7""")
    k.srd(24, 14, 15, D * F * 2)

    def dma_list():
        out = []
        for n in range(8):
            pre = "s_add_u32 s60, s55, s42\ns_mov_b32 s61, s54\n" if n == 0 else ""
            post = "\ns_add_u32 s61, s61, s65" if (n & 1) and n < 7 else ""
            out.append(f"""{pre}s_add_u32 m0, s60, {1024*n}
s_nop 0
buffer_load_dwordx4 v{VD+(n&1)}, s[24:27], s61 offen lds{post}""")
        out.append(f"""s_add_u32 m0, s55, s43
s_nop 0
buffer_load_dwordx4 v{VD+2}, s[24:27], s54 offen lds
s_add_u32 s54, s54, s66
s_add_u32 s55, s55, {STG}
s_cmp_ge_u32 s55, {STG*NBUF}
s_cselect_b32 s55, 0, s55""")
        return out
    k.srd_off(28, 10, 11, WS_Y2T, SD2)
    BC = "op_sel_hi:[1,0]"
    Lhm = k.label("havemodp")
    Lwm = k.label("waitmodp")
    k(f"""s_cmp_eq_u32 s47, 1
s_cbranch_scc1 {Lhm}""")
    modp_blocking()
    k.put(Lhm)
    k(f"""s_lshr_b32 s38, s2, 1
s_mul_i32 s38, s38, 18432
s_and_b32 s36, s2, 1
s_lshl_b32 s36, s36, 4
s_add_u32 s38, s38, s36
s_lshl_b32 s36, s18, 12
s_add_u32 s38, s38, s36
s_add_u32 s39, s38, 2048
v_lshlrev_b32 v141, 5, v1
v_lshlrev_b32 v142, 4, v1
s_lshl_b32 s36, s18, 2
s_add_u32 s36, s36, {ROW_LDS}
v_add_u32 v142, s36, v142
v_lshrrev_b32 v143, 5, v1
v_lshlrev_b32 v143, 9, v143
v_bfe_u32 v144, v1, 2, 2
v_lshl_add_u32 v143, v144, 7, v143
v_bfe_u32 v144, v1, 4, 1
v_lshl_add_u32 v143, v144, 3, v143
v_and_b32 v144, 3, v1
v_lshl_add_u32 v143, v144, 1, v143
s_lshl_b32 s36, s18, 5
s_add_u32 s36, s36, {ROW_LDS + 9216}
v_add_u32 v143, s36, v143
s_cmp_ge_u32 s2, 144
s_cbranch_scc1 {Lwm}
s_waitcnt vmcnt(0)""")
    k.put(Lwm)
    k(f"s_waitcnt vmcnt({2 + NHMT + (2 if PF_WD else 0)})")
    for i in range(9):
        for d in range(3):
            k(f"v_accvgpr_read_b32 v{MP+4*i+d}, a{4*i+d}")
    for i in range(9):
        k(f"v_and_b32 v{T+2*(i&1)}, s40, v{MP+4*i}")
        k(pk("mul", O + 2 * i, O + 2 * i, T + 2 * (i & 1), mods=BC))
    rnd18(k, O, T)
    for i in range(9):
        k(f"v_lshlrev_b32 v{T+2*(i&1)}, 16, v{MP+4*i}")
        k(pk("add", O + 2 * i, O + 2 * i, T + 2 * (i & 1), mods=BC))
    rnd18(k, O, T)
    k.stamp(10)
    wait_flags(str(F1), 36, sleep=SL1)
    k.stamp(11)
    Lno9 = k.label("no9")
    k(f"""s_lshl_b32 s37, s18, 11
s_add_u32 m0, s37, {ROW_LDS}
s_nop 0
buffer_load_dwordx4 v141, s[28:31], s38 offen sc1 lds
s_add_u32 m0, s37, {ROW_LDS + 1024}
s_nop 0
buffer_load_dwordx4 v141, s[28:31], s39 offen sc1 lds
s_cmp_lg_u32 s18, 0
s_cbranch_scc1 {Lno9}
s_add_u32 s38, s38, 16384
s_mov_b32 m0, {ROW_LDS + 8192}
s_nop 0
buffer_load_dwordx4 v141, s[28:31], s38 offen sc1 lds""")
    k.put(Lno9)
    k.srd_off(28, 10, 11, WS_X1, SD2)
    k.srd_off(32, 10, 11, WS_H2, SD2)
    ring0 = dma_list() + dma_list()

    def ring_some(n):
        for _ in range(n):
            if ring0:
                k(ring0.pop(0))
    k("""s_waitcnt vmcnt(0)
s_barrier""")
    for i in range(9):
        k(f"ds_read_b32 v{Y+i}, v142 offset:{1024*i}")
    for i in range(9):
        a = T + 2 * (i & 1)
        k(f"""s_waitcnt lgkmcnt({8-i})
v_lshlrev_b32 v{a}, 16, v{Y+i}
v_and_b32 v{a+1}, s40, v{Y+i}""")
        k(pk("mul", O + 2 * i, O + 2 * i, a))
    if os.environ.get("ST2"):
        k.stamp(13)
    rnd18(k, O, T)
    ring_some(5)
    for i in range(9):
        k(f"v_lshlrev_b32 v{T+2*(i&1)}, 16, v{MP+4*i+1}")
        k(pk("mul", O + 2 * i, O + 2 * i, T + 2 * (i & 1), mods=BC))
    rnd18(k, O, T)
    ring_some(4)
    for i in range(9):
        k(pk("add", X + 2 * i, X + 2 * i, O + 2 * i))
    rnd18(k, X, T)
    ring_some(5)
    layernorm2(k, X, O, T, R)
    ring_some(4)
    for i in range(9):
        k(f"v_lshlrev_b32 v{T+2*(i&1)}, 16, v{MP+4*i+2}")
        k(pk("mul", O + 2 * i, O + 2 * i, T + 2 * (i & 1), mods=BC))
    rnd18(k, O, T)
    for i in range(9):
        k(f"v_and_b32 v{T+2*(i&1)}, s40, v{MP+4*i+1}")
        k(pk("add", O + 2 * i, O + 2 * i, T + 2 * (i & 1), mods=BC))
        k(f"""v_cvt_pk_bf16_f32 v{O+2*i}, v{O+2*i}, v{O+2*i+1}
ds_write_b16 v143, v{O+2*i} offset:{1024*i}
ds_write_b16_d16_hi v143, v{O+2*i} offset:{1024*i+16}""")
    while ring0:
        k(ring0.pop(0))
    if os.environ.get("ST2"):
        k.stamp(14)
    Lno3 = k.label("no3rd")
    k(f"""v_lshlrev_b32 v142, 4, v0
v_add_u32 v142, {ROW_LDS + 9216}, v142
v_lshrrev_b32 v143, 3, v0
v_lshlrev_b32 v143, 8, v143
v_and_b32 v144, 7, v0
v_lshl_add_u32 v143, v144, 4, v143
s_lshr_b32 s36, s2, 1
s_mul_i32 s36, s36, 18432
s_and_b32 s37, s2, 1
s_lshl_b32 s37, s37, 7
s_add_u32 s36, s36, s37
s_add_u32 s37, s36, 8192
s_add_u32 s38, s36, 16384
s_waitcnt lgkmcnt(0)
s_barrier
ds_read_b128 v[32:35], v142
ds_read_b128 v[36:39], v142 offset:4096
s_cmp_lg_u32 s18, 0
s_cbranch_scc1 {Lno3}
ds_read_b128 v[40:43], v142 offset:8192
s_waitcnt lgkmcnt(0)
buffer_store_dwordx4 v[40:43], v143, s[32:35], s38 offen sc1""")
    k.put(Lno3)
    k(f"""s_waitcnt lgkmcnt(0)
buffer_store_dwordx4 v[32:35], v143, s[32:35], s36 offen sc1
buffer_store_dwordx4 v[36:39], v143, s[32:35], s37 offen sc1
s_lshl_b32 s37, s2, 2
s_add_u32 s37, s37, {F2}""")
    if os.environ.get("ST2"):
        k.stamp(15)
    publish("s37")
    k.stamp(12)
    for r in range(2):
        for i in range(9):
            k(f"buffer_store_short_d16_hi v{X+2*i+r}, v236, s[28:31], s68 offen offset:{1152*r + 128*i}")

    VD2 = 25
    k(f"""s_lshl_b32 s38, s62, 1
s_add_u32 s38, s38, s19
s_mul_i32 s38, s38, {576*P2}""")
    dma_voffs(32, P2)
    k(f"""v_mov_b32 v{VD2}, v32
v_mov_b32 v{VD2+1}, v33
v_mov_b32 v{VD2+2}, v34
s_mul_i32 s36, s52, 18
s_lshl_b32 s37, s53, 2
s_add_u32 s38, s36, s37
s_lshl_b32 s38, s38, 10
s_lshr_b32 s37, s53, 1
s_add_u32 s39, s36, s37
s_add_u32 s39, s39, 16
s_lshl_b32 s39, s39, 10
s_mul_i32 s36, s23, 147456
s_add_u32 s38, s38, s36
s_add_u32 s39, s39, s36
v_and_b32 v32, 15, v1
v_lshl_add_u32 v22, v32, 7, s38
v_add_u32 v23, 2048, v22
v_and_b32 v32, 3, v1
v_lshl_add_u32 v32, v32, 7, s39
v_add_u32 v33, 512, v32
v_lshrrev_b32 v24, 2, v1
v_cmp_eq_u32 vcc, 4, v24
s_mov_b32 s47, 0
s_nop 0
v_cndmask_b32 v22, v22, v32, vcc
v_cndmask_b32 v23, v23, v33, vcc
s_lshl_b32 s36, s17, 2
s_add_u32 s36, s36, s18
s_mul_i32 s36, s36, {11*128}
v_min_u32 v24, 10, v1
v_lshl_add_u32 v24, v24, 7, s36
s_mov_b32 s67, 0
s_mul_i32 s36, s62, {1152*P2}""")
    k.srd_off(56, 8, 9, "s36", 1152 * P2)
    k.srd_off(28, 10, 11, WS_H2, SD2)
    k.srd_off(32, 10, 11, WS_HM, HM_BYTES)

    def wfrag(slot, half=None):
        if half is None:
            return ar(WRG + 4 * slot, 4)
        return ar(WRG + 4 * slot + 2 * half, 2)

    class Ph:
        pass

    def make_phase(g1):
        p = Ph()
        p.g1 = g1
        p.NT = 18 if g1 else 9
        p.NACC = p.NT * 4
        p.NXS = 4
        p.XR = 64 if g1 else 0
        p.NF = 2 * p.NT
        p.acc = lambda ti: vr(32 + 4 * ti, 4) if ti < NV else ar(4 * (ti - NV), 4)
        p.xfrag = lambda xs, kk, st: ar(p.XR + 32 * xs + 16 * kk + 4 * st, 4)
        return p

    def xload_list(p, xs):
        out = []
        for kk in range(2):
            for st in range(4):
                out.append(f"buffer_load_dwordx4 {p.xfrag(xs, kk, st)}, v{VX+st}, s[28:31], s46 offen offset:{1024*kk} sc1")
        out[-1] += "\ns_add_u32 s46, s46, 2048"
        return out

    def zero_list(p):
        zl = []
        for ti in range(p.NACC):
            for r in range(4):
                if ti < NV:
                    zl.append(f"v_mov_b32 v{32+4*ti+r}, 0")
                else:
                    zl.append(f"v_accvgpr_write_b32 a{4*(ti-NV)+r}, 0")
        return zl

    def frag_info(p, f):
        kk = f // p.NT
        r = f % p.NT
        return kk, r % 9, r // 9

    def tr_reads(p, f, slot):
        kk, t, m = frag_info(p, f)
        if t < 8:
            off, hs = m * 18432 + kk * 8192, 4096
        else:
            off, hs = m * 18432 + kk * 1024, 512
        return [f"ds_read_b64_tr_b16 {wfrag(slot, 0)}, v{VB+t} offset:{off}",
                f"ds_read_b64_tr_b16 {wfrag(slot, 1)}, v{VB+t} offset:{off + hs}"]

    def pf_list(xs):
        out = []
        if G1_HM:
            out.append(f"buffer_load_dword a{DUM}, v{22+(xs&1)}, s[32:35], s47 offen sc1" + ("\ns_add_u32 s47, s47, 147456" if xs & 1 else ""))
        if G1_WD:
            out.append(f"buffer_load_dword a{DUM+1}, v24, s[56:59], s67 offen\ns_add_u32 s67, s67, {128*11*128}")
        return out

    def stage(p, xs, last, pre=None):
        NF = p.NF
        if last:
            vm = dma_list() if p.g1 else []
        else:
            vm = dma_list() + xload_list(p, (xs + p.NXS - 1) % p.NXS)
            if p.g1:
                vm += pf_list(xs)
        nvm = len(vm)
        WB = nvm + 8
        PB = NF - DAH
        slots = {}
        for i in range(nvm):
            slots.setdefault(i * PB // nvm, []).append(vm[i])
        if pre:
            k(pre)
        if not last:
            k(f"""s_add_u32 s48, s48, {STG}
s_cmp_ge_u32 s48, {STG*NBUF}
s_cselect_b32 s49, {(-STG*(NBUF-1)) & 0xffffffff:#x}, s50
s_cselect_b32 s48, 0, s48""")
        for f in range(NF):
            kk, t, m = frag_info(p, f)
            fa = f + DAH
            if f == PB and not last:
                k(f"s_waitcnt vmcnt({WB})")
                k("s_barrier")
            rd = []
            upd = None
            if fa < NF:
                rd = tr_reads(p, fa, fa % RING)
                if fa >= NF - 9 and not last:
                    tt = frag_info(p, fa)[1]
                    upd = f"v_add_u32 v{VB+tt}, s49, v{VB+tt}"
            elif not last:
                rd = tr_reads(p, fa - NF, fa % RING)
            rem = min(DAH - 1, (NF - 1 - f) if last else DAH - 1)
            k(f"s_waitcnt lgkmcnt({2*rem})")
            tb = (m * 9 + t) * 4
            extra = list(slots.get(f, []))
            for st in range(4):
                k(f"v_mfma_f32_16x16x32_bf16 {p.acc(tb+st)}, {wfrag(f % RING)}, {p.xfrag(xs, kk, st)}, {p.acc(tb+st)}")
                if st == 0 and rd:
                    k(rd[0])
                if st == 1 and rd:
                    k(rd[1])
                    if upd:
                        k(upd)
                if st >= 2 and extra:
                    k(extra.pop(0))
            while extra:
                k(extra.pop(0))

    def start_phase(p):
        pl = xload_list(p, 0) + xload_list(p, 1) + xload_list(p, 2)
        for ln in pl:
            k(ln)
        if k.stamps:
            k("s_waitcnt lgkmcnt(0)")
        for f in range(DAH):
            for ln in tr_reads(p, f, f % RING):
                k(ln)
        k("s_waitcnt vmcnt(16)")

    p1 = make_phase(True)
    for z in zero_list(p1):
        k(z)
    k(f"""s_mov_b32 s48, 0
s_mov_b32 s50, {STG}
s_mov_b32 s51, 0
s_lshl_b32 s37, s22, 7
s_add_u32 s37, s37, {F2}""")
    wait_flags("s37", 8, sleep=2)
    if not (os.environ.get('ST0') or os.environ.get('ST1') or os.environ.get('ST2')):
        k.stamp(13)
    start_phase(p1)
    Lloop = k.label("loop")
    Lsk = k.label("noswitch")
    k.put(Lloop)
    for xs in range(4):
        pre = None
        if xs == 2:
            pre = "s_cmp_eq_u32 s51, 1\ns_cselect_b32 s30, 0, s30"
        if xs == 3:
            k(f"""s_cmp_lg_u32 s51, 1
s_cbranch_scc1 {Lsk}
s_mov_b32 s24, s8
s_mov_b32 s25, s9
s_mov_b32 s54, 0
s_mov_b32 s65, {8*P2}
s_mov_b32 s66, {64*P2}
v_mov_b32 v{VD}, v{VD2}
v_mov_b32 v{VD+1}, v{VD2+1}
v_mov_b32 v{VD+2}, v{VD2+2}""")
            k.put(Lsk)
        stage(p1, xs, False, pre)
    k(f"""s_add_u32 s51, s51, 1
s_cmp_lt_u32 s51, 2
s_cbranch_scc1 {Lloop}""")
    stage(p1, 0, True)
    if not (os.environ.get('ST0') or os.environ.get('ST1') or os.environ.get('ST2')):
        k.stamp(14)
    k("s_nop 7")

    def accreg(ti, r, tmp):
        if ti < NV:
            return f"v{32+4*ti+r}"
        k(f"v_accvgpr_read_b32 v{tmp}, a{4*(ti-NV)+r}")
        return f"v{tmp}"

    k(f"""v_and_b32 v2, 31, v1
v_lshlrev_b32 v2, 5, v2
s_lshl_b32 s36, s16, 2
s_add_u32 s36, s36, {FREG}
v_add_u32 v2, s36, v2
global_load_dword v21, v2, s[12:13] sc1
s_mul_i32 s36, s52, 18
s_lshl_b32 s37, s53, 2
s_add_u32 s38, s36, s37
s_lshl_b32 s38, s38, 10
s_lshr_b32 s37, s53, 1
s_add_u32 s39, s36, s37
s_add_u32 s39, s39, 16
s_lshl_b32 s39, s39, 10
s_and_b32 s37, s53, 1
s_lshl_b32 s37, s37, 3
s_add_u32 s39, s39, s37
s_mul_i32 s36, s23, 147456
v_lshl_add_u32 v{VX}, v1, 4, s36""")
    for st in range(1, 4):
        k(f"v_add_u32 v{VX+st}, 147456, v{VX+st-1}")
    for st in range(4):
        for pr in range(5):
            tiles = [2 * pr, 2 * pr + 1] if pr < 4 else [8]
            ob = 32 + 4 * (tiles[0] * 4 + st)
            for hi, t in enumerate(tiles):
                tg = t * 4 + st
                tu = (9 + t) * 4 + st
                gn = [f"v{32+4*tg+r}" for r in range(4)]
                un = [accreg(tu, r, 22 + r) for r in range(4)]
                if exact:
                    for h2 in range(2):
                        k(f"""v_cvt_pk_bf16_f32 v30, {gn[2*h2]}, {gn[2*h2+1]}
v_cvt_pk_bf16_f32 v31, {un[2*h2]}, {un[2*h2+1]}
v_pk_max_i16 v30, v30, 0
v_lshlrev_b32 v2, 16, v31
v_and_b32 v3, s40, v31
v_lshlrev_b32 v{26+2*h2}, 16, v30
v_and_b32 v{27+2*h2}, s40, v30
v_pk_mul_f32 v[{26+2*h2}:{27+2*h2}], v[{26+2*h2}:{27+2*h2}], v[2:3]""")
                else:
                    for r in range(4):
                        k(f"v_max_f32 v{26+r}, 0, {gn[r]}")
                        k(f"v_mul_f32 v{26+r}, v{26+r}, {un[r]}")
                k(f"""v_cvt_pk_bf16_f32 v{ob+2*hi}, v26, v27
v_cvt_pk_bf16_f32 v{ob+2*hi+1}, v28, v29""")
            if pr < 4:
                k(f"buffer_store_dwordx4 v[{ob}:{ob+3}], v{VX+st}, s[32:35], s38 offen offset:{1024*pr}")
            else:
                k(f"buffer_store_dwordx2 v[{ob}:{ob+1}], v{VX+st}, s[32:35], s39 offen")
    p2 = make_phase(False)
    Lw = k.label("h_notw0")
    Lf1 = k.label("fast1")
    Lf2 = k.label("fast2")
    k(f"""s_waitcnt vmcnt(0) lgkmcnt(0)
s_barrier
s_add_u32 s36, s69, 1
s_or_b32 s36, s36, s3
v_cmp_ne_u32 vcc, s36, v21
s_cmp_ge_u32 s69, 8
s_cselect_b64 s[38:39], -1, vcc
s_cmp_lg_u32 s18, 0
s_cbranch_scc1 {Lw}
s_cmp_eq_u64 s[38:39], 0
s_cbranch_scc1 {Lf1}
buffer_wbl2 sc1
s_waitcnt vmcnt(0)""")
    k.put(Lf1)
    k(f"""s_lshl_b32 s36, s22, 5
s_lshl_b32 s37, s52, 2
s_add_u32 s36, s36, s37
s_add_u32 s36, s36, s53
s_lshl_b32 s36, s36, 2
s_add_u32 s36, s36, {F3}
s_mov_b64 exec, 1
v_mov_b32 v2, s36
v_mov_b32 v3, s3
global_store_dword v2, v3, s[12:13] sc1
s_mov_b64 exec, -1""")
    k.put(Lw)
    k.srd_off(28, 10, 11, WS_HM, HM_BYTES)
    k(f"""s_mul_i32 s36, s64, 147456
s_lshl_b32 s37, s62, 1
s_add_u32 s37, s37, s19
s_mul_i32 s37, s37, {18*1024}
s_add_u32 s36, s36, s37
v_lshl_add_u32 v{VX}, v1, 4, s36
s_mul_i32 s36, s19, 18432
s_add_u32 s36, s36, {STG}
s_mov_b32 s46, 0
s_mov_b32 s48, {STG}
s_mov_b32 s51, 0""")
    for st in range(1, 4):
        k(f"v_add_u32 v{VX+st}, 147456, v{VX+st-1}")
    for t in range(9):
        k(f"v_add_u32 v{VB+t}, s36, v{VB+t}")
    for z in zero_list(p2):
        k(z)
    k(f"""s_lshr_b32 s37, s63, 1
s_lshl_b32 s37, s37, 7
s_lshl_b32 s36, s62, 5
s_add_u32 s37, s37, s36
s_add_u32 s37, s37, {F3}""")
    wait_flags("s37", 2, barrier=False, rep=False)
    k(f"""s_cmp_lg_u32 s18, 0
s_cbranch_scc1 {Lf2}
s_cmp_eq_u64 s[38:39], 0
s_cbranch_scc1 {Lf2}
buffer_inv sc1
s_waitcnt vmcnt(0)""")
    k.put(Lf2)
    k("s_barrier")
    if not (os.environ.get('ST0') or os.environ.get('ST1') or os.environ.get('ST2')):
        k.stamp(15)
    start_phase(p2)
    Lloop2 = k.label("loop2")
    k.put(Lloop2)
    for xs in range(4):
        pre = None
        if xs == 2:
            pre = "s_cmp_eq_u32 s51, 1\ns_cselect_b32 s30, 0, s30"
        if xs == 3:
            pre = "s_cmp_eq_u32 s51, 1\ns_cselect_b32 s26, 0, s26"
        stage(p2, xs, False, pre)
    k(f"""s_add_u32 s51, s51, 1
s_cmp_lt_u32 s51, 2
s_cbranch_scc1 {Lloop2}""")
    stage(p2, 0, True)
    acc = p2.acc
    Lk1 = k.label("kh1")
    k.srd_off(32, 10, 11, WS_PART, 4 * PART1)
    k(f"""s_waitcnt vmcnt(0)
s_barrier
s_mul_i32 s36, s18, 18432
v_lshl_add_u32 v22, v1, 4, s36
s_xor_b32 s37, s18, 2
s_mul_i32 s37, s37, 18432
v_lshl_add_u32 v23, v1, 4, s37
s_lshl_b32 s36, s19, 1
s_add_u32 s36, s36, s64
s_mul_i32 s36, s36, 36
s_lshl_b32 s36, s36, 10
s_mul_i32 s37, s62, {PART1}
s_add_u32 s36, s36, s37
v_lshl_add_u32 v24, v1, 4, s36
v_add_u32 v25, {36*1024}, v24
s_lshl_b32 s36, s53, 13
s_add_u32 s37, s36, 4096
s_lshl_b32 s38, s53, 10
s_add_u32 s38, s38, 32768
s_cmp_eq_u32 s19, 1
s_cbranch_scc1 {Lk1}""")
    for kh in range(2):
        if kh == 1:
            k.put(Lk1)
        keep = [2 * kh, 2 * kh + 1]
        send = [2 - 2 * kh, 3 - 2 * kh]
        for i, st in enumerate(send):
            for t in range(9):
                k(f"ds_write_b128 v22, {acc(t*4+st)} offset:{(i*9+t)*1024}")
        k("""s_waitcnt lgkmcnt(0)
s_barrier""")
        for i, st in enumerate(send):
            for t in range(9):
                k(f"ds_read_b128 {acc(t*4+st)}, v23 offset:{(i*9+t)*1024}")
        n = 18
        for i in range(2):
            for t in range(9):
                n -= 1
                k(f"s_waitcnt lgkmcnt({min(n,15)})")
                a = 32 + 4 * (t * 4 + keep[i])
                b = 32 + 4 * (t * 4 + send[i])
                k(f"""v_pk_add_f32 v[{a}:{a+1}], v[{a}:{a+1}], v[{b}:{b+1}]
v_pk_add_f32 v[{a+2}:{a+3}], v[{a+2}:{a+3}], v[{b+2}:{b+3}]""")
                so = "s36" if t < 4 else ("s37" if t < 8 else "s38")
                k(f"buffer_store_dwordx4 v[{a}:{a+3}], v{24+i}, s[32:35], {so} offen offset:{1024*(t%4)}")
        if k.stamps:
            k("s_waitcnt vmcnt(0)")
        k.stamp(4)
        k.stamp(5, real=True)
        k.stamp_flush()
        if kh == 0:
            k("s_endpgm")
    k.put(Lexit)
    k("s_endpgm")
    return k
```

```python
import sys
from asmlib import *

import os
K.stamps = os.environ.get("STAMP", "0") == "1"
S, D, F = 2048, 576, 4608
RS = 4352
WS_UR0 = 0x0
WS_UR1 = 0x280000
WS_Y2T = 0x500000
WS_X1 = 0x780000
WS_H2 = 0xA00000
WS_MODP = 0xC80000
WS_GBV = 0xC84000
WS_CNT = 0xC88000
WS_HM = 0xD00000
WS_PART = 0x2000000
SD2 = S * D * 2
HM_BYTES = S * F * 2
PART1 = S * D * 4

ARG = dict(q=0, k=8, v=16, shift=24, ssmk=32, ssmD=40, bx=48, wg=56, wu=64, wd=72, c=80, wmod=88, out=96, dbg=104, ws=112)


def rnd_pair(k, lo, hi, tmp, smask):
    k(f"""v_cvt_pk_bf16_f32 v{tmp}, v{lo}, v{hi}
v_lshlrev_b32 v{lo}, 16, v{tmp}
v_and_b32 v{hi}, s{smask}, v{tmp}""")


NWARM = int(os.environ.get('NWARM', '8'))


def gen_k1():
    k = K("prep_kernel")
    k.kid = 0
    Lexit = k.label("exit")
    Lmod = k.label("mod")
    Lwarm = k.label("warm")
    k(f"""s_cmp_ge_u32 s2, {342 + NWARM}
s_cbranch_scc1 {Lexit}
s_cmp_lt_u32 s2, {NWARM}
s_cbranch_scc1 {Lwarm}
s_sub_u32 s2, s2, {NWARM}""")
    k.stamp_init()
    k(f"""
s_load_dwordx4 s[4:7], s[0:1], {ARG['k']}
s_load_dwordx2 s[8:9], s[0:1], {ARG['shift']}
s_load_dwordx4 s[12:15], s[0:1], {ARG['c']}
s_load_dwordx2 s[10:11], s[0:1], {ARG['ws']}
s_mov_b32 s40, 0xffff0000
v_and_b32 v1, 7, v0
v_lshrrev_b32 v2, 3, v0
s_cmp_ge_u32 s2, 288
s_cbranch_scc1 {Lmod}
s_lshr_b32 s16, s2, 5
s_and_b32 s17, s2, 31
s_waitcnt lgkmcnt(0)""")
    k.srd(20, 4, 5, SD2)
    k.srd(24, 6, 7, SD2)
    k.srd(28, 8, 9, D * 8)
    k.srd(32, 10, 11, WS_Y2T)
    k(f"""s_lshl_b32 s18, s17, 6
v_lshl_add_u32 v3, v2, 1, s18
s_movk_i32 s19, 1152
v_mul_lo_u32 v3, v3, s19
s_lshl_b32 s18, s16, 7
v_lshl_add_u32 v4, v1, 4, s18
v_add_u32 v3, v3, v4""")
    A0 = 4
    for r in range(6):
        off = (r - 4) * 1152
        k(f"v_add_u32 v{A0+r}, {off & 0xffffffff:#x}, v3")
    KR = 12
    VR = 36
    WR = 48
    for r in range(6):
        k(f"buffer_load_dwordx4 v[{KR+4*r}:{KR+4*r+3}], v{A0+r}, s[20:23], 0 offen")
    for r in range(3):
        k(f"buffer_load_dwordx4 v[{VR+4*r}:{VR+4*r+3}], v{A0+3+r}, s[24:27], 0 offen")
    k(f"""s_lshl_b32 s18, s16, 9
v_lshl_add_u32 v10, v1, 6, s18""")
    for i in range(4):
        k(f"buffer_load_dwordx4 v[{WR+4*i}:{WR+4*i+3}], v10, s[28:31], 0 offen offset:{16*i}")
    k(f"""v_sub_u32 v10, 31, v2
v_lshlrev_b32 v11, 2, v1
v_xor_b32 v10, v10, v11
v_lshlrev_b32 v10, 2, v10
v_lshl_add_u32 v10, v1, 10, v10""")
    WF = 64
    KF = 96
    VF = 144
    U = 168
    P = 192
    k("s_waitcnt vmcnt(0)")
    k.stamp(2)
    for j in range(8):
        k(f"""v_lshlrev_b32 v{WF+0*8+j}, 16, v{WR+2*j}
v_and_b32 v{WF+1*8+j}, s40, v{WR+2*j}
v_lshlrev_b32 v{WF+2*8+j}, 16, v{WR+2*j+1}
v_and_b32 v{WF+3*8+j}, s40, v{WR+2*j+1}""")
    for r in range(6):
        for q in range(4):
            k(f"""v_lshlrev_b32 v{KF+8*r+2*q}, 16, v{KR+4*r+q}
v_and_b32 v{KF+8*r+2*q+1}, s40, v{KR+4*r+q}""")
    for r in range(3):
        for q in range(4):
            k(f"""v_lshlrev_b32 v{VF+8*r+2*q}, 16, v{VR+4*r+q}
v_and_b32 v{VF+8*r+2*q+1}, s40, v{VR+4*r+q}""")
    for o in range(3):
        for q in range(4):
            for t in range(4):
                k(f"v_pk_mul_f32 v[{P+2*t}:{P+2*t+1}], v[{KF+8*(o+t)+2*q}:{KF+8*(o+t)+2*q+1}], v[{WF+8*(3-t)+2*q}:{WF+8*(3-t)+2*q+1}]")
            for t in range(4):
                rnd_pair(k, P + 2 * t, P + 2 * t + 1, 200 + t, 40)
            for t in range(1, 4):
                k(f"v_pk_add_f32 v[{P}:{P+1}], v[{P}:{P+1}], v[{P+2*t}:{P+2*t+1}]")
                rnd_pair(k, P, P + 1, 200, 40)
            k(f"v_pk_mul_f32 v[{U+8*o+2*q}:{U+8*o+2*q+1}], v[{P}:{P+1}], v[{VF+8*o+2*q}:{VF+8*o+2*q+1}]")
    for j in range(8):
        k(f"""v_cvt_pk_bf16_f32 v{P+(j&1)*2}, v{U+16+j}, v{U+8+j}
v_cvt_pk_bf16_f32 v{P+(j&1)*2+1}, v{U+8+j}, v{U+j}
ds_write_b32 v10, v{P+(j&1)*2} offset:{j*128}
ds_write_b32 v10, v{P+(j&1)*2+1} offset:{8192+j*128}""")
    k(f"""v_lshrrev_b32 v4, 3, v0
v_and_b32 v5, 7, v0
v_lshrrev_b32 v6, 3, v4
v_xor_b32 v7, v5, v6
v_lshlrev_b32 v7, 4, v7
v_lshl_add_u32 v7, v4, 7, v7
v_xor_b32 v8, 64, v7
v_add_u32 v8, 4096, v8
s_mul_i32 s18, s16, {64*RS}
s_lshl_b32 s19, s17, 7
s_sub_u32 s18, s18, s19
s_add_u32 s18, s18, 3968
v_mul_u32_u24 v9, {RS}, v4
v_lshl_add_u32 v9, v5, 4, v9
v_add_u32 v9, s18, v9
v_add_u32 v11, {32*RS}, v9
s_waitcnt lgkmcnt(0)
s_barrier
ds_read_b128 v[12:15], v7
ds_read_b128 v[16:19], v8
ds_read_b128 v[20:23], v7 offset:8192
ds_read_b128 v[24:27], v8 offset:8192
s_mov_b32 s18, {WS_UR1}
s_waitcnt lgkmcnt(3)
buffer_store_dwordx4 v[12:15], v9, s[32:35], 0 offen
s_waitcnt lgkmcnt(2)
buffer_store_dwordx4 v[16:19], v11, s[32:35], 0 offen
s_waitcnt lgkmcnt(1)
buffer_store_dwordx4 v[20:23], v9, s[32:35], s18 offen
s_waitcnt lgkmcnt(0)
buffer_store_dwordx4 v[24:27], v11, s[32:35], s18 offen""")
    k.stamp(3)
    if k.stamps:
        k("s_waitcnt vmcnt(0)")
    k.stamp(4)
    k.stamp(5, real=True)
    k.stamp_flush()
    k("s_endpgm")
    k.put(Lmod)
    k(f"""s_sub_u32 s16, s2, 288
s_waitcnt lgkmcnt(0)""")
    k.srd(20, 12, 13, D * 2)
    k.srd(24, 14, 15, D * 6 * D * 2)
    k.srd_off(28, 10, 11, WS_MODP, 0x8000)
    WL = 32
    CL = 8
    k(f"""s_movk_i32 s19, 6912
v_mul_lo_u32 v3, v2, s19
s_lshl_b32 s18, s16, 7
v_lshl_add_u32 v4, v1, 4, s18
v_add_u32 v3, v3, v4
v_lshlrev_b32 v4, 1, v2""")
    for i in range(18):
        k(f"v_mov_b32 v{CL+i}, 0")
    for i in range(18):
        k(f"buffer_load_short_d16_hi v{CL+i}, v4, s[20:23], 0 offen offset:{64*i}")
    k("s_mov_b32 s18, 0")
    for i in range(18):
        k(f"buffer_load_dwordx4 v[{WL+4*i}:{WL+4*i+3}], v3, s[24:27], s18 offen")
        if i < 17:
            k(f"s_add_u32 s18, s18, {32*6912}")
    k("s_mov_b32 s19, 0xbfb8aa3b")
    k("s_waitcnt vmcnt(18)")
    for i in range(18):
        k(f"v_mul_f32 v{104+i}, s19, v{CL+i}")
    for i in range(18):
        k(f"v_exp_f32 v{104+i}, v{104+i}")
    for i in range(18):
        k(f"v_add_f32 v{104+i}, 1.0, v{104+i}")
    for i in range(18):
        k(f"v_rcp_f32 v{104+i}, v{104+i}")
    k("s_nop 0")
    for i in range(18):
        k(f"v_mul_f32 v{CL+i}, v{CL+i}, v{104+i}")
    for i in range(0, 18, 2):
        rnd_pair(k, CL + i, CL + i + 1, 104 + i, 40)
    ACC = 124
    for j in range(8):
        k(f"v_mov_b32 v{ACC+j}, 0")
    for i in range(18):
        k(f"s_waitcnt vmcnt({17-i})")
        for q in range(4):
            k(f"""v_lshlrev_b32 v{104+2*q}, 16, v{WL+4*i+q}
v_and_b32 v{104+2*q+1}, s40, v{WL+4*i+q}""")
        for j in range(8):
            k(f"v_fmac_f32 v{ACC+j}, v{CL+i}, v{104+j}")
    k(f"""v_lshlrev_b32 v4, 8, v2
v_lshl_add_u32 v4, v1, 5, v4
ds_write_b128 v4, v[{ACC}:{ACC+3}]
ds_write_b128 v4, v[{ACC+4}:{ACC+7}] offset:16
v_lshlrev_b32 v5, 2, v0
s_waitcnt lgkmcnt(0)
s_barrier
v_cmp_gt_u32 vcc, 64, v0
s_and_saveexec_b64 s[36:37], vcc
s_cbranch_execz {Lexit}""")
    for i in range(32):
        k(f"ds_read_b32 v{32+i}, v5 offset:{256*i}")
    k("s_waitcnt lgkmcnt(0)")
    for st in (16, 8, 4, 2, 1):
        for i in range(st):
            k(f"v_add_f32 v{32+i}, v{32+i}, v{32+i+st}")
    k(f"""s_mul_i32 s17, s16, 7282
s_lshr_b32 s17, s17, 16
s_mul_i32 s18, s17, 9
s_sub_u32 s18, s16, s18
v_cvt_pk_bf16_f32 v33, v32, v32
v_and_b32 v32, s40, v33
v_add_f32 v34, 1.0, v32
v_cvt_pk_bf16_f32 v34, v34, v34
s_cmp_eq_u32 s17, 1
s_cselect_b32 s19, 1, 0
s_cmp_eq_u32 s17, 4
s_cselect_b32 s19, 1, s19
s_cmp_eq_u32 s19, 1
s_cselect_b64 vcc, -1, 0
s_lshl_b32 s18, s18, 6
v_add_u32 v6, s18, v0
v_cndmask_b32 v33, v33, v34, vcc
v_lshlrev_b32 v7, 4, v6
s_lshl_b32 s19, s17, 1
buffer_store_short v33, v7, s[28:31], s19 offen
s_cmp_lg_u32 s17, 5
s_cbranch_scc1 {Lexit}
v_lshlrev_b32 v7, 2, v6
s_movk_i32 s19, 0x4000
buffer_store_dword v32, v7, s[28:31], s19 offen""")
    k("s_endpgm")
    k.put(Lwarm)
    k(f"""s_getpc_b64 s[4:5]
s_add_u32 s4, s4, code_begin@rel32@lo+4
s_addc_u32 s5, s5, code_begin@rel32@hi+12
s_getpc_b64 s[6:7]
s_add_u32 s6, s6, desc_begin@rel32@lo+4
s_addc_u32 s7, s7, desc_begin@rel32@hi+12
v_lshlrev_b32 v1, 7, v0
v_min_u32 v2, code_end-code_begin-4, v1
v_add_u32 v3, 32768, v1
v_min_u32 v3, code_end-code_begin-4, v3
v_and_b32 v4, 7, v0
v_lshlrev_b32 v4, 6, v4
v_min_u32 v4, desc_end-desc_begin-4, v4
global_load_dword v5, v2, s[4:5]
global_load_dword v6, v3, s[4:5]
global_load_dword v7, v4, s[6:7]
s_waitcnt vmcnt(0)""")
    k.put(Lexit)
    k("s_endpgm")
    k.vgpr = 208
    k.sgpr = 48
    return k


SU = 4160
SK = 4640
KB = 4 * SU
K2_LDS = KB + 2 * SK
PFW = os.environ.get('PFW', '1') == '1'


def gen_k2():
    k = K("conv_kernel")
    k.kid = 1
    Lexit = k.label("exit")
    k(f"""s_cmp_ge_u32 s2, 576
s_cbranch_scc1 {Lexit}""")
    k.stamp_init()
    k(f"""
s_and_b32 s3, s2, 7
s_mul_i32 s3, s3, 72
s_lshr_b32 s16, s2, 3
s_add_u32 s3, s3, s16
s_load_dwordx4 s[4:7], s[0:1], {ARG['ssmk']}
s_load_dwordx2 s[10:11], s[0:1], {ARG['ws']}
s_load_dwordx4 s[48:51], s[0:1], {ARG['wg']}
s_load_dwordx2 s[44:45], s[0:1], {ARG['wd']}
s_mov_b32 s40, 0xffff0000
v_mov_b32 v4, 0
v_mov_b32 v5, 0
v_mov_b32 v6, 0
v_mov_b32 v7, 0
v_and_b32 v1, 15, v0
v_lshrrev_b32 v2, 4, v0
v_lshrrev_b32 v3, 2, v1
v_and_b32 v8, 3, v0
s_movk_i32 s16, {SU}
v_mul_u32_u24 v9, s16, v3
v_lshl_add_u32 v9, v8, 4, v9
ds_write_b128 v9, v[4:7] offset:4096
v_lshrrev_b32 v9, 5, v0
s_movk_i32 s17, {SK}
v_mul_u32_u24 v9, s17, v9
v_and_b32 v10, 31, v0
v_lshl_add_u32 v9, v10, 4, v9
ds_write_b128 v9, v[4:7] offset:{KB}
s_lshl_b32 s18, s3, 12
s_lshl_b32 s19, s3, 1
s_and_b32 s19, s19, 0xfffffffc
v_lshlrev_b32 v11, 4, v0
s_waitcnt lgkmcnt(0)
s_load_dword s41, s[6:7], s19""")
    k.srd_off(20, 4, 5, "s18", 4096)
    k(f"""s_mul_i32 s18, s3, {RS}
s_add_u32 s12, s10, s18
s_addc_u32 s13, s11, 0""")
    k.srd_off(24, 12, 13, WS_UR0, 4096)
    k.srd_off(28, 12, 13, WS_UR1, 4096)
    k.srd_off(32, 10, 11, WS_Y2T, SD2)
    k.srd(52, 48, 49, D * F * 2)
    k.srd(56, 50, 51, D * F * 2)
    k.srd(60, 44, 45, D * F * 2)
    k("s_mul_i32 s47, s2, 9216")
    copies = [(20, KB + 456), (20, KB + SK + 448), (28, 12), (24, SU + 12), (28, 2 * SU + 16), (24, 3 * SU + 16)]
    for srd, dst in copies:
        k(f"s_movk_i32 m0, {dst}")
        k("s_nop 0")
        for i in range(4):
            k(f"buffer_load_dwordx4 v11, s[{srd}:{srd+3}], 0 offen offset:{1024*i} lds")
    k(f"""v_mul_u32_u24 v12, s16, v8
v_sub_u32 v13, v2, v3
v_lshl_add_u32 v12, v13, 4, v12
v_add_u32 v12, 48, v12
v_and_b32 v13, 1, v0
v_mul_u32_u24 v13, s17, v13
v_lshrrev_b32 v14, 1, v1
v_lshl_add_u32 v13, v14, 6, v13
v_lshl_add_u32 v13, v2, 4, v13
v_add_u32 v13, {KB}, v13
v_and_b32 v15, 1, v0
v_lshlrev_b32 v15, 3, v15
v_lshl_add_u32 v15, v14, 6, v15
v_lshl_add_u32 v15, v2, 4, v15
v_sub_u32 v16, {3*SU + 4104 - 3584}, v15
v_lshl_add_u32 v15, v14, 2, v2
v_mul_u32_u24 v15, 9216, v15
v_and_b32 v17, 1, v0
v_lshl_add_u32 v15, v17, 3, v15
s_lshl_b32 s46, s3, 4""")
    ACC = 20
    FR = 52
    for i in range(32):
        k(f"v_mov_b32 v{ACC+i}, 0")

    def reads(r):
        st = r & 1
        out = []
        for n in range(8):
            out.append(f"ds_read_b128 v[{FR+64*st+4*n}:{FR+64*st+4*n+3}], v12 offset:{3648 - 48 + 64*r - 512*n}")
            out.append(f"ds_read_b128 v[{FR+64*st+32+4*n}:{FR+64*st+32+4*n+3}], v13 offset:{64*r + 512*n}")
        return out

    pfl = []
    for i in range(9):
        for srd in (52, 56):
            pfl.append(f"buffer_load_dwordx4 v[{FR+128}:{FR+131}], v11, s[{srd}:{srd+3}], s47 offen offset:{1024*(i%4)}" + ("\ns_add_u32 s47, s47, 4096" if (i % 4 == 3 and srd == 56) else ""))
    k("s_waitcnt vmcnt(0)")
    k.stamp(2)
    for ln in reads(0):
        k(ln)
    for r in range(8):
        st = r & 1
        nxt = reads(r + 1) if r < 7 else []
        k("s_waitcnt lgkmcnt(0)")
        mf = []
        for w in range(8):
            for q in range(8 - w):
                t = q + w
                mf.append(f"v_mfma_f32_16x16x32_bf16 v[{ACC+4*t}:{ACC+4*t+3}], v[{FR+64*st+4*w}:{FR+64*st+4*w+3}], v[{FR+64*st+32+4*q}:{FR+64*st+32+4*q+3}], v[{ACC+4*t}:{ACC+4*t+3}]")
        for i, m in enumerate(mf):
            k(m)
            if i < len(nxt):
                k(nxt[i])
            if PFW and i >= 16 and (i - 16) % 6 == 0 and pfl:
                k(pfl.pop(0))
    k.stamp(3)
    UV = FR
    for t in range(8):
        k(f"ds_read_b64 v[{UV+2*t}:{UV+2*t+1}], v16 offset:{512*(7-t)}")
    k(f"""s_and_b32 s42, s3, 1
s_lshl_b32 s43, s41, 16
s_and_b32 s41, s41, s40
s_cmp_eq_u32 s42, 0
s_cselect_b32 s41, s43, s41
s_waitcnt lgkmcnt(0)""")
    T = FR + 32
    for t in range(8):
        a = ACC + 4 * t
        u0, u1 = UV + 2 * t, UV + 2 * t + 1
        b = T + 8 * (t & 1)
        k(f"""v_and_b32 v{b}, s40, v{u1}
v_lshlrev_b32 v{b+1}, 16, v{u1}
v_and_b32 v{b+2}, s40, v{u0}
v_lshlrev_b32 v{b+3}, 16, v{u0}
v_mul_f32 v{b}, s41, v{b}
v_mul_f32 v{b+1}, s41, v{b+1}
v_mul_f32 v{b+2}, s41, v{b+2}
v_mul_f32 v{b+3}, s41, v{b+3}""")
        rnd_pair(k, b, b + 1, b + 4, 40)
        rnd_pair(k, b + 2, b + 3, b + 5, 40)
        rnd_pair(k, a, a + 1, b + 4, 40)
        rnd_pair(k, a + 2, a + 3, b + 5, 40)
        k(f"""v_add_f32 v{b}, v{b}, v{a}
v_add_f32 v{b+1}, v{b+1}, v{a+1}
v_add_f32 v{b+2}, v{b+2}, v{a+2}
v_add_f32 v{b+3}, v{b+3}, v{a+3}
v_cvt_pk_bf16_f32 v{b+6}, v{b}, v{b+1}
v_cvt_pk_bf16_f32 v{b+7}, v{b+2}, v{b+3}
buffer_store_dwordx2 v[{b+6}:{b+7}], v15, s[32:35], s46 offen
s_add_u32 s46, s46, 294912""")
    if k.stamps:
        k("s_waitcnt vmcnt(0)")
    k.stamp(4)
    k.stamp(5, real=True)
    k.stamp_flush()
    k.put(Lexit)
    k("s_endpgm")
    k.vgpr = FR + 132
    k.sgpr = 64
    return k


def wave_sum(k, v, t):
    k(f"""s_nop 1
v_add_f32 v{v}, v{v}, v{v} quad_perm:[1,0,3,2] row_mask:0xf bank_mask:0xf
s_nop 1
v_add_f32 v{v}, v{v}, v{v} quad_perm:[2,3,0,1] row_mask:0xf bank_mask:0xf
s_nop 1
v_add_f32 v{v}, v{v}, v{v} row_half_mirror row_mask:0xf bank_mask:0xf
s_nop 1
v_add_f32 v{v}, v{v}, v{v} row_mirror row_mask:0xf bank_mask:0xf
v_mov_b32 v{t}, v{v}
s_nop 1
v_permlane16_swap_b32 v{v}, v{t}
v_add_f32 v{v}, v{v}, v{t}
v_mov_b32 v{t}, v{v}
s_nop 1
v_permlane32_swap_b32 v{v}, v{t}
v_add_f32 v{v}, v{v}, v{t}""")


def rnd_list(k, regs, tmp, smask):
    i = 0
    while i < len(regs):
        if i + 1 < len(regs):
            rnd_pair(k, regs[i], regs[i + 1], tmp + (i // 2) % 4, smask)
            i += 2
        else:
            k(f"""v_cvt_pk_bf16_f32 v{tmp}, v{regs[i]}, v{regs[i]}
v_and_b32 v{regs[i]}, s{smask}, v{tmp}""")
            i += 1


def layernorm(k, X, O, T, R):
    s, t2, m = R, R + 1, R + 2
    k(f"v_add_f32 v{s}, v{X}, v{X+1}")
    for i in range(2, 9):
        k(f"v_add_f32 v{s}, v{s}, v{X+i}")
    wave_sum(k, s, t2)
    k(f"v_mul_f32 v{m}, s44, v{s}")
    for i in range(9):
        k(f"v_sub_f32 v{O+i}, v{X+i}, v{m}")
    k(f"v_mul_f32 v{s}, v{O}, v{O}")
    for i in range(1, 9):
        k(f"v_fmac_f32 v{s}, v{O+i}, v{O+i}")
    wave_sum(k, s, t2)
    k(f"v_mul_f32 v{s}, s44, v{s}")
    rnd_pair(k, m, s, T, 40)
    k(f"v_add_f32 v{s}, s45, v{s}")
    k(f"""v_cvt_pk_bf16_f32 v{T}, v{s}, v{s}
v_and_b32 v{s}, s40, v{T}
v_sqrt_f32 v{s}, v{s}
s_nop 0
v_cvt_pk_bf16_f32 v{T}, v{s}, v{s}
v_and_b32 v{s}, s40, v{T}
v_rcp_f32 v{t2}, v{s}""")
    for i in range(9):
        k(f"v_sub_f32 v{O+i}, v{X+i}, v{m}")
    rnd_list(k, [O + i for i in range(9)], T, 40)
    for i in range(9):
        k(f"""v_mul_f32 v{T}, v{O+i}, v{t2}
v_fma_f32 v{T+1}, -v{T}, v{s}, v{O+i}
v_fma_f32 v{O+i}, v{T+1}, v{t2}, v{T}""")
    rnd_list(k, [O + i for i in range(9)], T, 40)


def gen_k3():
    k = K("rows_kernel")
    k.kid = 2
    Lexit = k.label("exit")
    L1 = k.label("no9")
    L2 = k.label("no2nd")
    k(f"""s_cmp_ge_u32 s2, 256
s_cbranch_scc1 {Lexit}""")
    k.stamp_init()
    k(f"""
s_load_dwordx2 s[4:5], s[0:1], {ARG['q']}
s_load_dwordx2 s[10:11], s[0:1], {ARG['ws']}
s_mov_b32 s40, 0xffff0000
s_mov_b32 s44, 0x3ae38e39
s_mov_b32 s45, 0x3727c5ac
v_and_b32 v1, 63, v0
v_lshrrev_b32 v2, 6, v0
s_nop 0
v_readfirstlane_b32 s16, v2
s_waitcnt lgkmcnt(0)""")
    k.srd(20, 4, 5, SD2)
    k.srd_off(24, 10, 11, WS_Y2T, SD2)
    k.srd_off(28, 10, 11, WS_MODP, 9216)
    k.srd_off(32, 10, 11, WS_X1, SD2)
    k.srd_off(36, 10, 11, WS_H2, SD2)
    Lnz = k.label("nozero")
    k(f"""s_cmp_lg_u32 s2, 0
s_cbranch_scc1 {Lnz}""")
    k.srd_off(48, 10, 11, WS_CNT, 12288)
    k(f"""v_mov_b32 v8, 0
v_mov_b32 v9, 0
v_mov_b32 v10, 0
v_mov_b32 v11, 0
v_lshlrev_b32 v3, 4, v0
buffer_store_dwordx4 v[8:11], v3, s[48:51], 0 offen
buffer_store_dwordx4 v[8:11], v3, s[48:51], 0 offen offset:0
v_add_u32 v3, 8192, v3
buffer_store_dwordx4 v[8:11], v3, s[48:51], 0 offen""")
    k.put(Lnz)
    X = 8
    Y = 18
    MP = 28
    O = 64
    T = 74
    R = 78
    k(f"""s_mul_i32 s17, s2, 9216
s_lshl_b32 s19, s16, 10
s_add_u32 s17, s17, s19
v_lshlrev_b32 v3, 4, v1
s_mov_b32 m0, s19
s_nop 0
buffer_load_dwordx4 v3, s[24:27], s17 offen lds
s_cmp_lg_u32 s16, 0
s_cbranch_scc1 {L1}
s_add_u32 s17, s17, 8192
s_movk_i32 m0, 8192
s_nop 0
buffer_load_dwordx4 v3, s[24:27], s17 offen lds""")
    k.put(L1)
    for i in range(9):
        k(f"v_mov_b32 v{X+i}, 0")
        k(f"v_mov_b32 v{Y+i}, 0")
    k(f"""s_lshl_b32 s17, s2, 3
s_add_u32 s17, s17, s16
s_mul_i32 s17, s17, 1152
v_lshlrev_b32 v4, 1, v1
v_lshlrev_b32 v5, 4, v1
s_movk_i32 s18, 4096
s_movk_i32 s19, 8192""")
    for i in range(9):
        k(f"buffer_load_short_d16_hi v{X+i}, v4, s[20:23], s17 offen offset:{128*i}")
    for i in range(9):
        so = "0" if i < 4 else ("s18" if i < 8 else "s19")
        k(f"buffer_load_dwordx4 v[{MP+4*i}:{MP+4*i+3}], v5, s[28:31], {so} offen offset:{1024*(i%4)}")
    k(f"""v_lshl_add_u32 v6, v2, 1, v5
v_lshrrev_b32 v7, 5, v1
v_lshlrev_b32 v7, 9, v7
v_bfe_u32 v3, v1, 2, 2
v_lshl_add_u32 v7, v3, 7, v7
v_lshl_add_u32 v7, v2, 4, v7
v_bfe_u32 v3, v1, 4, 1
v_lshl_add_u32 v7, v3, 3, v7
v_and_b32 v3, 3, v1
v_lshl_add_u32 v7, v3, 1, v7
s_waitcnt vmcnt(9)""")
    k.stamp(2)
    layernorm(k, X, O, T, R)
    k("""s_waitcnt vmcnt(0)
s_barrier""")
    k.stamp(3)
    for i in range(9):
        k(f"ds_read_u16_d16_hi v{Y+i}, v6 offset:{1024*i}")
    for i in range(9):
        k(f"""v_and_b32 v{T}, s40, v{MP+4*i}
v_mul_f32 v{O+i}, v{O+i}, v{T}""")
    rnd_list(k, [O + i for i in range(9)], T, 40)
    for i in range(9):
        k(f"""v_lshlrev_b32 v{T}, 16, v{MP+4*i}
v_add_f32 v{O+i}, v{O+i}, v{T}""")
    rnd_list(k, [O + i for i in range(9)], T, 40)
    k("s_waitcnt lgkmcnt(0)")
    for i in range(9):
        k(f"v_mul_f32 v{O+i}, v{O+i}, v{Y+i}")
    rnd_list(k, [O + i for i in range(9)], T, 40)
    for i in range(9):
        k(f"""v_lshlrev_b32 v{T}, 16, v{MP+4*i+1}
v_mul_f32 v{O+i}, v{O+i}, v{T}""")
    rnd_list(k, [O + i for i in range(9)], T, 40)
    for i in range(9):
        k(f"v_add_f32 v{X+i}, v{X+i}, v{O+i}")
    rnd_list(k, [X + i for i in range(9)], T, 40)
    for i in range(9):
        k(f"buffer_store_short_d16_hi v{X+i}, v4, s[32:35], s17 offen offset:{128*i}")
    layernorm(k, X, O, T, R)
    for i in range(9):
        k(f"""v_lshlrev_b32 v{T}, 16, v{MP+4*i+2}
v_mul_f32 v{O+i}, v{O+i}, v{T}""")
    rnd_list(k, [O + i for i in range(9)], T, 40)
    for i in range(9):
        k(f"""v_and_b32 v{T}, s40, v{MP+4*i+1}
v_add_f32 v{O+i}, v{O+i}, v{T}
v_cvt_pk_bf16_f32 v{O+i}, v{O+i}, v{O+i}
ds_write_b16 v7, v{O+i} offset:{9216+1024*i}""")
    k(f"""v_lshlrev_b32 v6, 4, v0
v_lshrrev_b32 v7, 3, v0
v_lshlrev_b32 v7, 8, v7
v_and_b32 v3, 7, v0
v_lshl_add_u32 v7, v3, 4, v7
s_lshr_b32 s17, s2, 1
s_mul_i32 s17, s17, 18432
s_and_b32 s18, s2, 1
s_lshl_b32 s18, s18, 7
s_add_u32 s17, s17, s18
s_waitcnt lgkmcnt(0)
s_barrier
ds_read_b128 v[8:11], v6 offset:9216
s_cmp_lg_u32 s16, 0
s_cbranch_scc1 {L2}
ds_read_b128 v[12:15], v6 offset:{9216+8192}
s_add_u32 s18, s17, 16384
s_waitcnt lgkmcnt(0)
buffer_store_dwordx4 v[12:15], v7, s[36:39], s18 offen""")
    k.put(L2)
    k(f"""s_waitcnt lgkmcnt(0)
buffer_store_dwordx4 v[8:11], v7, s[36:39], s17 offen""")
    k.stamp(6)
    if k.stamps:
        k("s_waitcnt vmcnt(0)")
    k.stamp(4)
    k.stamp(5, real=True)
    k.stamp_flush()
    k.put(Lexit)
    k("s_endpgm")
    k.vgpr = 84
    k.sgpr = 56
    return k


STG = 36864
NBUF = 4
G_LDS = STG * NBUF
EXACT_GU = os.environ.get("EXACT_GU", "0") == "1"


def gen_gemm(which):
    g1 = which == 1
    k = K("gemm1_kernel" if g1 else "gemm2_kernel")
    Lexit = k.label("exit")
    NT = 18 if g1 else 9
    NACC = NT * 4
    DAH = 4
    RING = 6
    NV = min(NACC, 56)
    def acc(ti):
        return vr(32 + 4 * ti, 4) if ti < NV else ar(4 * (ti - NV), 4)
    AB = 4 * (NACC - NV)
    NXS = 2 if g1 else 4
    XR = AB
    WRG = AB + 32 * NXS
    def xfrag(xs, kk, st):
        return ar(XR + 32 * xs + 16 * kk + 4 * st, 4)
    def wfrag(slot, half=None):
        if half is None:
            return ar(WRG + 4 * slot, 4)
        return ar(WRG + 4 * slot + 2 * half, 2)
    DUM = WRG + 4 * RING
    k.agpr = DUM + 4
    k.vgpr = 32 + 4 * NV
    k.sgpr = 64
    VX = 4
    VD = 8
    VB = 12
    k.kid = 3 if g1 else 4
    k(f"""s_cmp_ge_u32 s2, 256
s_cbranch_scc1 {Lexit}""")
    k.stamp_init()
    k(f"""s_load_dwordx4 s[4:7], s[0:1], {ARG['wg']}
s_load_dwordx2 s[8:9], s[0:1], {ARG['wd']}
s_load_dwordx2 s[10:11], s[0:1], {ARG['ws']}
v_and_b32 v1, 63, v0
v_lshrrev_b32 v2, 6, v0
s_and_b32 s16, s2, 7
s_lshr_b32 s17, s2, 3
v_readfirstlane_b32 s18, v2
s_nop 3
s_lshr_b32 s19, s18, 1
s_and_b32 s20, s18, 1""")
    PITCH = F * 2 if g1 else D * 2
    XST = 18432 if g1 else 147456
    if g1:
        k(f"""s_and_b32 s21, s17, 3
s_lshl_b32 s16, s16, 2
s_add_u32 s21, s21, s16
s_lshr_b32 s22, s17, 2
s_lshl_b32 s23, s22, 4
s_lshl_b32 s36, s18, 2
s_add_u32 s23, s23, s36
s_mul_i32 s36, s23, {XST}
s_mov_b32 s38, 0""")
    else:
        k(f"""s_and_b32 s21, s17, 3
s_and_b32 s39, s16, 3
s_lshr_b32 s16, s16, 2
s_lshl_b32 s16, s16, 3
s_lshr_b32 s22, s17, 2
s_add_u32 s22, s22, s16
s_lshl_b32 s23, s22, 3
s_lshl_b32 s36, s20, 2
s_add_u32 s23, s23, s36
s_mul_i32 s36, s23, {XST}
s_lshl_b32 s37, s39, 1
s_add_u32 s37, s37, s19
s_mul_i32 s38, s37, {18*1024}
s_add_u32 s36, s36, s38
s_mul_i32 s38, s37, {576*PITCH}""")
    k(f"""s_lshr_b32 s52, s21, 2
s_and_b32 s53, s21, 3
s_mul_i32 s37, s52, 1152
s_add_u32 s38, s38, s37
s_mul_i32 s37, s20, {32*PITCH}
s_add_u32 s38, s38, s37
s_lshl_b32 s37, s53, 8
s_add_u32 s40, s38, s37
s_lshl_b32 s37, s53, 5
s_add_u32 s41, s38, s37
s_add_u32 s41, s41, 1024
s_movk_i32 s37, {PITCH}""")
    k(f"v_lshl_add_u32 v{VX}, v1, 4, s36")
    for st in range(1, 4):
        k(f"v_add_u32 v{VX+st}, {XST}, v{VX+st-1}")
    k(f"""v_lshrrev_b32 v22, 4, v1
v_and_b32 v23, 15, v1
v_mul_lo_u32 v24, v22, s37
v_add_u32 v24, s40, v24
v_lshlrev_b32 v25, 1, v22
v_xor_b32 v25, v23, v25
v_lshl_add_u32 v{VD}, v25, 4, v24
v_xor_b32 v25, 8, v25
v_lshl_add_u32 v{VD+1}, v25, 4, v24
v_add_u32 v{VD+1}, {4*PITCH}, v{VD+1}
v_lshrrev_b32 v22, 1, v1
v_mul_lo_u32 v24, v22, s37
v_and_b32 v23, 1, v1
v_lshl_add_u32 v24, v23, 4, v24
v_add_u32 v{VD+2}, s41, v24""")
    k(f"""s_mul_i32 s42, s19, 18432
s_lshl_b32 s36, s20, 10
s_add_u32 s43, s42, s36
s_add_u32 s43, s43, 16384
s_lshl_b32 s36, s20, 13
s_add_u32 s42, s42, s36""")
    k(f"""v_lshrrev_b32 v22, 2, v1
v_and_b32 v23, 3, v1
v_lshlrev_b32 v23, 3, v23
v_lshl_add_u32 v24, v22, 8, v23
v_and_b32 v25, 7, v22""")
    if not g1:
        k(f"""s_mul_i32 s36, s19, 18432
v_add_u32 v24, s36, v24
v_add_u32 v23, s36, v23""")
    for t in range(8):
        k(f"""v_xor_b32 v26, {t}, v25
v_lshl_add_u32 v{VB+t}, v26, 5, v24""")
    k(f"""v_lshl_add_u32 v{VB+8}, v22, 5, v23
v_add_u32 v{VB+8}, 16384, v{VB+8}""")
    k("s_waitcnt lgkmcnt(0)")
    k.stamp(8)
    if g1:
        k(f"""s_cmp_eq_u32 s19, 0
s_cselect_b32 s12, s4, s6
s_cselect_b32 s13, s5, s7""")
        k.srd(24, 12, 13, D * F * 2)
        k.srd_off(28, 10, 11, WS_H2, SD2)
        k.srd_off(32, 10, 11, WS_HM, HM_BYTES)
        k.srd(56, 8, 9, D * F * 2)
        k(f"""s_lshl_b32 s36, s2, 12
v_lshl_add_u32 v21, v0, 4, s36
s_mov_b32 s60, 0""")
    else:
        k.srd(24, 8, 9, D * F * 2)
        k.srd_off(28, 10, 11, WS_HM, HM_BYTES)
        k.srd_off(32, 10, 11, WS_PART, 4 * PART1)

    def dma_list():
        out = []
        for n in range(8):
            out.append(f"""s_add_u32 s54, s45, s42
s_add_u32 m0, s54, {1024*n}
s_add_u32 s55, s44, {(n>>1)*8*PITCH}
buffer_load_dwordx4 v{VD+(n&1)}, s[24:27], s55 offen lds""")
        out.append(f"""s_add_u32 m0, s45, s43
s_nop 0
buffer_load_dwordx4 v{VD+2}, s[24:27], s44 offen lds
s_add_u32 s44, s44, {64*PITCH}
s_add_u32 s45, s45, {STG}
s_cmp_ge_u32 s45, {STG*NBUF}
s_cselect_b32 s45, 0, s45""")
        return out
    def xload_list(xs):
        out = []
        for kk in range(2):
            for st in range(4):
                out.append(f"buffer_load_dwordx4 {xfrag(xs, kk, st)}, v{VX+st}, s[28:31], s46 offen offset:{1024*kk}")
        out[-1] += "\ns_add_u32 s46, s46, 2048"
        return out
    k(f"""s_mov_b32 s44, 0
s_mov_b32 s45, 0
s_mov_b32 s46, 0""")
    zl = []
    for ti in range(NACC):
        for r in range(4):
            if ti < NV:
                zl.append(f"v_mov_b32 v{32+4*ti+r}, 0")
            else:
                zl.append(f"v_accvgpr_write_b32 a{4*(ti-NV)+r}, 0")
    if g1:
        pl = dma_list() + xload_list(0) + dma_list()
        W0 = 9
    else:
        pl = dma_list() + xload_list(0) + xload_list(1) + dma_list() + xload_list(2)
        W0 = 25
    per = (len(zl) + len(pl) - 1) // len(pl)
    k.stamp(9)
    for i, ln in enumerate(pl):
        k(ln)
        if i >= 8:
            for z in range(per + 6):
                if zl:
                    k(zl.pop(0))
    while zl:
        k(zl.pop(0))
    NF = 2 * NT

    def frag_info(f):
        kk = f // NT
        r = f % NT
        return kk, r % 9, r // 9

    def tr_reads(f, slot):
        kk, t, m = frag_info(f)
        if t < 8:
            off = m * 18432 + kk * 8192
            hs = 4096
        else:
            off = m * 18432 + kk * 1024
            hs = 512
        return [f"ds_read_b64_tr_b16 {wfrag(slot, 0)}, v{VB+t} offset:{off}",
                f"ds_read_b64_tr_b16 {wfrag(slot, 1)}, v{VB+t} offset:{off + hs}"]

    k.stamp(6)
    k(f"""s_waitcnt vmcnt({W0})
s_barrier""")
    k.stamp(2)
    if k.stamps:
        k("s_waitcnt lgkmcnt(0)")
    assert NF % RING == 0
    for f in range(DAH):
        for ln in tr_reads(f, f % RING):
            k(ln)

    def stage(xs, last):
        if last:
            vm = []
        elif g1:
            vm = xload_list(1 - xs) + dma_list()
            if PFW:
                vm.append(f"buffer_load_dwordx4 {ar(DUM, 4)}, v21, s[56:59], s60 offen\ns_add_u32 s60, s60, 0x100000")
        else:
            vm = dma_list() + xload_list((xs + NXS - 1) % NXS)
        nvm = len(vm)
        WB = nvm if g1 else nvm + 8
        PB = NF - DAH
        slots = {}
        for i in range(nvm):
            slots.setdefault(i * PB // nvm, []).append(vm[i])
        if not last:
            k(f"""s_add_u32 s48, s48, {STG}
s_cmp_ge_u32 s48, {STG*NBUF}
s_cselect_b32 s49, {(-STG*(NBUF-1)) & 0xffffffff:#x}, s50
s_cselect_b32 s48, 0, s48""")
        for f in range(NF):
            kk, t, m = frag_info(f)
            fa = f + DAH
            if f == PB and not last:
                k(f"s_waitcnt vmcnt({WB})")
                k("s_barrier")
            rd = []
            upd = None
            if fa < NF:
                rd = tr_reads(fa, fa % RING)
                if fa >= NF - 9 and not last:
                    upd = f"v_add_u32 v{VB + frag_info(fa)[1]}, s49, v{VB + frag_info(fa)[1]}"
            elif not last:
                rd = tr_reads(fa - NF, fa % RING)
            rem = min(DAH - 1, (NF - 1 - f) if last else DAH - 1)
            k(f"s_waitcnt lgkmcnt({2*rem})")
            ti_base = (m * 9 + t) * 4
            extra = list(slots.get(f, []))
            for st in range(4):
                k(f"v_mfma_f32_16x16x32_bf16 {acc(ti_base+st)}, {wfrag(f % RING)}, {xfrag(xs, kk, st)}, {acc(ti_base+st)}")
                if st == 0 and rd:
                    k(rd[0])
                if st == 1 and rd:
                    k(rd[1])
                    if upd:
                        k(upd)
                if st >= 2 and extra:
                    k(extra.pop(0))
            while extra:
                k(extra.pop(0))
        if not last and g1:
            k(f"s_waitcnt vmcnt({nvm - 8})")

    k(f"""s_mov_b32 s48, 0
s_mov_b32 s50, {STG}
s_mov_b32 s51, 0""")
    Lloop = k.label("loop")
    k.put(Lloop)
    for xs in range(NXS):
        stage(xs, False)
    k(f"""s_add_u32 s51, s51, 1
s_cmp_lt_u32 s51, {8 // NXS}
s_cbranch_scc1 {Lloop}""")
    stage(0, True)
    k.stamp(3)
    k("s_nop 7")
    k("s_nop 7")

    def accreg(ti, r, tmp):
        if ti < NV:
            return f"v{32+4*ti+r}"
        k(f"v_accvgpr_read_b32 v{tmp}, a{4*(ti-NV)+r}")
        return f"v{tmp}"

    if g1:
        k(f"""s_mul_i32 s36, s52, 18
s_lshl_b32 s37, s53, 2
s_add_u32 s38, s36, s37
s_lshl_b32 s38, s38, 10
s_lshr_b32 s37, s53, 1
s_add_u32 s39, s36, s37
s_add_u32 s39, s39, 16
s_lshl_b32 s39, s39, 10
s_and_b32 s37, s53, 1
s_lshl_b32 s37, s37, 3
s_add_u32 s39, s39, s37
s_mul_i32 s36, s23, 147456
s_mov_b32 s40, 0xffff0000
v_lshl_add_u32 v{VX}, v1, 4, s36""")
        for st in range(1, 4):
            k(f"v_add_u32 v{VX+st}, 147456, v{VX+st-1}")
        cnt = 0
        for st in range(4):
            for pr in range(5):
                tiles = [2 * pr, 2 * pr + 1] if pr < 4 else [8]
                ob = 8 + 4 * (cnt % 2)
                cnt += 1
                for hi, t in enumerate(tiles):
                    tg = t * 4 + st
                    tu = (9 + t) * 4 + st
                    gn = [accreg(tg, r, 16 + r) for r in range(4)]
                    un = [accreg(tu, r, 20 + r) for r in range(4)]
                    if EXACT_GU:
                        for h2 in range(2):
                            k(f"""v_cvt_pk_bf16_f32 v28, {gn[2*h2]}, {gn[2*h2+1]}
v_cvt_pk_bf16_f32 v29, {un[2*h2]}, {un[2*h2+1]}
v_pk_max_i16 v28, v28, 0
v_lshlrev_b32 v30, 16, v29
v_and_b32 v31, s40, v29
v_lshlrev_b32 v{24+2*h2}, 16, v28
v_and_b32 v{25+2*h2}, s40, v28
v_mul_f32 v{24+2*h2}, v{24+2*h2}, v30
v_mul_f32 v{25+2*h2}, v{25+2*h2}, v31""")
                    else:
                        for r in range(4):
                            k(f"v_max_f32 v{24+r}, 0, {gn[r]}")
                            k(f"v_mul_f32 v{24+r}, v{24+r}, {un[r]}")
                    k(f"""v_cvt_pk_bf16_f32 v{ob+2*hi}, v24, v25
v_cvt_pk_bf16_f32 v{ob+2*hi+1}, v26, v27""")
                if pr < 4:
                    k(f"buffer_store_dwordx4 v[{ob}:{ob+3}], v{VX+st}, s[32:35], s38 offen offset:{1024*pr}")
                else:
                    k(f"buffer_store_dwordx2 v[{ob}:{ob+1}], v{VX+st}, s[32:35], s39 offen")
        k.stamp(7)
        if k.stamps:
            k("s_waitcnt vmcnt(0)")
        k.stamp(4)
        k.stamp(5, real=True)
        k.stamp_flush()
    else:
        Lk1 = k.label("kh1")
        k(f"""s_waitcnt vmcnt(0)
s_barrier
s_mul_i32 s36, s18, 18432
v_lshl_add_u32 v22, v1, 4, s36
s_xor_b32 s37, s18, 2
s_mul_i32 s37, s37, 18432
v_lshl_add_u32 v23, v1, 4, s37
s_lshl_b32 s36, s19, 1
s_add_u32 s36, s36, s23
s_mul_i32 s36, s36, 36
s_lshl_b32 s36, s36, 10
s_mul_i32 s37, s39, {PART1}
s_add_u32 s36, s36, s37
v_lshl_add_u32 v24, v1, 4, s36
v_add_u32 v25, {36*1024}, v24
s_lshl_b32 s36, s53, 13
s_add_u32 s37, s36, 4096
s_lshl_b32 s38, s53, 10
s_add_u32 s38, s38, 32768
s_cmp_eq_u32 s19, 1
s_cbranch_scc1 {Lk1}""")
        for kh in range(2):
            if kh == 1:
                k.put(Lk1)
            keep = [2 * kh, 2 * kh + 1]
            send = [2 - 2 * kh, 3 - 2 * kh]
            for i, st in enumerate(send):
                for t in range(9):
                    k(f"ds_write_b128 v22, {acc(t*4+st)} offset:{(i*9+t)*1024}")
            k("""s_waitcnt lgkmcnt(0)
s_barrier""")
            for i, st in enumerate(send):
                for t in range(9):
                    k(f"ds_read_b128 {acc(t*4+st)}, v23 offset:{(i*9+t)*1024}")
            n = 18
            for i in range(2):
                for t in range(9):
                    n -= 1
                    k(f"s_waitcnt lgkmcnt({min(n,15)})")
                    a = 32 + 4 * (t * 4 + keep[i])
                    b = 32 + 4 * (t * 4 + send[i])
                    k(f"""v_pk_add_f32 v[{a}:{a+1}], v[{a}:{a+1}], v[{b}:{b+1}]
v_pk_add_f32 v[{a+2}:{a+3}], v[{a+2}:{a+3}], v[{b+2}:{b+3}]""")
                    so = "s36" if t < 4 else ("s37" if t < 8 else "s38")
                    k(f"buffer_store_dwordx4 v[{a}:{a+3}], v{24+i}, s[32:35], {so} offen offset:{1024*(t%4)}")
            k.stamp(7)
            if k.stamps:
                k("s_waitcnt vmcnt(0)")
            k.stamp(4)
            k.stamp(5, real=True)
            k.stamp_flush()
            if kh == 0:
                k("s_endpgm")
    k.put(Lexit)
    k("s_endpgm")
    return k


def gen_k6():
    k = K("final_kernel")
    k.kid = {"2": 1, "1": 4, "0": 5}[os.environ.get("FUSED", "2")]
    Lexit = k.label("exit")
    k(f"""s_cmp_ge_u32 s2, 1152
s_cbranch_scc1 {Lexit}""")
    k.stamp_init()
    k(f"""
s_load_dwordx2 s[4:5], s[0:1], {ARG['out']}
s_load_dwordx2 s[10:11], s[0:1], {ARG['ws']}
s_mov_b32 s40, 0xffff0000
v_and_b32 v1, 63, v0
v_lshrrev_b32 v2, 6, v0
s_lshl_b32 s16, s2, 2
v_readfirstlane_b32 s17, v2
s_nop 3
s_add_u32 s16, s16, s17
s_mov_b32 s18, 0x71c71c8
s_mul_hi_u32 s17, s16, s18
s_mul_i32 s18, s17, 36
s_sub_u32 s18, s16, s18
s_waitcnt lgkmcnt(0)""")
    k.srd(20, 4, 5, SD2)
    k.srd_off(24, 10, 11, WS_PART, 4 * PART1)
    k.srd_off(28, 10, 11, WS_X1, SD2)
    k.srd_off(32, 10, 11, WS_GBV, D * 4)
    k(f"""s_lshl_b32 s19, s16, 10
v_lshl_add_u32 v3, v1, 4, s19
s_mov_b32 s36, {PART1}
s_mov_b32 s37, {2*PART1}
s_mov_b32 s38, {3*PART1}
buffer_load_dwordx4 v[8:11], v3, s[24:27], 0 offen
buffer_load_dwordx4 v[12:15], v3, s[24:27], s36 offen
buffer_load_dwordx4 v[16:19], v3, s[24:27], s37 offen
buffer_load_dwordx4 v[20:23], v3, s[24:27], s38 offen
v_and_b32 v4, 15, v1
v_lshrrev_b32 v5, 4, v1
s_lshl_b32 s19, s17, 4
v_add_u32 v4, s19, v4
s_movk_i32 s19, 1152
v_mul_lo_u32 v4, v4, s19
s_lshl_b32 s19, s18, 5
v_lshl_add_u32 v6, v5, 3, s19
v_add_u32 v4, v4, v6
v_lshlrev_b32 v6, 1, v6
buffer_load_dwordx2 v[24:25], v4, s[28:31], 0 offen
buffer_load_dwordx4 v[28:31], v6, s[32:35], 0 offen
s_waitcnt vmcnt(4)
v_pk_add_f32 v[8:9], v[8:9], v[12:13]
v_pk_add_f32 v[10:11], v[10:11], v[14:15]
s_waitcnt vmcnt(2)
v_pk_add_f32 v[16:17], v[16:17], v[20:21]
v_pk_add_f32 v[18:19], v[18:19], v[22:23]
v_pk_add_f32 v[8:9], v[8:9], v[16:17]
v_pk_add_f32 v[10:11], v[10:11], v[18:19]""")
    rnd_pair(k, 8, 9, 12, 40)
    rnd_pair(k, 10, 11, 13, 40)
    k("""s_waitcnt vmcnt(0)
v_pk_mul_f32 v[8:9], v[8:9], v[28:29]
v_pk_mul_f32 v[10:11], v[10:11], v[30:31]""")
    rnd_pair(k, 8, 9, 12, 40)
    rnd_pair(k, 10, 11, 13, 40)
    k("""v_lshlrev_b32 v16, 16, v24
v_and_b32 v17, s40, v24
v_lshlrev_b32 v18, 16, v25
v_and_b32 v19, s40, v25
v_pk_add_f32 v[8:9], v[8:9], v[16:17]
v_pk_add_f32 v[10:11], v[10:11], v[18:19]
v_cvt_pk_bf16_f32 v12, v8, v9
v_cvt_pk_bf16_f32 v13, v10, v11
buffer_store_dwordx2 v[12:13], v4, s[20:23], 0 offen""")
    k.stamp(3)
    if k.stamps:
        k("s_waitcnt vmcnt(0)")
    k.stamp(4)
    k.stamp(5, real=True)
    k.stamp_flush()
    k.put(Lexit)
    k("s_endpgm")
    k.vgpr = 32
    k.sgpr = 48
    return k


HEADER = open("adaLN_cond__ssm_conv_h3__glu_gated_reglu__prompt.s.ref").read().split("; Override launch geometry")[0]


def build(path):
    import gen_mlp, gen_mega
    if os.environ.get("FUSED", "2") == "2":
        ks = [(gen_mega.gen_mega(), 256, 256, gen_mega.M_LDS), (gen_k6(), 1152, 256, 0)]
    elif os.environ.get("FUSED", "2") == "1":
        ks = [(gen_k1(), 342 + NWARM, 256, 16384), (gen_k2(), 576, 64, K2_LDS), (gen_k3(), 256, 512, 18432),
              (gen_mlp.gen_mlp(), 256, 256, gen_mlp.M_LDS), (gen_k6(), 1152, 256, 0)]
    else:
        ks = [(gen_k1(), 342 + NWARM, 256, 16384), (gen_k2(), 576, 64, K2_LDS), (gen_k3(), 256, 512, 18432),
              (gen_gemm(1), 256, 256, G_LDS), (gen_gemm(2), 256, 256, G_LDS), (gen_k6(), 1152, 256, 0)]
    out = HEADER
    for kk, g, b, lds in ks:
        out += f"; @launch kernel={kk.name} grid=({g},1,1) block=({b},1,1) lds={lds}\n"
    out += '.amdgcn_target "amdgcn-amd-amdhsa--gfx950"\n.text\n'
    for i, (kk, *_) in enumerate(ks):
        if i == (0 if len(ks) == 2 else 1):
            out += ".p2align 8\ncode_begin:\n"
        out += kk.text()
    out += "code_end:\n"
    out += '.section .rodata,"a"\n.p2align 6\ndesc_begin:\n'
    for kk, *_ in ks:
        out += kk.desc()
    out += "desc_end:\n"
    open(path, "w").write(out)


if __name__ == "__main__":
    build(sys.argv[1] if len(sys.argv) > 1 else "adaLN_cond__ssm_conv_h3__glu_gated_reglu__prompt.s")
```

```python
import os
from asmlib import *
from gen import (S, D, F, ARG, RS, WS_UR0, WS_UR1, WS_Y2T, WS_X1, WS_H2, WS_MODP, WS_GBV, WS_HM, WS_PART, WS_CNT,
                 SD2, HM_BYTES, PART1, rnd_pair, rnd_list, SU, SK, KB, K2_LDS)

STG = 36864
NBUF = 4
M_LDS = STG * NBUF
SPIN_MAX = 1 << 22
F0, F1, F2, F3, FREG, F4, F5 = 0, 2048, 3072, 4096, 5120, 6144, 7168
INK = os.environ.get('INK', '1') == '1'
CONV_LDS = 26112
YT_LDS = 4 * CONV_LDS
ROW_LDS = 3 * STG
NONCE_LDS = M_LDS - 16
P0_LDS = 3 * STG
NKV = 198
HMPOL = os.environ.get('HMPOL', '')
WBL = int(os.environ.get('WBL', '-1'))
P16_BYTES = 4 * 128 * 4 * 5120
SC_BYTES = 4 * 64 * 4 * 256
NHMT = int(os.environ.get('NHMT', '2'))
PFD = int(os.environ.get('PFD', '3'))
PF_WD = os.environ.get('PF_WD', '0') == '1'
G1_HM = os.environ.get('G1_HM', '1') == '1'
G1_WD = os.environ.get('G1_WD', '1') == '1'
NREP = int(os.environ.get('NREP', '16'))
REPS = 8192 + 768
SL1 = int(os.environ.get('SL1', '6'))


def wave_sum2(k, va, vb, ta, tb):
    for ctl in ("quad_perm:[1,0,3,2]", "quad_perm:[2,3,0,1]", "row_half_mirror", "row_mirror"):
        k(f"""s_nop 0
v_add_f32 v{va}, v{va}, v{va} {ctl} row_mask:0xf bank_mask:0xf
v_add_f32 v{vb}, v{vb}, v{vb} {ctl} row_mask:0xf bank_mask:0xf""")
    for op in ("v_permlane16_swap_b32", "v_permlane32_swap_b32"):
        k(f"""v_mov_b32 v{ta}, v{va}
v_mov_b32 v{tb}, v{vb}
s_nop 1
{op} v{va}, v{ta}
{op} v{vb}, v{tb}
v_add_f32 v{va}, v{va}, v{ta}
v_add_f32 v{vb}, v{vb}, v{tb}""")


def rnd18(k, O, T):
    for i in range(9):
        rnd_pair(k, O + 2 * i, O + 2 * i + 1, T + (i % 4), 40)


def pk(op, d, a, b, c=None, mods=""):
    s = f"v_pk_{op}_f32 v[{d}:{d+1}], v[{a}:{a+1}], v[{b}:{b+1}]"
    if c is not None:
        s += f", v[{c}:{c+1}]"
    return s + (" " + mods if mods else "")


def layernorm2(k, X, O, T, R):
    s, t2, m, q = R, R + 2, R + 4, R + 6
    k(pk("add", s, X, X + 2))
    for i in range(2, 9):
        k(pk("add", s, s, X + 2 * i))
    k("s_nop 0")
    wave_sum2(k, s, s + 1, t2, t2 + 1)
    k(f"""v_mul_f32 v{m}, s44, v{s}
v_mul_f32 v{m+1}, s44, v{s+1}""")
    for i in range(9):
        k(pk("add", O + 2 * i, X + 2 * i, m, mods="neg_lo:[0,1] neg_hi:[0,1]"))
    k(pk("mul", s, O, O))
    for i in range(1, 9):
        k(pk("fma", s, O + 2 * i, O + 2 * i, s))
    k("s_nop 0")
    wave_sum2(k, s, s + 1, t2, t2 + 1)
    k(f"""v_mul_f32 v{s}, s44, v{s}
v_mul_f32 v{s+1}, s44, v{s+1}""")
    rnd_pair(k, m, m + 1, T, 40)
    rnd_pair(k, s, s + 1, T + 1, 40)
    k(f"""v_add_f32 v{s}, s45, v{s}
v_add_f32 v{s+1}, s45, v{s+1}""")
    rnd_pair(k, s, s + 1, T, 40)
    k(f"""v_sqrt_f32 v{s}, v{s}
v_sqrt_f32 v{s+1}, v{s+1}
s_nop 0""")
    rnd_pair(k, s, s + 1, T, 40)
    k(f"""v_rcp_f32 v{t2}, v{s}
v_rcp_f32 v{t2+1}, v{s+1}""")
    for i in range(9):
        k(pk("add", O + 2 * i, X + 2 * i, m, mods="neg_lo:[0,1] neg_hi:[0,1]"))
    rnd18(k, O, T)
    for i in range(9):
        a = T + 2 * (i & 1)
        k(pk("mul", a, O + 2 * i, t2))
        k(pk("fma", q, a, s, O + 2 * i, mods="neg_lo:[1,0,0] neg_hi:[1,0,0]"))
        k(pk("fma", O + 2 * i, q, t2, a))
    rnd18(k, O, T)


def gen_mega(exact=True):
    k = K("mega_kernel")
    k.kid = 0
    k.wsg = 18
    Lexit = k.label("exit")
    DAH = 4
    RING = 6
    NV = 56
    WRG = 192
    DUM = WRG + 4 * RING
    k.agpr = DUM + 4
    k.vgpr = 256
    k.sgpr = 70
    VX, VD, VB, VD2 = 4, 8, 12, 27
    P1, P2 = F * 2, D * 2

    def publish(off_sgpr_or_imm, rep=True):
        Lw = k.label("pubskip")
        k(f"""s_waitcnt vmcnt(0) lgkmcnt(0)
s_barrier
s_cmp_lg_u32 s18, 0
s_cbranch_scc1 {Lw}
s_mov_b64 exec, {(1 << NREP) - 1 if rep else 1}
v_mul_u32_u24 v2, {REPS}, v1
v_add_u32 v2, {off_sgpr_or_imm}, v2
v_mov_b32 v3, s3
global_store_dword v2, v3, s[12:13] sc1
s_mov_b64 exec, -1""")
        k.put(Lw)

    def wait_flags(base, nlanes, barrier=True, sleep=1, x4=True, rep=True):
        Lw = k.label("wskip")
        Lp = k.label("poll")
        Lq = k.label("pdone")
        k(f"""s_cmp_lg_u32 s18, 0
s_cbranch_scc1 {Lw}
v_min_u32 v2, {nlanes-1}, v1
v_lshlrev_b32 v2, {4 if x4 else 2}, v2
v_add_u32 v2, {base}, v2
s_and_b32 s36, s2, {NREP - 1}
s_mul_i32 s36, s36, {REPS if rep else 0}
v_add_u32 v2, s36, v2
s_mov_b32 s36, 0""")
        k.put(Lp)
        if x4:
            k(f"""global_load_dwordx4 v[28:31], v2, s[12:13] sc1
s_add_u32 s36, s36, 1
s_waitcnt vmcnt(0)
v_xor_b32 v28, s3, v28
v_xor_b32 v29, s3, v29
v_xor_b32 v30, s3, v30
v_xor_b32 v31, s3, v31
v_or3_b32 v28, v28, v29, v30
v_or_b32 v28, v28, v31
v_cmp_ne_u32 vcc, 0, v28""")
        else:
            k(f"""global_load_dword v28, v2, s[12:13] sc1
s_add_u32 s36, s36, 1
s_waitcnt vmcnt(0)
v_cmp_ne_u32 vcc, s3, v28""")
        k(f"""s_cmp_ge_u32 s36, {SPIN_MAX}
s_cbranch_scc1 {Lq}
s_cbranch_vccz {Lq}
s_sleep {sleep}
s_branch {Lp}""")
        k.put(Lq)
        k.put(Lw)
        if barrier:
            k("s_barrier")

    def modflag_load():
        k(f"""v_min_u32 v2, 53, v1
v_lshlrev_b32 v2, 2, v2
s_and_b32 s36, s2, {NREP - 1}
s_mul_i32 s36, s36, {REPS}
s_add_u32 s36, s36, {F1 + 144 * 4}
v_add_u32 v2, s36, v2
global_load_dword v28, v2, s[12:13] sc1""")

    def modp_issue():
        k.srd_off(56, 10, 11, WS_MODP, 9216)
        k("""s_movk_i32 s36, 4096
s_movk_i32 s37, 8192
v_lshlrev_b32 v29, 4, v1""")
        for i in range(9):
            so = "0" if i < 4 else ("s36" if i < 8 else "s37")
            k(f"buffer_load_dwordx4 a[{4*i}:{4*i+3}], v29, s[56:59], {so} offen offset:{1024*(i%4)} sc1")
        k("s_mov_b32 s33, 1" if False else "s_mov_b32 s47, 1")

    def modp_blocking():
        Lp = k.label("mpoll")
        Lq = k.label("mdone")
        k("s_mov_b32 s38, 0")
        k.put(Lp)
        modflag_load()
        k(f"""s_add_u32 s38, s38, 1
s_waitcnt vmcnt(0)
v_cmp_ne_u32 vcc, s3, v28
s_cmp_ge_u32 s38, {SPIN_MAX}
s_cbranch_scc1 {Lq}
s_cbranch_vccz {Lq}
s_sleep 8
s_branch {Lp}""")
        k.put(Lq)
        modp_issue()

    k(f"""s_cmp_ge_u32 s2, 256
s_cbranch_scc1 {Lexit}""")
    k.stamp_init()
    Lp0mod = k.label("p0mod")
    Lp0idle = k.label("p0idle")
    Lp0done = k.label("p0done")
    Lnw0 = k.label("nonce_skip")
    k(f"""s_load_dwordx4 s[4:7], s[0:1], {ARG['k']}
s_load_dwordx2 s[8:9], s[0:1], {ARG['shift']}
s_load_dwordx4 s[48:51], s[0:1], {ARG['c']}
s_load_dwordx4 s[52:55], s[0:1], {ARG['dbg']}
s_load_dwordx2 s[64:65], s[0:1], {ARG['ssmk']}
s_load_dwordx2 s[66:67], s[0:1], {ARG['q']}
s_memrealtime s[56:57]
s_getreg_b32 s69, hwreg(HW_REG_XCC_ID, 0, 4)
s_mov_b32 s40, 0xffff0000
v_and_b32 v1, 63, v0
v_lshrrev_b32 v2, 6, v0
s_nop 0
v_readfirstlane_b32 s18, v2
v_and_b32 v4, 7, v0
v_lshrrev_b32 v5, 3, v0
s_waitcnt lgkmcnt(0)
s_mov_b32 s10, s54
s_mov_b32 s11, s55
s_add_u32 s12, s10, {WS_CNT}
s_addc_u32 s13, s11, 0
v_mov_b32 v252, 0
s_cmp_lg_u32 s18, 0
s_cbranch_scc1 {Lnw0}
s_cmp_lg_u32 s2, 255
s_cbranch_scc1 {Lnw0}
s_or_b32 s56, s56, 1
s_lshl_b32 s56, s56, 4
s_mov_b64 exec, 1
v_mov_b32 v250, s56
global_store_dword v252, v250, s[52:53] sc1
s_mov_b64 exec, -1""")
    k.put(Lnw0)
    if os.environ.get("ST0"):
        k.stamp(14)

    def nonce_resolve():
        L = k.label("nres")
        Lp = k.label("npoll")
        Lq = k.label("ndone")
        k(f"""s_cmp_lg_u32 s18, 0
s_cbranch_scc1 {L}
s_mov_b32 s36, 0""")
        k.put(Lp)
        k(f"""global_load_dword v253, v252, s[52:53] sc1
s_add_u32 s36, s36, 1
s_waitcnt vmcnt(0)
v_readfirstlane_b32 s3, v253
s_cmp_ge_u32 s36, {SPIN_MAX}
s_cbranch_scc1 {Lq}
s_cmp_eq_u32 s3, 0
s_cbranch_scc1 {Lp}""")
        k.put(Lq)
        k(f"""v_mov_b32 v250, s3
v_mov_b32 v251, {NONCE_LDS}
ds_write_b32 v251, v250
s_add_u32 s36, s69, 1
s_or_b32 s36, s36, s3
s_lshl_b32 s37, s2, 2
s_add_u32 s37, s37, {FREG}
s_mov_b64 exec, 1
v_mov_b32 v250, s36
v_mov_b32 v251, s37
global_store_dword v251, v250, s[12:13] sc1
s_mov_b64 exec, -1""")
        k.put(L)

    def conv_early():
        L = k.label("noconv_early")
        k(f"""s_cmp_ge_u32 s2, 144
s_cbranch_scc1 {L}
s_mul_i32 s14, s18, {CONV_LDS}
s_lshl_b32 s15, s2, 2
s_add_u32 s15, s15, s18
v_mov_b32 v244, 0
v_mov_b32 v245, 0
v_mov_b32 v246, 0
v_mov_b32 v247, 0
v_bfe_u32 v240, v1, 2, 2
v_and_b32 v241, 3, v1
v_mul_u32_u24 v240, {SU}, v240
v_lshl_add_u32 v240, v241, 4, v240
v_add_u32 v240, s14, v240
ds_write_b128 v240, v[244:247] offset:4096
v_lshrrev_b32 v240, 5, v1
v_mul_u32_u24 v240, {SK}, v240
v_and_b32 v241, 31, v1
v_lshl_add_u32 v240, v241, 4, v240
v_add_u32 v240, s14, v240
ds_write_b128 v240, v[244:247] offset:{KB}
s_lshl_b32 s36, s15, 12
v_lshlrev_b32 v240, 4, v1""")
        k.srd_off(60, 64, 65, "s36", 4096)
        k("s_waitcnt lgkmcnt(0)")
        for dst in (KB + 456, KB + SK + 448):
            k(f"s_add_u32 m0, s14, {dst}")
            k("s_nop 0")
            for i in range(4):
                k(f"buffer_load_dwordx4 v240, s[60:63], 0 offen offset:{1024*i} lds")
        k.put(L)

    X = 200
    O = 218

    def x_loads():
        k.srd(56, 66, 67, SD2)
        for i in range(18):
            k(f"v_mov_b32 v{X+i}, 0")
        k(f"""s_lshl_b32 s68, s2, 3
s_lshl_b32 s37, s18, 1
s_add_u32 s68, s68, s37
s_mul_i32 s68, s68, 1152
v_lshlrev_b32 v236, 1, v1""")
        for r in range(2):
            for i in range(9):
                k(f"buffer_load_short_d16_hi v{X+2*i+r}, v236, s[56:59], s68 offen offset:{1152*r + 128*i}")

    k(f"""s_cmp_ge_u32 s2, {NKV + 54}
s_cbranch_scc1 {Lp0idle}
s_cmp_ge_u32 s2, {NKV}
s_cbranch_scc1 {Lp0mod}""")
    k.srd(20, 4, 5, SD2)
    k.srd(24, 6, 7, SD2)
    k.srd(28, 8, 9, D * 8)
    k.srd(32, 10, 11, WS_Y2T)
    k(f"""s_mul_i32 s16, s2, 2979
s_lshr_b32 s16, s16, 16
s_mul_i32 s17, s16, 22
s_sub_u32 s17, s2, s17
v_and_b32 v4, 15, v0
v_lshrrev_b32 v5, 4, v0
s_mul_i32 s36, s17, {96*1152}
v_mul_u32_u24 v3, {6*1152}, v5
s_lshl_b32 s37, s16, 7
s_add_u32 s36, s36, s37
v_lshl_add_u32 v3, v4, 3, v3
v_add_u32 v3, s36, v3""")
    A0 = 6
    for r in range(4):
        k(f"v_add_u32 v{A0+r}, {((r - 4) * 1152) & 0xffffffff:#x}, v3")
    k("v_add_u32 v10, 3456, v3")

    def rowaddr(r):
        if r < 4:
            return f"v{A0+r}", 0
        if r < 7:
            return "v3", 1152 * (r - 4)
        return "v10", 1152 * (r - 7)
    KR = 16
    VR = 36
    WR = 52
    for r in range(10):
        a, o = rowaddr(r)
        k(f"buffer_load_dwordx2 v[{KR+2*r}:{KR+2*r+1}], {a}, s[20:23], 0 offen offset:{o}")
    for r in range(7):
        a, o = rowaddr(r + 3)
        k(f"buffer_load_dwordx2 v[{VR+2*r}:{VR+2*r+1}], {a}, s[24:27], 0 offen offset:{o}")
    k(f"""s_lshl_b32 s36, s16, 9
v_lshl_add_u32 v11, v4, 5, s36""")
    for i in range(2):
        k(f"buffer_load_dwordx4 v[{WR+4*i}:{WR+4*i+3}], v11, s[28:31], 0 offen offset:{16*i}")
    conv_early()
    x_loads()
    k("""v_sub_u32 v11, 15, v5
v_mul_u32_u24 v11, 3, v11""")
    for e in range(3):
        k(f"""v_add_u32 v15, {e}, v11
v_lshrrev_b32 v{12+e}, 2, v15
v_xor_b32 v{12+e}, v{12+e}, v4
v_lshlrev_b32 v{12+e}, 4, v{12+e}
v_and_b32 v15, 3, v15
v_lshl_add_u32 v{12+e}, v15, 2, v{12+e}
v_lshl_add_u32 v{12+e}, v4, 10, v{12+e}
v_add_u32 v{12+e}, {P0_LDS}, v{12+e}""")
    WF = 60
    KF = 76
    U = 116
    P = 144
    Lwa = k.label("kvw_a")
    Lwb = k.label("kvw_b")
    k(f"""s_cmp_ge_u32 s2, 144
s_cbranch_scc1 {Lwa}
s_waitcnt vmcnt(26)
s_branch {Lwb}""")
    k.put(Lwa)
    k("s_waitcnt vmcnt(18)")
    k.put(Lwb)
    k.stamp(2)
    for j in range(4):
        k(f"""v_lshlrev_b32 v{WF+0*4+j}, 16, v{WR+2*j}
v_and_b32 v{WF+1*4+j}, s40, v{WR+2*j}
v_lshlrev_b32 v{WF+2*4+j}, 16, v{WR+2*j+1}
v_and_b32 v{WF+3*4+j}, s40, v{WR+2*j+1}""")
    for r in range(10):
        for q in range(2):
            k(f"""v_lshlrev_b32 v{KF+4*r+2*q}, 16, v{KR+2*r+q}
v_and_b32 v{KF+4*r+2*q+1}, s40, v{KR+2*r+q}""")
    for o in range(7):
        for q in range(2):
            for t in range(4):
                k(f"v_pk_mul_f32 v[{P+2*t}:{P+2*t+1}], v[{KF+4*(o+t)+2*q}:{KF+4*(o+t)+2*q+1}], v[{WF+4*(3-t)+2*q}:{WF+4*(3-t)+2*q+1}]")
            k(f"""v_lshlrev_b32 v{P+12}, 16, v{VR+2*o+q}
v_and_b32 v{P+13}, s40, v{VR+2*o+q}""")
            for t in range(4):
                rnd_pair(k, P + 2 * t, P + 2 * t + 1, P + 8 + t, 40)
            for t in range(1, 4):
                k(f"v_pk_add_f32 v[{P}:{P+1}], v[{P}:{P+1}], v[{P+2*t}:{P+2*t+1}]")
                rnd_pair(k, P, P + 1, P + 8, 40)
            k(f"v_pk_mul_f32 v[{U+4*o+2*q}:{U+4*o+2*q+1}], v[{P}:{P+1}], v[{P+12}:{P+13}]")
    n = 0
    for j in range(4):
        for e in range(3):
            hi = 6 - 2 * e
            b = P + 2 * (n % 4)
            n += 1
            k(f"""v_cvt_pk_bf16_f32 v{b}, v{U+4*hi+j}, v{U+4*(hi-1)+j}
v_cvt_pk_bf16_f32 v{b+1}, v{U+4*(hi-1)+j}, v{U+4*(hi-2)+j}
ds_write_b32 v{12+e}, v{b} offset:{j*256}
ds_write_b32 v{12+e}, v{b+1} offset:{16384+j*256}""")
    nonce_resolve()
    k(f"""v_lshrrev_b32 v8, 2, v5
v_xor_b32 v8, v4, v8
v_lshlrev_b32 v8, 4, v8
v_lshl_add_u32 v8, v5, 8, v8
v_add_u32 v8, {P0_LDS}, v8
s_mul_i32 s36, s16, {64*RS}
s_mul_i32 s37, s17, 192
s_sub_u32 s36, s36, s37
s_add_u32 s36, s36, {4096 - 192}
v_mul_u32_u24 v9, {RS}, v5
v_lshl_add_u32 v9, v4, 4, v9
v_add_u32 v9, s36, v9
v_cmp_gt_u32 vcc, 12, v4
s_waitcnt lgkmcnt(0)
s_barrier""")
    for it in range(4):
        k(f"v_xor_b32 v{10+it}, {64*it}, v8")
    k(f"v_mov_b32 v250, {NONCE_LDS}\nds_read_b32 v250, v250")
    for a in range(2):
        for it in range(4):
            k(f"ds_read_b128 v[{16+16*a+4*it}:{16+16*a+4*it+3}], v{10+it} offset:{16384*a + 4096*it}")
    k("s_mov_b64 exec, vcc")
    for a in range(2):
        for it in range(4):
            k(f"""v_add_u32 v15, {WS_UR1*a + 16*RS*it}, v9
s_waitcnt lgkmcnt({7 - 4*a - it})
buffer_store_dwordx4 v[{16+16*a+4*it}:{16+16*a+4*it+3}], v15, s[32:35], 0 offen sc1""")
    k(f"""s_mov_b64 exec, -1
v_readfirstlane_b32 s3, v250
s_branch {Lp0done}""")

    k.put(Lp0mod)
    k(f"s_sub_u32 s16, s2, {NKV}")
    k.srd(20, 48, 49, D * 2)
    k.srd(24, 50, 51, D * 6 * D * 2)
    k.srd_off(28, 10, 11, WS_MODP, 0x8000)
    WL = 32
    CL = 8
    k(f"""s_movk_i32 s37, 6912
v_mul_lo_u32 v3, v5, s37
s_lshl_b32 s36, s16, 7
v_lshl_add_u32 v6, v4, 4, s36
v_add_u32 v3, v3, v6
v_lshlrev_b32 v6, 1, v5""")
    for i in range(18):
        k(f"v_mov_b32 v{CL+i}, 0")
    for i in range(18):
        k(f"buffer_load_short_d16_hi v{CL+i}, v6, s[20:23], 0 offen offset:{64*i}")
    k("s_mov_b32 s36, 0")
    for i in range(18):
        k(f"buffer_load_dwordx4 v[{WL+4*i}:{WL+4*i+3}], v3, s[24:27], s36 offen")
        if i < 17:
            k(f"s_add_u32 s36, s36, {32*6912}")
    k("s_mov_b32 s37, 0xbfb8aa3b")
    k("s_waitcnt vmcnt(18)")
    for i in range(18):
        k(f"v_mul_f32 v{104+i}, s37, v{CL+i}")
    for i in range(18):
        k(f"v_exp_f32 v{104+i}, v{104+i}")
    for i in range(18):
        k(f"v_add_f32 v{104+i}, 1.0, v{104+i}")
    for i in range(18):
        k(f"v_rcp_f32 v{104+i}, v{104+i}")
    k("s_nop 0")
    for i in range(18):
        k(f"v_mul_f32 v{CL+i}, v{CL+i}, v{104+i}")
    for i in range(0, 18, 2):
        rnd_pair(k, CL + i, CL + i + 1, 104 + i, 40)
    ACC = 124
    for j in range(8):
        k(f"v_mov_b32 v{ACC+j}, 0")
    for i in range(18):
        k(f"s_waitcnt vmcnt({17-i})")
        for q in range(4):
            k(f"""v_lshlrev_b32 v{104+2*q}, 16, v{WL+4*i+q}
v_and_b32 v{104+2*q+1}, s40, v{WL+4*i+q}""")
        for j in range(8):
            k(f"v_fmac_f32 v{ACC+j}, v{CL+i}, v{104+j}")
    x_loads()
    nonce_resolve()
    Lm1 = k.label("mod_w0")
    k(f"""v_lshlrev_b32 v6, 8, v5
v_lshl_add_u32 v6, v4, 5, v6
ds_write_b128 v6, v[{ACC}:{ACC+3}]
ds_write_b128 v6, v[{ACC+4}:{ACC+7}] offset:16
v_lshlrev_b32 v7, 2, v0
s_waitcnt lgkmcnt(0)
s_barrier
v_mov_b32 v250, {NONCE_LDS}
ds_read_b32 v250, v250
s_waitcnt lgkmcnt(0)
v_readfirstlane_b32 s3, v250
s_cmp_lg_u32 s18, 0
s_cbranch_scc1 {Lp0done}""")
    for i in range(32):
        k(f"ds_read_b32 v{32+i}, v7 offset:{256*i}")
    k("s_waitcnt lgkmcnt(0)")
    for st in (16, 8, 4, 2, 1):
        for i in range(st):
            k(f"v_add_f32 v{32+i}, v{32+i}, v{32+i+st}")
    k(f"""s_mul_i32 s17, s16, 7282
s_lshr_b32 s17, s17, 16
s_mul_i32 s36, s17, 9
s_sub_u32 s36, s16, s36
v_cvt_pk_bf16_f32 v33, v32, v32
v_and_b32 v32, s40, v33
v_add_f32 v34, 1.0, v32
v_cvt_pk_bf16_f32 v34, v34, v34
s_cmp_eq_u32 s17, 1
s_cselect_b32 s37, 1, 0
s_cmp_eq_u32 s17, 4
s_cselect_b32 s37, 1, s37
s_cmp_eq_u32 s37, 1
s_cselect_b64 vcc, -1, 0
s_lshl_b32 s36, s36, 6
v_add_u32 v8, s36, v0
v_cndmask_b32 v33, v33, v34, vcc
v_lshlrev_b32 v9, 4, v8
s_lshl_b32 s37, s17, 1
buffer_store_short v33, v9, s[28:31], s37 offen sc1
s_cmp_lg_u32 s17, 5
s_cbranch_scc1 {Lp0done}
v_lshlrev_b32 v9, 2, v8
s_movk_i32 s37, 0x4000
buffer_store_dword v32, v9, s[28:31], s37 offen sc1
s_branch {Lp0done}""")

    k.put(Lp0idle)
    k(f"""s_getpc_b64 s[4:5]
s_add_u32 s4, s4, code_begin@rel32@lo+4
s_addc_u32 s5, s5, code_begin@rel32@hi+12
s_getpc_b64 s[6:7]
s_add_u32 s6, s6, desc_begin@rel32@lo+4
s_addc_u32 s7, s7, desc_begin@rel32@hi+12
v_lshlrev_b32 v6, 7, v0
v_min_u32 v7, code_end-code_begin-4, v6
v_add_u32 v8, 32768, v6
v_min_u32 v8, code_end-code_begin-4, v8
v_lshlrev_b32 v9, 6, v4
v_min_u32 v9, desc_end-desc_begin-4, v9
global_load_dword v10, v7, s[4:5]
global_load_dword v11, v8, s[4:5]
global_load_dword v12, v9, s[6:7]""")
    x_loads()
    nonce_resolve()
    k(f"""s_waitcnt lgkmcnt(0)
s_barrier
v_mov_b32 v250, {NONCE_LDS}
ds_read_b32 v250, v250
s_waitcnt lgkmcnt(0)
v_readfirstlane_b32 s3, v250""")
    k.put(Lp0done)
    k.stamp(3)
    k(f"""s_load_dwordx4 s[4:7], s[0:1], {ARG['ssmk']}
s_load_dwordx4 s[48:51], s[0:1], {ARG['wg']}
s_load_dwordx2 s[8:9], s[0:1], {ARG['wd']}
s_lshl_b32 s36, s16, 5
s_add_u32 s36, s36, s17
s_lshl_b32 s36, s36, 2
s_lshl_b32 s37, s2, 2
s_add_u32 s37, s37, {F1 - 54*4}
s_cmp_lt_u32 s2, {NKV}
s_cselect_b32 s37, s36, s37""")
    publish("s37")
    if os.environ.get("ST1"):
        k.stamp(14)
    k("""s_mov_b32 s44, 0x3ae38e39
s_mov_b32 s45, 0x3727c5ac""")
    Lp1pf = k.label("p1pf")
    Lp1done = k.label("p1done")
    Lln = k.label("ln1")
    Lpf2 = k.label("p1pf2")
    k(f"""s_cmp_ge_u32 s2, 144
s_cbranch_scc1 {Lp1pf}""")
    k.put(Lln)
    layernorm2(k, X, O, 240, 244)
    k(f"""s_cmp_ge_u32 s2, 144
s_cbranch_scc1 {Lpf2}""")
    k(f"""v_and_b32 v17, 15, v1
v_lshrrev_b32 v18, 4, v1
v_lshrrev_b32 v19, 2, v17
v_and_b32 v8, 3, v1
s_movk_i32 s16, {SU}
s_movk_i32 s17, {SK}
s_lshl_b32 s37, s15, 1
s_and_b32 s37, s37, 0xfffffffc
v_lshlrev_b32 v11, 4, v1
s_load_dword s41, s[6:7], s37
s_mul_i32 s36, s15, {RS}
s_add_u32 s38, s10, s36
s_addc_u32 s39, s11, 0""")
    k.srd_off(24, 38, 39, WS_UR0, 4096)
    k.srd_off(28, 38, 39, WS_UR1, 4096)
    k.srd_off(32, 10, 11, WS_Y2T, SD2)

    def dma_copy(srd, dst, sc):
        k(f"s_add_u32 m0, s14, {dst}")
        k("s_nop 0")
        for i in range(4):
            k(f"buffer_load_dwordx4 v11, s[{srd}:{srd+3}], 0 offen offset:{1024*i}{sc} lds")
    k(f"""v_mul_u32_u24 v12, s16, v8
v_sub_u32 v13, v18, v19
v_lshl_add_u32 v12, v13, 4, v12
v_add_u32 v12, 48, v12
v_add_u32 v12, s14, v12
v_and_b32 v13, 1, v1
v_mul_u32_u24 v13, s17, v13
v_lshrrev_b32 v14, 1, v17
v_lshl_add_u32 v13, v14, 6, v13
v_lshl_add_u32 v13, v18, 4, v13
v_add_u32 v13, {KB}, v13
v_add_u32 v13, s14, v13
v_and_b32 v15, 1, v1
v_lshlrev_b32 v15, 3, v15
v_lshl_add_u32 v16, v14, 6, v15
v_lshl_add_u32 v16, v18, 4, v16
v_sub_u32 v16, {3*SU + 4104 - 3584}, v16
v_add_u32 v16, s14, v16
v_lshrrev_b32 v9, 1, v18
v_lshl_add_u32 v14, v14, 1, v9
v_lshl_add_u32 v15, v14, 7, v15
v_and_b32 v9, 1, v18
v_lshl_add_u32 v15, v9, 4, v15
s_lshl_b32 s36, s18, 5
s_add_u32 s36, s36, {YT_LDS}
v_add_u32 v15, s36, v15""")
    CACC = 32
    FR = 64
    for i in range(32):
        k(f"v_mov_b32 v{CACC+i}, 0")
    k(f"""s_lshr_b32 s36, s2, 4
s_lshl_b32 s37, s36, 7""")
    if os.environ.get("ST1"):
        k.stamp(15)
        k("s_waitcnt vmcnt(0)")
        k.stamp(13)
    wait_flags("s37", 22, x4=False)
    k.stamp(6)
    for srd, dst in [(28, 12), (24, SU + 12), (28, 2 * SU + 16), (24, 3 * SU + 16)]:
        dma_copy(srd, dst, " sc1")
    modflag_load()

    def creads(r):
        st = r & 1
        out = []
        for n in range(8):
            out.append(f"ds_read_b128 v[{FR+64*st+4*n}:{FR+64*st+4*n+3}], v12 offset:{3648 - 48 + 64*r - 512*n}")
            out.append(f"ds_read_b128 v[{FR+64*st+32+4*n}:{FR+64*st+32+4*n+3}], v13 offset:{64*r + 512*n}")
        return out
    Lnm = k.label("nomodp")
    k("s_waitcnt vmcnt(0)")
    k.stamp(7)
    for ln in creads(0):
        k(ln)
    k(f"""v_cmp_ne_u32 vcc, s3, v28
s_mov_b32 s47, 0
s_nop 3
s_cbranch_vccnz {Lnm}""")
    modp_issue()
    k.put(Lnm)
    Lc = k.label("cloop")
    k("s_mov_b32 s37, 0")
    k.put(Lc)
    for rr in range(2):
        st = rr
        nxt = creads(rr + 1)
        k("s_waitcnt lgkmcnt(0)")
        i = 0
        for w in range(8):
            for q in range(8 - w):
                t = q + w
                k(f"v_mfma_f32_16x16x32_bf16 v[{CACC+4*t}:{CACC+4*t+3}], v[{FR+64*st+4*w}:{FR+64*st+4*w+3}], v[{FR+64*st+32+4*q}:{FR+64*st+32+4*q+3}], v[{CACC+4*t}:{CACC+4*t+3}]")
                if i < len(nxt):
                    k(nxt[i])
                i += 1
    k(f"""v_add_u32 v12, 128, v12
v_add_u32 v13, 128, v13
s_add_u32 s37, s37, 1
s_cmp_lt_u32 s37, 4
s_cbranch_scc1 {Lc}
s_waitcnt lgkmcnt(0)""")
    k.stamp(8)
    UV = FR
    for t in range(8):
        k(f"ds_read_b64 v[{UV+2*t}:{UV+2*t+1}], v16 offset:{512*(7-t)}")
    k(f"""s_and_b32 s42, s15, 1
s_lshl_b32 s43, s41, 16
s_and_b32 s41, s41, s40
s_cmp_eq_u32 s42, 0
s_cselect_b32 s41, s43, s41
s_waitcnt lgkmcnt(0)""")
    T = FR + 32
    for t in range(8):
        a = CACC + 4 * t
        u0, u1 = UV + 2 * t, UV + 2 * t + 1
        b = T + 8 * (t & 1)
        k(f"""v_and_b32 v{b}, s40, v{u1}
v_lshlrev_b32 v{b+1}, 16, v{u1}
v_and_b32 v{b+2}, s40, v{u0}
v_lshlrev_b32 v{b+3}, 16, v{u0}
v_pk_mul_f32 v[{b}:{b+1}], v[{b}:{b+1}], s[42:43] op_sel_hi:[1,0]
v_pk_mul_f32 v[{b+2}:{b+3}], v[{b+2}:{b+3}], s[42:43] op_sel_hi:[1,0]""" if False else f"""v_and_b32 v{b}, s40, v{u1}
v_lshlrev_b32 v{b+1}, 16, v{u1}
v_and_b32 v{b+2}, s40, v{u0}
v_lshlrev_b32 v{b+3}, 16, v{u0}
v_mul_f32 v{b}, s41, v{b}
v_mul_f32 v{b+1}, s41, v{b+1}
v_mul_f32 v{b+2}, s41, v{b+2}
v_mul_f32 v{b+3}, s41, v{b+3}""")
        rnd_pair(k, b, b + 1, b + 4, 40)
        rnd_pair(k, b + 2, b + 3, b + 5, 40)
        rnd_pair(k, a, a + 1, b + 4, 40)
        rnd_pair(k, a + 2, a + 3, b + 5, 40)
        k(f"""v_pk_add_f32 v[{b}:{b+1}], v[{b}:{b+1}], v[{a}:{a+1}]
v_pk_add_f32 v[{b+2}:{b+3}], v[{b+2}:{b+3}], v[{a+2}:{a+3}]
v_cvt_pk_bf16_f32 v{b+6}, v{b}, v{b+1}
v_cvt_pk_bf16_f32 v{b+7}, v{b+2}, v{b+3}
ds_write_b64 v15, v[{b+6}:{b+7}] offset:{2048*t}""")
    k(f"""v_lshlrev_b32 v4, 4, v0
v_add_u32 v4, {YT_LDS}, v4
v_lshrrev_b32 v5, 3, v0
v_mul_u32_u24 v5, 18432, v5
v_and_b32 v6, 7, v0
v_lshl_add_u32 v5, v6, 4, v5
s_lshl_b32 s36, s2, 7
s_waitcnt lgkmcnt(0)
s_barrier""")
    for it in range(4):
        k(f"ds_read_b128 v[{32+4*it}:{35+4*it}], v4 offset:{4096*it}")
    for it in range(4):
        k(f"""s_waitcnt lgkmcnt({3-it})
buffer_store_dwordx4 v[{32+4*it}:{35+4*it}], v5, s[32:35], s36 offen sc1
s_add_u32 s36, s36, {32*18432}""")
    k(f"""s_lshl_b32 s37, s2, 2
s_add_u32 s37, s37, {F1}""")
    publish("s37")
    k(f"s_branch {Lp1done}")
    k.put(Lp1pf)
    k.srd(20, 48, 49, D * F * 2)
    k(f"""s_sub_u32 s38, s2, 144
s_lshl_b32 s38, s38, 2
s_add_u32 s38, s38, s18
s_lshl_b32 s38, s38, 13
s_add_u32 s39, s38, {448*8192}
v_lshlrev_b32 v4, 7, v1
buffer_load_dword v254, v4, s[20:23], s38 offen
buffer_load_dword v255, v4, s[20:23], s39 offen""")
    wait_flags("0", 22, sleep=16, x4=False)
    k(f"s_branch {Lln}")
    k.put(Lpf2)
    k("""s_mov_b32 s42, s38""")
    modp_blocking()
    k("""s_mov_b32 s38, s42""")
    k.srd(24, 50, 51, D * F * 2)
    k.srd(28, 8, 9, D * F * 2)
    k.srd_off(32, 10, 11, WS_HM, HM_BYTES)
    k(f"""buffer_load_dword v254, v4, s[24:27], s38 offen
buffer_load_dword v255, v4, s[24:27], s39 offen""")
    k(f"""s_sub_u32 s36, s2, 144
s_lshr_b32 s36, s36, 3
s_lshl_b32 s36, s36, 2
s_add_u32 s36, s36, s18
s_lshl_b32 s36, s36, 1
v_lshrrev_b32 v5, 5, v1
v_add_u32 v5, s36, v5
v_and_b32 v6, 31, v1
v_lshlrev_b32 v6, 7, v6
s_bfe_u32 s36, s2, 0x10002
s_mul_i32 s36, s36, {64*147456}
s_and_b32 s37, s2, 3
s_mul_i32 s37, s37, 36864
s_add_u32 s36, s36, s37
v_add_u32 v6, s36, v6
s_movk_i32 s37, 7282
s_mov_b32 s41, {147456 - 9*4096}""")
    for it in range(NHMT):
        k(f"""v_min_u32 v7, 575, v5
v_mul_lo_u32 v8, v7, s37
v_lshrrev_b32 v8, 16, v8
v_mul_lo_u32 v8, v8, s41
v_lshl_add_u32 v8, v7, 12, v8
v_add_u32 v8, v8, v6
v_add_u32 v5, 112, v5
s_waitcnt vmcnt({PFD - 1})
buffer_load_dword v254, v8, s[32:35], 0 offen sc1""")
    if PF_WD:
        k(f"""s_waitcnt vmcnt({PFD - 1})
buffer_load_dword v254, v4, s[28:31], s38 offen
s_waitcnt vmcnt({PFD - 1})
buffer_load_dword v255, v4, s[28:31], s39 offen""")
    k.put(Lp1done)
    k.stamp(9)

    k(f"""s_waitcnt lgkmcnt(0)
s_mov_b32 s4, s48
s_mov_b32 s5, s49
s_mov_b32 s6, s50
s_mov_b32 s7, s51
s_and_b32 s16, s2, 7
s_lshr_b32 s17, s2, 3
s_lshr_b32 s19, s18, 1
s_and_b32 s20, s18, 1
s_and_b32 s53, s17, 3
s_and_b32 s62, s16, 3
s_lshr_b32 s37, s16, 2
s_lshl_b32 s52, s62, 1
s_bfe_u32 s36, s17, 0x10002
s_add_u32 s52, s52, s36
s_lshl_b32 s22, s37, 2
s_lshr_b32 s36, s17, 3
s_add_u32 s22, s22, s36
s_lshl_b32 s23, s22, 4
s_lshl_b32 s36, s18, 2
s_add_u32 s23, s23, s36
s_lshl_b32 s63, s37, 3
s_lshr_b32 s36, s17, 2
s_add_u32 s63, s63, s36
s_lshl_b32 s64, s63, 3
s_lshl_b32 s37, s20, 2
s_add_u32 s64, s64, s37
s_mul_i32 s36, s23, 18432""")
    Y = 50
    T = 86
    R = 90
    MP = 100
    k(f"v_lshl_add_u32 v{VX}, v1, 4, s36")
    for st in range(1, 4):
        k(f"v_add_u32 v{VX+st}, 18432, v{VX+st-1}")

    def dma_voffs(vd, pitch):
        k(f"""s_mul_i32 s37, s20, {32*pitch}
s_add_u32 s38, s38, s37
s_lshl_b32 s37, s53, 8
s_add_u32 s39, s38, s37
s_lshl_b32 s37, s53, 5
s_add_u32 s41, s38, s37
s_add_u32 s41, s41, 1024
s_movk_i32 s37, {pitch}
v_lshrrev_b32 v22, 4, v1
v_and_b32 v23, 15, v1
v_mul_lo_u32 v24, v22, s37
v_add_u32 v24, s39, v24
v_lshlrev_b32 v25, 1, v22
v_xor_b32 v25, v23, v25
v_lshl_add_u32 v{vd}, v25, 4, v24
v_xor_b32 v25, 8, v25
v_lshl_add_u32 v{vd+1}, v25, 4, v24
v_add_u32 v{vd+1}, {4*pitch}, v{vd+1}
v_lshrrev_b32 v22, 1, v1
v_mul_lo_u32 v24, v22, s37
v_and_b32 v23, 1, v1
v_lshl_add_u32 v24, v23, 4, v24
v_add_u32 v{vd+2}, s41, v24""")
    VD2 = 25
    k("s_mul_i32 s38, s52, 1152")
    dma_voffs(VD, P1)
    k(f"""s_mul_i32 s42, s19, 18432
s_lshl_b32 s36, s20, 10
s_add_u32 s43, s42, s36
s_add_u32 s43, s43, 16384
s_lshl_b32 s36, s20, 13
s_add_u32 s42, s42, s36
v_lshrrev_b32 v22, 2, v1
v_and_b32 v23, 3, v1
v_lshlrev_b32 v23, 3, v23
v_lshl_add_u32 v24, v22, 8, v23
v_and_b32 v25, 7, v22""")
    for t in range(8):
        k(f"""v_xor_b32 v26, {t}, v25
v_lshl_add_u32 v{VB+t}, v26, 5, v24""")
    k(f"""v_lshl_add_u32 v{VB+8}, v22, 5, v23
v_add_u32 v{VB+8}, 16384, v{VB+8}
s_mov_b32 s54, 0
s_mov_b32 s55, 0
s_mov_b32 s46, 0
s_mov_b32 s65, {8*P1}
s_mov_b32 s66, {64*P1}
s_cmp_eq_u32 s19, 0
s_cselect_b32 s14, s4, s6
s_cselect_b32 s15, s5, s7""")
    k.srd(24, 14, 15, D * F * 2)

    def dma_list():
        out = []
        for n in range(8):
            pre = "s_add_u32 s60, s55, s42\ns_mov_b32 s61, s54\n" if n == 0 else ""
            post = "\ns_add_u32 s61, s61, s65" if (n & 1) and n < 7 else ""
            out.append(f"""{pre}s_add_u32 m0, s60, {1024*n}
s_nop 0
buffer_load_dwordx4 v{VD+(n&1)}, s[24:27], s61 offen lds{post}""")
        out.append(f"""s_add_u32 m0, s55, s43
s_nop 0
buffer_load_dwordx4 v{VD+2}, s[24:27], s54 offen lds
s_add_u32 s54, s54, s66
s_add_u32 s55, s55, {STG}
s_cmp_ge_u32 s55, {STG*NBUF}
s_cselect_b32 s55, 0, s55""")
        return out
    k.srd_off(28, 10, 11, WS_Y2T, SD2)
    BC = "op_sel_hi:[1,0]"
    Lhm = k.label("havemodp")
    Lwm = k.label("waitmodp")
    k(f"""s_cmp_eq_u32 s47, 1
s_cbranch_scc1 {Lhm}""")
    modp_blocking()
    k.put(Lhm)
    k(f"""s_lshr_b32 s38, s2, 1
s_mul_i32 s38, s38, 18432
s_and_b32 s36, s2, 1
s_lshl_b32 s36, s36, 4
s_add_u32 s38, s38, s36
s_lshl_b32 s36, s18, 12
s_add_u32 s38, s38, s36
s_add_u32 s39, s38, 2048
v_lshlrev_b32 v141, 5, v1
v_lshlrev_b32 v142, 4, v1
s_lshl_b32 s36, s18, 2
s_add_u32 s36, s36, {ROW_LDS}
v_add_u32 v142, s36, v142
v_lshrrev_b32 v143, 5, v1
v_lshlrev_b32 v143, 9, v143
v_bfe_u32 v144, v1, 2, 2
v_lshl_add_u32 v143, v144, 7, v143
v_bfe_u32 v144, v1, 4, 1
v_lshl_add_u32 v143, v144, 3, v143
v_and_b32 v144, 3, v1
v_lshl_add_u32 v143, v144, 1, v143
s_lshl_b32 s36, s18, 5
s_add_u32 s36, s36, {ROW_LDS + 9216}
v_add_u32 v143, s36, v143
s_cmp_ge_u32 s2, 144
s_cbranch_scc1 {Lwm}
s_waitcnt vmcnt(0)""")
    k.put(Lwm)
    k(f"s_waitcnt vmcnt({2 + NHMT + (2 if PF_WD else 0)})")
    for i in range(9):
        for d in range(3):
            k(f"v_accvgpr_read_b32 v{MP+4*i+d}, a{4*i+d}")
    for i in range(9):
        k(f"v_and_b32 v{T+2*(i&1)}, s40, v{MP+4*i}")
        k(pk("mul", O + 2 * i, O + 2 * i, T + 2 * (i & 1), mods=BC))
    rnd18(k, O, T)
    for i in range(9):
        k(f"v_lshlrev_b32 v{T+2*(i&1)}, 16, v{MP+4*i}")
        k(pk("add", O + 2 * i, O + 2 * i, T + 2 * (i & 1), mods=BC))
    rnd18(k, O, T)
    k.stamp(10)
    wait_flags(str(F1), 36, sleep=SL1)
    k.stamp(11)
    Lno9 = k.label("no9")
    k(f"""s_lshl_b32 s37, s18, 11
s_add_u32 m0, s37, {ROW_LDS}
s_nop 0
buffer_load_dwordx4 v141, s[28:31], s38 offen sc1 lds
s_add_u32 m0, s37, {ROW_LDS + 1024}
s_nop 0
buffer_load_dwordx4 v141, s[28:31], s39 offen sc1 lds
s_cmp_lg_u32 s18, 0
s_cbranch_scc1 {Lno9}
s_add_u32 s38, s38, 16384
s_mov_b32 m0, {ROW_LDS + 8192}
s_nop 0
buffer_load_dwordx4 v141, s[28:31], s38 offen sc1 lds""")
    k.put(Lno9)
    k.srd_off(28, 10, 11, WS_X1, SD2)
    k.srd_off(32, 10, 11, WS_H2, SD2)
    ring0 = dma_list() + dma_list()

    def ring_some(n):
        for _ in range(n):
            if ring0:
                k(ring0.pop(0))
    k("""s_waitcnt vmcnt(0)
s_barrier""")
    for i in range(9):
        k(f"ds_read_b32 v{Y+i}, v142 offset:{1024*i}")
    for i in range(9):
        a = T + 2 * (i & 1)
        k(f"""s_waitcnt lgkmcnt({8-i})
v_lshlrev_b32 v{a}, 16, v{Y+i}
v_and_b32 v{a+1}, s40, v{Y+i}""")
        k(pk("mul", O + 2 * i, O + 2 * i, a))
    if os.environ.get("ST2"):
        k.stamp(13)
    rnd18(k, O, T)
    ring_some(5)
    for i in range(9):
        k(f"v_lshlrev_b32 v{T+2*(i&1)}, 16, v{MP+4*i+1}")
        k(pk("mul", O + 2 * i, O + 2 * i, T + 2 * (i & 1), mods=BC))
    rnd18(k, O, T)
    ring_some(4)
    for i in range(9):
        k(pk("add", X + 2 * i, X + 2 * i, O + 2 * i))
    rnd18(k, X, T)
    ring_some(5)
    layernorm2(k, X, O, T, R)
    ring_some(4)
    for i in range(9):
        k(f"v_lshlrev_b32 v{T+2*(i&1)}, 16, v{MP+4*i+2}")
        k(pk("mul", O + 2 * i, O + 2 * i, T + 2 * (i & 1), mods=BC))
    rnd18(k, O, T)
    for i in range(9):
        k(f"v_and_b32 v{T+2*(i&1)}, s40, v{MP+4*i+1}")
        k(pk("add", O + 2 * i, O + 2 * i, T + 2 * (i & 1), mods=BC))
        k(f"""v_cvt_pk_bf16_f32 v{O+2*i}, v{O+2*i}, v{O+2*i+1}
ds_write_b16 v143, v{O+2*i} offset:{1024*i}
ds_write_b16_d16_hi v143, v{O+2*i} offset:{1024*i+16}""")
    while ring0:
        k(ring0.pop(0))
    if os.environ.get("ST2"):
        k.stamp(14)
    Lno3 = k.label("no3rd")
    k(f"""v_lshlrev_b32 v142, 4, v0
v_add_u32 v142, {ROW_LDS + 9216}, v142
v_lshrrev_b32 v143, 3, v0
v_lshlrev_b32 v143, 8, v143
v_and_b32 v144, 7, v0
v_lshl_add_u32 v143, v144, 4, v143
s_lshr_b32 s36, s2, 1
s_mul_i32 s36, s36, 18432
s_and_b32 s37, s2, 1
s_lshl_b32 s37, s37, 7
s_add_u32 s36, s36, s37
s_add_u32 s37, s36, 8192
s_add_u32 s38, s36, 16384
s_waitcnt lgkmcnt(0)
s_barrier
ds_read_b128 v[32:35], v142
ds_read_b128 v[36:39], v142 offset:4096
s_cmp_lg_u32 s18, 0
s_cbranch_scc1 {Lno3}
ds_read_b128 v[40:43], v142 offset:8192
s_waitcnt lgkmcnt(0)
buffer_store_dwordx4 v[40:43], v143, s[32:35], s38 offen sc1""")
    k.put(Lno3)
    k(f"""s_waitcnt lgkmcnt(0)
buffer_store_dwordx4 v[32:35], v143, s[32:35], s36 offen sc1
buffer_store_dwordx4 v[36:39], v143, s[32:35], s37 offen sc1
s_lshl_b32 s37, s2, 2
s_add_u32 s37, s37, {F2}""")
    if os.environ.get("ST2"):
        k.stamp(15)
    publish("s37")
    k.stamp(12)
    for r in range(2):
        for i in range(9):
            k(f"buffer_store_short_d16_hi v{X+2*i+r}, v236, s[28:31], s68 offen offset:{1152*r + 128*i} sc1")

    VD2 = 25
    k(f"""s_lshl_b32 s38, s62, 1
s_add_u32 s38, s38, s19
s_mul_i32 s38, s38, {576*P2}""")
    dma_voffs(32, P2)
    k(f"""v_mov_b32 v{VD2}, v32
v_mov_b32 v{VD2+1}, v33
v_mov_b32 v{VD2+2}, v34
s_mul_i32 s36, s52, 18
s_lshl_b32 s37, s53, 2
s_add_u32 s38, s36, s37
s_lshl_b32 s38, s38, 10
s_lshr_b32 s37, s53, 1
s_add_u32 s39, s36, s37
s_add_u32 s39, s39, 16
s_lshl_b32 s39, s39, 10
s_mul_i32 s36, s23, 147456
s_add_u32 s38, s38, s36
s_add_u32 s39, s39, s36
v_and_b32 v32, 15, v1
v_lshl_add_u32 v22, v32, 7, s38
v_add_u32 v23, 2048, v22
v_and_b32 v32, 3, v1
v_lshl_add_u32 v32, v32, 7, s39
v_add_u32 v33, 512, v32
v_lshrrev_b32 v24, 2, v1
v_cmp_eq_u32 vcc, 4, v24
s_mov_b32 s47, 0
s_nop 0
v_cndmask_b32 v22, v22, v32, vcc
v_cndmask_b32 v23, v23, v33, vcc
s_lshl_b32 s36, s17, 2
s_add_u32 s36, s36, s18
s_mul_i32 s36, s36, {11*128}
v_min_u32 v24, 10, v1
v_lshl_add_u32 v24, v24, 7, s36
s_mov_b32 s67, 0
s_mul_i32 s36, s62, {1152*P2}""")
    k.srd_off(56, 8, 9, "s36", 1152 * P2)
    k.srd_off(28, 10, 11, WS_H2, SD2)
    k.srd_off(32, 10, 11, WS_HM, HM_BYTES)

    def wfrag(slot, half=None):
        if half is None:
            return ar(WRG + 4 * slot, 4)
        return ar(WRG + 4 * slot + 2 * half, 2)

    class Ph:
        pass

    def make_phase(g1):
        p = Ph()
        p.g1 = g1
        p.NT = 18 if g1 else 9
        p.NACC = p.NT * 4
        p.NXS = 4
        p.XR = 64 if g1 else 0
        p.NF = 2 * p.NT
        p.acc = lambda ti: vr(32 + 4 * ti, 4) if ti < NV else ar(4 * (ti - NV), 4)
        p.xfrag = lambda xs, kk, st: ar(p.XR + 32 * xs + 16 * kk + 4 * st, 4)
        return p

    def xload_list(p, xs):
        out = []
        for kk in range(2):
            for st in range(4):
                out.append(f"buffer_load_dwordx4 {p.xfrag(xs, kk, st)}, v{VX+st}, s[28:31], s46 offen offset:{1024*kk} sc1")
        out[-1] += "\ns_add_u32 s46, s46, 2048"
        return out

    def zero_list(p):
        zl = []
        for ti in range(p.NACC):
            for r in range(4):
                if ti < NV:
                    zl.append(f"v_mov_b32 v{32+4*ti+r}, 0")
                else:
                    zl.append(f"v_accvgpr_write_b32 a{4*(ti-NV)+r}, 0")
        return zl

    def frag_info(p, f):
        kk = f // p.NT
        r = f % p.NT
        return kk, r % 9, r // 9

    def tr_reads(p, f, slot):
        kk, t, m = frag_info(p, f)
        if t < 8:
            off, hs = m * 18432 + kk * 8192, 4096
        else:
            off, hs = m * 18432 + kk * 1024, 512
        return [f"ds_read_b64_tr_b16 {wfrag(slot, 0)}, v{VB+t} offset:{off}",
                f"ds_read_b64_tr_b16 {wfrag(slot, 1)}, v{VB+t} offset:{off + hs}"]

    def pf_list(xs):
        out = []
        if G1_HM:
            out.append(f"buffer_load_dword a{DUM}, v{22+(xs&1)}, s[32:35], s47 offen sc1" + ("\ns_add_u32 s47, s47, 147456" if xs & 1 else ""))
        if G1_WD:
            out.append(f"buffer_load_dword a{DUM+1}, v24, s[56:59], s67 offen\ns_add_u32 s67, s67, {128*11*128}")
        return out

    def stage(p, xs, last, pre=None):
        NF = p.NF
        if last:
            vm = dma_list() if p.g1 else []
        else:
            vm = dma_list() + xload_list(p, (xs + p.NXS - 1) % p.NXS)
            if p.g1:
                vm += pf_list(xs)
        nvm = len(vm)
        WB = nvm + 8
        PB = NF - DAH
        slots = {}
        for i in range(nvm):
            slots.setdefault(i * PB // nvm, []).append(vm[i])
        if pre:
            k(pre)
        if not last:
            k(f"""s_add_u32 s48, s48, {STG}
s_cmp_ge_u32 s48, {STG*NBUF}
s_cselect_b32 s49, {(-STG*(NBUF-1)) & 0xffffffff:#x}, s50
s_cselect_b32 s48, 0, s48""")
        for f in range(NF):
            kk, t, m = frag_info(p, f)
            fa = f + DAH
            if f == PB and not last:
                k(f"s_waitcnt vmcnt({WB})")
                k("s_barrier")
            rd = []
            upd = None
            if fa < NF:
                rd = tr_reads(p, fa, fa % RING)
                if fa >= NF - 9 and not last:
                    tt = frag_info(p, fa)[1]
                    upd = f"v_add_u32 v{VB+tt}, s49, v{VB+tt}"
            elif not last:
                rd = tr_reads(p, fa - NF, fa % RING)
            rem = min(DAH - 1, (NF - 1 - f) if last else DAH - 1)
            k(f"s_waitcnt lgkmcnt({2*rem})")
            tb = (m * 9 + t) * 4
            extra = list(slots.get(f, []))
            for st in range(4):
                k(f"v_mfma_f32_16x16x32_bf16 {p.acc(tb+st)}, {wfrag(f % RING)}, {p.xfrag(xs, kk, st)}, {p.acc(tb+st)}")
                if st == 0 and rd:
                    k(rd[0])
                if st == 1 and rd:
                    k(rd[1])
                    if upd:
                        k(upd)
                if st >= 2 and extra:
                    k(extra.pop(0))
            while extra:
                k(extra.pop(0))

    def start_phase(p):
        pl = xload_list(p, 0) + xload_list(p, 1) + xload_list(p, 2)
        for ln in pl:
            k(ln)
        if k.stamps:
            k("s_waitcnt lgkmcnt(0)")
        for f in range(DAH):
            for ln in tr_reads(p, f, f % RING):
                k(ln)
        k("s_waitcnt vmcnt(16)")

    p1 = make_phase(True)
    for z in zero_list(p1):
        k(z)
    k(f"""s_mov_b32 s48, 0
s_mov_b32 s50, {STG}
s_mov_b32 s51, 0
s_lshl_b32 s37, s22, 7
s_add_u32 s37, s37, {F2}""")
    wait_flags("s37", 8, sleep=2)
    if not (os.environ.get('ST0') or os.environ.get('ST1') or os.environ.get('ST2')):
        k.stamp(13)
    start_phase(p1)
    Lloop = k.label("loop")
    Lsk = k.label("noswitch")
    k.put(Lloop)
    for xs in range(4):
        pre = None
        if xs == 2:
            pre = "s_cmp_eq_u32 s51, 1\ns_cselect_b32 s30, 0, s30"
        if xs == 3:
            k(f"""s_cmp_lg_u32 s51, 1
s_cbranch_scc1 {Lsk}
s_mov_b32 s24, s8
s_mov_b32 s25, s9
s_mov_b32 s54, 0
s_mov_b32 s65, {8*P2}
s_mov_b32 s66, {64*P2}
v_mov_b32 v{VD}, v{VD2}
v_mov_b32 v{VD+1}, v{VD2+1}
v_mov_b32 v{VD+2}, v{VD2+2}""")
            k.put(Lsk)
        stage(p1, xs, False, pre)
    k(f"""s_add_u32 s51, s51, 1
s_cmp_lt_u32 s51, 2
s_cbranch_scc1 {Lloop}""")
    stage(p1, 0, True)
    if not (os.environ.get('ST0') or os.environ.get('ST1') or os.environ.get('ST2')):
        k.stamp(14)
    k("s_nop 7")

    def accreg(ti, r, tmp):
        if ti < NV:
            return f"v{32+4*ti+r}"
        k(f"v_accvgpr_read_b32 v{tmp}, a{4*(ti-NV)+r}")
        return f"v{tmp}"

    k(f"""v_and_b32 v2, 31, v1
v_lshlrev_b32 v2, 5, v2
s_lshl_b32 s36, s16, 2
s_add_u32 s36, s36, {FREG}
v_add_u32 v2, s36, v2
global_load_dword v21, v2, s[12:13] sc1
s_mul_i32 s36, s52, 18
s_lshl_b32 s37, s53, 2
s_add_u32 s38, s36, s37
s_lshl_b32 s38, s38, 10
s_lshr_b32 s37, s53, 1
s_add_u32 s39, s36, s37
s_add_u32 s39, s39, 16
s_lshl_b32 s39, s39, 10
s_and_b32 s37, s53, 1
s_lshl_b32 s37, s37, 3
s_add_u32 s39, s39, s37
s_mul_i32 s36, s23, 147456
v_lshl_add_u32 v{VX}, v1, 4, s36""")
    for st in range(1, 4):
        k(f"v_add_u32 v{VX+st}, 147456, v{VX+st-1}")
    for st in range(4):
        for pr in range(5):
            tiles = [2 * pr, 2 * pr + 1] if pr < 4 else [8]
            ob = 32 + 4 * (tiles[0] * 4 + st)
            for hi, t in enumerate(tiles):
                tg = t * 4 + st
                tu = (9 + t) * 4 + st
                gn = [f"v{32+4*tg+r}" for r in range(4)]
                un = [accreg(tu, r, 22 + r) for r in range(4)]
                if exact:
                    for h2 in range(2):
                        k(f"""v_cvt_pk_bf16_f32 v30, {gn[2*h2]}, {gn[2*h2+1]}
v_cvt_pk_bf16_f32 v31, {un[2*h2]}, {un[2*h2+1]}
v_pk_max_i16 v30, v30, 0
v_lshlrev_b32 v2, 16, v31
v_and_b32 v3, s40, v31
v_lshlrev_b32 v{26+2*h2}, 16, v30
v_and_b32 v{27+2*h2}, s40, v30
v_pk_mul_f32 v[{26+2*h2}:{27+2*h2}], v[{26+2*h2}:{27+2*h2}], v[2:3]""")
                else:
                    for r in range(4):
                        k(f"v_max_f32 v{26+r}, 0, {gn[r]}")
                        k(f"v_mul_f32 v{26+r}, v{26+r}, {un[r]}")
                k(f"""v_cvt_pk_bf16_f32 v{ob+2*hi}, v26, v27
v_cvt_pk_bf16_f32 v{ob+2*hi+1}, v28, v29""")
            if os.environ.get("XNOST"):
                pass
            elif pr < 4:
                k(f"buffer_store_dwordx4 v[{ob}:{ob+3}], v{VX+st}, s[32:35], s38 offen offset:{1024*pr}{HMPOL}")
            else:
                k(f"buffer_store_dwordx2 v[{ob}:{ob+1}], v{VX+st}, s[32:35], s39 offen{HMPOL}")
    p2 = make_phase(False)
    Lw = k.label("h_notw0")
    Lf1 = k.label("fast1")
    Lf2 = k.label("fast2")
    k(f"""s_waitcnt vmcnt(0) lgkmcnt(0)
s_barrier
s_add_u32 s36, s69, 1
s_or_b32 s36, s36, s3
v_cmp_ne_u32 vcc, s36, v21
s_cmp_ge_u32 s69, 8
s_cselect_b64 s[38:39], -1, vcc
s_cmp_lg_u32 s18, 0
s_cbranch_scc1 {Lw}
s_cmp_eq_u64 s[38:39], 0
s_cbranch_scc1 {Lf1}
buffer_wbl2 sc1
s_waitcnt vmcnt(0)""")
    k.put(Lf1)
    k(f"""s_lshl_b32 s36, s22, 5
s_lshl_b32 s37, s52, 2
s_add_u32 s36, s36, s37
s_add_u32 s36, s36, s53
s_lshl_b32 s36, s36, 2
s_add_u32 s36, s36, {F3}
s_mov_b64 exec, 1
v_mov_b32 v2, s36
v_mov_b32 v3, s3
global_store_dword v2, v3, s[12:13] sc1
s_lshl_b32 s36, s2, 2
s_add_u32 s36, s36, {F5}
v_mov_b32 v2, s36
global_store_dword v2, v3, s[12:13] sc1
s_mov_b64 exec, -1""")
    k.put(Lw)
    k.srd_off(28, 10, 11, WS_HM, HM_BYTES)
    k(f"""s_mul_i32 s36, s64, 147456
s_lshl_b32 s37, s62, 1
s_add_u32 s37, s37, s19
s_mul_i32 s37, s37, {18*1024}
s_add_u32 s36, s36, s37
v_lshl_add_u32 v{VX}, v1, 4, s36
s_mul_i32 s36, s19, 18432
s_add_u32 s36, s36, {STG}
s_mov_b32 s46, 0
s_mov_b32 s48, {STG}
s_mov_b32 s51, 0""")
    for st in range(1, 4):
        k(f"v_add_u32 v{VX+st}, 147456, v{VX+st-1}")
    for t in range(9):
        k(f"v_add_u32 v{VB+t}, s36, v{VB+t}")
    for z in zero_list(p2):
        k(z)
    k(f"""s_lshr_b32 s37, s63, 1
s_lshl_b32 s37, s37, 7
s_lshl_b32 s36, s62, 5
s_add_u32 s37, s37, s36
s_add_u32 s37, s37, {F3}""")
    wait_flags("s37", 2, barrier=False, rep=False)
    k(f"""s_cmp_lg_u32 s18, 0
s_cbranch_scc1 {Lf2}
s_cmp_eq_u64 s[38:39], 0
s_cbranch_scc1 {Lf2}
buffer_inv sc1
s_waitcnt vmcnt(0)""")
    k.put(Lf2)
    k("s_barrier")
    if not (os.environ.get('ST0') or os.environ.get('ST1') or os.environ.get('ST2')):
        k.stamp(15)
    start_phase(p2)
    Lloop2 = k.label("loop2")
    k.put(Lloop2)
    for xs in range(4):
        pre = None
        if xs == 2:
            pre = "s_cmp_eq_u32 s51, 1\ns_cselect_b32 s30, 0, s30"
        if xs == 3:
            pre = "s_cmp_eq_u32 s51, 1\ns_cselect_b32 s26, 0, s26"
        if xs == WBL:
            Lnw = k.label("nowbl")
            k(f"""s_cmp_lg_u32 s51, 1
s_cbranch_scc1 {Lnw}
s_cmp_lg_u32 s17, 0
s_cbranch_scc1 {Lnw}
s_cmp_lg_u32 s18, 3
s_cbranch_scc1 {Lnw}
buffer_wbl2 sc1""")
            k.put(Lnw)
        stage(p2, xs, False, pre)
    k(f"""s_add_u32 s51, s51, 1
s_cmp_lt_u32 s51, 2
s_cbranch_scc1 {Lloop2}""")
    stage(p2, 0, True)
    if INK:
        return epilogue_inkernel(k, p2, publish, wait_flags, Lexit)
    acc = p2.acc
    Lk1 = k.label("kh1")
    k.srd_off(32, 10, 11, WS_PART, P16_BYTES + SC_BYTES)
    k(f"""s_waitcnt vmcnt(0)
s_barrier
s_mul_i32 s36, s18, 18432
v_lshl_add_u32 v22, v1, 4, s36
s_xor_b32 s37, s18, 2
s_mul_i32 s37, s37, 18432
v_lshl_add_u32 v23, v1, 4, s37
s_lshl_b32 s36, s19, 1
s_add_u32 s36, s36, s64
s_lshl_b32 s37, s62, 7
s_add_u32 s36, s36, s37
s_lshl_b32 s37, s36, 2
s_add_u32 s37, s37, s53
s_mul_i32 s37, s37, 5120
v_lshl_add_u32 v24, v1, 4, s37
v_add_u32 v25, {4*5120}, v24
s_lshr_b32 s36, s36, 1
s_lshl_b32 s36, s36, 2
s_add_u32 s36, s36, s53
s_lshl_b32 s36, s36, 8
s_add_u32 s36, s36, {P16_BYTES}
v_lshl_add_u32 v26, v1, 2, s36
s_movk_i32 s38, 4096
s_cmp_eq_u32 s19, 1
s_cbranch_scc1 {Lk1}""")
    for kh in range(2):
        if kh == 1:
            k.put(Lk1)
        keep = [2 * kh, 2 * kh + 1]
        send = [2 - 2 * kh, 3 - 2 * kh]
        for i, st in enumerate(send):
            for t in range(9):
                k(f"ds_write_b128 v22, {acc(t*4+st)} offset:{(i*9+t)*1024}")
        k("""s_waitcnt lgkmcnt(0)
s_barrier""")
        for i, st in enumerate(send):
            for t in range(9):
                k(f"ds_read_b128 {acc(t*4+st)}, v23 offset:{(i*9+t)*1024}")
        k("v_mov_b32 v27, 0")
        n = 18
        for i in range(2):
            for t in range(9):
                n -= 1
                k(f"s_waitcnt lgkmcnt({min(n,15)})")
                a = 32 + 4 * (t * 4 + keep[i])
                b = 32 + 4 * (t * 4 + send[i])
                k(f"""v_pk_add_f32 v[{a}:{a+1}], v[{a}:{a+1}], v[{b}:{b+1}]
v_pk_add_f32 v[{a+2}:{a+3}], v[{a+2}:{a+3}], v[{b+2}:{b+3}]
v_max3_f32 v27, |v{a}|, |v{a+1}|, v27
v_max3_f32 v27, |v{a+2}|, |v{a+3}|, v27""")
        k(f"""v_frexp_exp_i32_f32 v27, v27
v_max_i32 v27, {(-100) & 0xffffffff:#x}, v27
v_sub_u32 v28, 15, v27
v_add_u32 v29, -15, v27
v_ldexp_f32 v28, 1.0, v28
v_ldexp_f32 v29, 1.0, v29
buffer_store_dword v29, v26, s[32:35], 0 offen""")
        for i in range(2):
            for pr in range(5):
                tiles = [2 * pr, 2 * pr + 1] if pr < 4 else [8]
                ob = 32 + 4 * (tiles[0] * 4 + send[i])
                for hi, t in enumerate(tiles):
                    a = 32 + 4 * (t * 4 + keep[i])
                    k(f"""v_pk_mul_f32 v[{a}:{a+1}], v[{a}:{a+1}], v[28:29] op_sel_hi:[1,0]
v_pk_mul_f32 v[{a+2}:{a+3}], v[{a+2}:{a+3}], v[28:29] op_sel_hi:[1,0]
v_cvt_pk_f16_f32 v{ob+2*hi}, v{a}, v{a+1}
v_cvt_pk_f16_f32 v{ob+2*hi+1}, v{a+2}, v{a+3}""")
                if pr < 4:
                    k(f"buffer_store_dwordx4 v[{ob}:{ob+3}], v{24+i}, s[32:35], 0 offen offset:{1024*pr}")
                else:
                    k(f"buffer_store_dwordx2 v[{ob}:{ob+1}], v{24+i}, s[32:35], s38 offen")
        if k.stamps:
            k("s_waitcnt vmcnt(0)")
        k.stamp(4)
        k.stamp(5, real=True)
        k.stamp_flush()
        if kh == 0:
            k("s_endpgm")
    k.put(Lexit)
    k("s_endpgm")
    return k


def epilogue_inkernel(k, p2, publish, wait_flags, Lexit):
    acc = p2.acc
    Lk1 = k.label("kh1")
    Lj = k.label("join")
    OWN = 73728
    SLOT = 10240 + 256
    k.srd_off(32, 10, 11, WS_PART, 64 * 16 * SLOT)
    k(f"""s_waitcnt vmcnt(0)
s_barrier
s_mul_i32 s36, s18, 18432
v_lshl_add_u32 v22, v1, 4, s36
s_xor_b32 s37, s18, 2
s_mul_i32 s37, s37, 18432
v_lshl_add_u32 v23, v1, 4, s37
s_lshl_b32 s67, s63, 2
s_add_u32 s67, s67, s53
s_lshl_b32 s61, s20, 1
s_add_u32 s61, s61, s19
s_lshl_b32 s36, s67, 2
s_add_u32 s36, s36, s61
s_lshl_b32 s36, s36, 2
s_add_u32 s36, s36, s62
s_mul_i32 s36, s36, {SLOT}
v_lshl_add_u32 v24, v1, 4, s36
v_add_u32 v25, 5120, v24
s_add_u32 s36, s36, 10240
v_lshl_add_u32 v26, v1, 2, s36
v_lshlrev_b32 v21, 4, v1
v_add_u32 v21, {OWN}, v21
s_movk_i32 s38, 4096
s_cmp_eq_u32 s19, 1
s_cbranch_scc1 {Lk1}""")
    for kh in range(2):
        if kh == 1:
            k.put(Lk1)
        keep = [2 * kh, 2 * kh + 1]
        send = [2 - 2 * kh, 3 - 2 * kh]
        Lown = k.label("own")
        for i, st in enumerate(send):
            for t in range(9):
                k(f"ds_write_b128 v22, {acc(t*4+st)} offset:{(i*9+t)*1024}")
        k("""s_waitcnt lgkmcnt(0)
s_barrier""")
        for i, st in enumerate(send):
            for t in range(9):
                k(f"ds_read_b128 {acc(t*4+st)}, v23 offset:{(i*9+t)*1024}")
        k("v_mov_b32 v27, 0")
        n = 18
        for i in range(2):
            for t in range(9):
                n -= 1
                k(f"s_waitcnt lgkmcnt({min(n,15)})")
                a = 32 + 4 * (t * 4 + keep[i])
                b = 32 + 4 * (t * 4 + send[i])
                k(f"""v_pk_add_f32 v[{a}:{a+1}], v[{a}:{a+1}], v[{b}:{b+1}]
v_pk_add_f32 v[{a+2}:{a+3}], v[{a+2}:{a+3}], v[{b+2}:{b+3}]
v_max3_f32 v27, |v{a}|, |v{a+1}|, v27
v_max3_f32 v27, |v{a+2}|, |v{a+3}|, v27""")
        k(f"""s_cmp_eq_u32 s61, s62
s_cbranch_scc1 {Lown}
v_frexp_exp_i32_f32 v27, v27
v_max_i32 v27, {(-100) & 0xffffffff:#x}, v27
v_sub_u32 v28, 15, v27
v_add_u32 v29, -15, v27
v_ldexp_f32 v28, 1.0, v28
v_ldexp_f32 v29, 1.0, v29
buffer_store_dword v29, v26, s[32:35], 0 offen sc1""")
        for i in range(2):
            for pr in range(5):
                tiles = [2 * pr, 2 * pr + 1] if pr < 4 else [8]
                ob = 32 + 4 * (tiles[0] * 4 + send[i])
                for hi, t in enumerate(tiles):
                    a = 32 + 4 * (t * 4 + keep[i])
                    k(f"""v_pk_mul_f32 v[{a}:{a+1}], v[{a}:{a+1}], v[28:29] op_sel_hi:[1,0]
v_pk_mul_f32 v[{a+2}:{a+3}], v[{a+2}:{a+3}], v[28:29] op_sel_hi:[1,0]
v_cvt_pk_f16_f32 v{ob+2*hi}, v{a}, v{a+1}
v_cvt_pk_f16_f32 v{ob+2*hi+1}, v{a+2}, v{a+3}""")
                so = "0" if pr < 4 else "s38"
                k(f"buffer_store_dwordx4 v[{ob}:{ob+3}], v{24+i}, s[32:35], {so} offen offset:{1024*(pr%4)} sc1")
        k(f"s_branch {Lj}")
        k.put(Lown)
        for i in range(2):
            for t in range(9):
                a = 32 + 4 * (t * 4 + keep[i])
                k(f"ds_write_b128 v21, v[{a}:{a+3}] offset:{(i*10+t)*1024}")
        if kh == 0:
            k(f"s_branch {Lj}")
    k.put(Lj)
    k(f"""s_lshl_b32 s37, s67, 2
s_add_u32 s37, s37, s62
s_lshl_b32 s37, s37, 2
s_add_u32 s37, s37, {F4}""")
    publish("s37", rep=False)
    k.stamp(2)
    NI = 3
    ISG = [(48, 49, 50), (51, 52, 54), (14, 15, 47)]
    k(f"s_load_dwordx2 s[4:5], s[0:1], {ARG['out']}")
    k.srd_off(56, 10, 11, WS_X1, SD2)
    k.srd_off(24, 10, 11, WS_GBV, D * 4)
    k(f"""v_and_b32 v4, 15, v1
v_lshrrev_b32 v5, 4, v1
v_mul_u32_u24 v4, 1152, v4
v_lshl_add_u32 v4, v5, 3, v4
v_lshlrev_b32 v5, 4, v5
s_lshl_b32 s36, s67, 2
s_add_u32 s36, s36, s62
s_mul_i32 s36, s36, {4*SLOT}
v_lshl_add_u32 v6, v1, 4, s36
s_add_u32 s36, s36, 10240
v_lshl_add_u32 v7, v1, 2, s36""")
    for j in range(1, 4):
        k(f"""s_add_u32 s{43+j}, s62, {j}
s_and_b32 s{43+j}, s{43+j}, 3
s_mul_i32 s{43+j}, s{43+j}, {SLOT}""")
    for n in range(NI):
        o0, o1, og = ISG[n]
        k(f"""s_add_u32 s36, s18, {4*n}
s_cmp_ge_u32 s36, 5
s_cselect_b32 s37, 1, 0
s_cselect_b32 s38, 5, 0
s_sub_u32 s38, s36, s38
s_lshl_b32 s39, s53, 3
s_lshl_b32 s41, s38, 1
s_add_u32 s39, s39, s41
s_add_u32 s41, s53, 32
s_cmp_eq_u32 s38, 4
s_cselect_b32 s39, s41, s39
s_cselect_b32 s41, 0x7fffff00, 32
s_lshl_b32 s42, s63, 3
s_add_u32 s37, s37, s42
s_lshl_b32 s42, s62, 1
s_add_u32 s37, s37, s42
s_mul_i32 s37, s37, {16*1152}
s_lshl_b32 s42, s39, 5
s_add_u32 s{o0}, s37, s42
s_add_u32 s{o1}, s{o0}, s41
s_lshl_b32 s{og}, s39, 6
s_cmp_ge_u32 s36, 10
s_cselect_b32 s{o0}, 0x7fffff00, s{o0}
s_cselect_b32 s{o1}, 0x7fffff00, s{o1}""")
    Lw = k.label("wskip")
    Lp = k.label("poll")
    Lq = k.label("pdone")
    k(f"""s_cmp_lg_u32 s18, 0
s_cbranch_scc1 {Lw}
s_lshl_b32 s36, s67, 4
s_add_u32 s36, s36, {F4}
s_lshl_b32 s37, s63, 2
s_add_u32 s37, s37, s62
s_lshl_b32 s37, s37, 4
s_add_u32 s37, s37, {F5}
v_mov_b32 v2, s36
v_mov_b32 v3, s37
v_cmp_eq_u32 vcc, 0, v1
s_mov_b32 s36, 0
s_nop 0
v_cndmask_b32 v2, v3, v2, vcc""")
    k.put(Lp)
    k(f"""global_load_dwordx4 v[28:31], v2, s[12:13] sc1
s_add_u32 s36, s36, 1
s_waitcnt vmcnt(0)
v_xor_b32 v28, s3, v28
v_xor_b32 v29, s3, v29
v_xor_b32 v30, s3, v30
v_xor_b32 v31, s3, v31
v_or3_b32 v28, v28, v29, v30
v_or_b32 v28, v28, v31
v_cmp_ne_u32 vcc, 0, v28
s_cmp_ge_u32 s36, {SPIN_MAX}
s_cbranch_scc1 {Lq}
s_cbranch_vccz {Lq}
s_sleep 1
s_branch {Lp}""")
    k.put(Lq)
    k.put(Lw)
    k("""s_waitcnt lgkmcnt(0)
s_barrier""")
    k.stamp(3)
    k.srd(28, 4, 5, SD2)
    for j in range(1, 4):
        k(f"buffer_load_dword v{8+j}, v7, s[32:35], s{43+j} offen sc1")
    IT = 32
    for n in range(NI):
        o0, o1, og = ISG[n]
        b = IT + 40 * n
        k(f"""s_add_u32 s36, s18, {4*n}
s_min_u32 s36, s36, 9
s_lshl_b32 s39, s36, 10
s_lshl_b32 s36, s36, 11
v_add_u32 v8, s36, v21
ds_read_b128 v[{b+12}:{b+15}], v8
ds_read_b128 v[{b+16}:{b+19}], v8 offset:1024""")
        for j in range(1, 4):
            k(f"""s_add_u32 s41, s39, s{43+j}
buffer_load_dwordx4 v[{b+4*(j-1)}:{b+4*(j-1)+3}], v6, s[32:35], s41 offen sc1""")
        k(f"""buffer_load_dwordx2 v[{b+20}:{b+21}], v4, s[56:59], s{o0} offen sc1
buffer_load_dwordx2 v[{b+22}:{b+23}], v4, s[56:59], s{o1} offen sc1
buffer_load_dwordx4 v[{b+24}:{b+27}], v5, s[24:27], s{og} offen sc1
buffer_load_dwordx4 v[{b+28}:{b+31}], v5, s[24:27], s{og} offen offset:64 sc1""")
    for n in range(NI):
        o0, o1, og = ISG[n]
        b = IT + 40 * n
        A = b + 12
        k(f"s_waitcnt vmcnt({7*(NI-1-n) + 2*n}) lgkmcnt(0)")
        for j in range(1, 4):
            for e in range(8):
                src = b + 4 * (j - 1) + e // 2
                k(f"v_fma_mix_f32 v{A+e}, v{src}, v{8+j}, v{A+e} op_sel:[{e&1},0,0] op_sel_hi:[1,0,0]")
        for h in range(4):
            rnd_pair(k, A + 2 * h, A + 2 * h + 1, b + 32 + h, 40)
        for h in range(4):
            k(f"v_pk_mul_f32 v[{A+2*h}:{A+2*h+1}], v[{A+2*h}:{A+2*h+1}], v[{b+24+2*h}:{b+25+2*h}]")
        for h in range(4):
            rnd_pair(k, A + 2 * h, A + 2 * h + 1, b + 32 + h, 40)
        for h in range(4):
            k(f"""v_lshlrev_b32 v{b+2*h}, 16, v{b+20+h}
v_and_b32 v{b+2*h+1}, s40, v{b+20+h}
v_pk_add_f32 v[{A+2*h}:{A+2*h+1}], v[{A+2*h}:{A+2*h+1}], v[{b+2*h}:{b+2*h+1}]
v_cvt_pk_bf16_f32 v{b+32+h}, v{A+2*h}, v{A+2*h+1}""")
        k(f"""buffer_store_dwordx2 v[{b+32}:{b+33}], v4, s[28:31], s{o0} offen
buffer_store_dwordx2 v[{b+34}:{b+35}], v4, s[28:31], s{o1} offen""")
    if k.stamps:
        k("s_waitcnt vmcnt(0)")
    k.stamp(4)
    k.stamp(5, real=True)
    k("s_waitcnt lgkmcnt(0)" if k.stamps else "")
    k.stamp_debug((6, 7, 8, 9, 10, 11, 12, 13, 14, 15, 2, 3, 4, 5))
    k.stamp_flush()
    k.put(Lexit)
    k("s_endpgm")
    return k


def gen_final16():
    k = K("final_kernel")
    k.kid = 1
    Lexit = k.label("exit")
    k(f"""s_cmp_ge_u32 s2, 640
s_cbranch_scc1 {Lexit}""")
    k.stamp_init()
    k(f"""s_load_dwordx2 s[4:5], s[0:1], {ARG['out']}
s_load_dwordx2 s[10:11], s[0:1], {ARG['ws']}
s_mov_b32 s40, 0xffff0000
v_and_b32 v1, 63, v0
v_lshrrev_b32 v2, 6, v0
s_lshl_b32 s16, s2, 2
v_readfirstlane_b32 s17, v2
s_nop 3
s_add_u32 s16, s16, s17
s_mul_i32 s17, s16, 52429
s_lshr_b32 s17, s17, 18
s_mul_i32 s18, s17, 5
s_sub_u32 s18, s16, s18
s_lshl_b32 s19, s16, 10
v_lshl_add_u32 v3, v1, 4, s19
s_lshr_b32 s20, s17, 2
s_and_b32 s21, s17, 3
s_lshr_b32 s19, s20, 1
s_lshl_b32 s19, s19, 2
s_add_u32 s19, s19, s21
s_lshl_b32 s19, s19, 8
s_add_u32 s19, s19, {P16_BYTES}
v_lshl_add_u32 v7, v1, 2, s19
s_lshl_b32 s22, s21, 3
s_lshl_b32 s23, s18, 1
s_add_u32 s22, s22, s23
s_add_u32 s23, s21, 32
s_cmp_eq_u32 s18, 4
s_cselect_b32 s22, s23, s22
s_cselect_b32 s41, 0x7fffff00, 0
v_and_b32 v4, 15, v1
v_lshrrev_b32 v5, 4, v1
s_lshl_b32 s19, s20, 4
v_add_u32 v4, s19, v4
s_movk_i32 s19, 1152
v_mul_lo_u32 v4, v4, s19
s_lshl_b32 s19, s22, 5
v_lshl_add_u32 v6, v5, 3, s19
v_add_u32 v4, v4, v6
v_lshlrev_b32 v6, 1, v6
s_mov_b32 s36, {P16_BYTES // 4}
s_mov_b32 s37, {2 * P16_BYTES // 4}
s_mov_b32 s38, {3 * P16_BYTES // 4}
s_mov_b32 s42, {SC_BYTES // 4}
s_mov_b32 s43, {2 * SC_BYTES // 4}
s_mov_b32 s44, {3 * SC_BYTES // 4}
s_waitcnt lgkmcnt(0)""")
    k.srd(20, 4, 5, SD2)
    k.srd_off(24, 10, 11, WS_PART, P16_BYTES + SC_BYTES)
    k.srd_off(28, 10, 11, WS_X1, SD2)
    k.srd_off(32, 10, 11, WS_GBV, D * 4)
    for j, (so, ss) in enumerate((("0", "0"), ("s36", "s42"), ("s37", "s43"), ("s38", "s44"))):
        k(f"""buffer_load_dwordx4 v[{8+4*j}:{11+4*j}], v3, s[24:27], {so} offen
buffer_load_dword v{24+j}, v7, s[24:27], {ss} offen""")
    k("""buffer_load_dwordx2 v[28:29], v4, s[28:31], 0 offen
buffer_load_dwordx2 v[30:31], v4, s[28:31], s41 offen offset:32
buffer_load_dwordx4 v[32:35], v6, s[32:35], 0 offen
buffer_load_dwordx4 v[36:39], v6, s[32:35], 0 offen offset:64""")
    A = 40
    for j in range(4):
        k(f"s_waitcnt vmcnt({4 + 2*(3-j)})")
        for e in range(8):
            src = 8 + 4 * j + e // 2
            sel = e & 1
            c = "0" if j == 0 else f"v{A+e}"
            k(f"v_fma_mix_f32 v{A+e}, v{src}, v{24+j}, {c} op_sel:[{sel},0,0] op_sel_hi:[1,0,0]")
    for h in range(4):
        rnd_pair(k, A + 2 * h, A + 2 * h + 1, 8 + h, 40)
    k("s_waitcnt vmcnt(0)")
    for h in range(4):
        k(f"v_pk_mul_f32 v[{A+2*h}:{A+2*h+1}], v[{A+2*h}:{A+2*h+1}], v[{32+2*h}:{33+2*h}]")
    for h in range(4):
        rnd_pair(k, A + 2 * h, A + 2 * h + 1, 8 + h, 40)
    for h in range(4):
        k(f"""v_lshlrev_b32 v{12+2*h}, 16, v{28+h}
v_and_b32 v{13+2*h}, s40, v{28+h}
v_pk_add_f32 v[{A+2*h}:{A+2*h+1}], v[{A+2*h}:{A+2*h+1}], v[{12+2*h}:{13+2*h}]
v_cvt_pk_bf16_f32 v{20+h}, v{A+2*h}, v{A+2*h+1}""")
    k("""buffer_store_dwordx2 v[20:21], v4, s[20:23], 0 offen
buffer_store_dwordx2 v[22:23], v4, s[20:23], s41 offen offset:32""")
    k.stamp(3)
    if k.stamps:
        k("s_waitcnt vmcnt(0)")
    k.stamp(4)
    k.stamp(5, real=True)
    k.stamp_flush()
    k.put(Lexit)
    k("s_endpgm")
    k.vgpr = 48
    k.sgpr = 48
    return k
```

```python
import sys
from asmlib import *

import os
K.stamps = os.environ.get("STAMP", "0") == "1"
S, D, F = 2048, 576, 4608
RS = 4352
WS_UR0 = 0x0
WS_UR1 = 0x280000
WS_Y2T = 0x500000
WS_X1 = 0x780000
WS_H2 = 0xA00000
WS_MODP = 0xC80000
WS_GBV = 0xC84000
WS_CNT = 0xC88000
WS_HM = 0xD00000
WS_PART = 0x2000000
SD2 = S * D * 2
HM_BYTES = S * F * 2
PART1 = S * D * 4

ARG = dict(q=0, k=8, v=16, shift=24, ssmk=32, ssmD=40, bx=48, wg=56, wu=64, wd=72, c=80, wmod=88, out=96, dbg=104, ws=112)


def rnd_pair(k, lo, hi, tmp, smask):
    k(f"""v_cvt_pk_bf16_f32 v{tmp}, v{lo}, v{hi}
v_lshlrev_b32 v{lo}, 16, v{tmp}
v_and_b32 v{hi}, s{smask}, v{tmp}""")


NWARM = int(os.environ.get('NWARM', '8'))


def gen_k1():
    k = K("prep_kernel")
    k.kid = 0
    Lexit = k.label("exit")
    Lmod = k.label("mod")
    Lwarm = k.label("warm")
    k(f"""s_cmp_ge_u32 s2, {342 + NWARM}
s_cbranch_scc1 {Lexit}
s_cmp_lt_u32 s2, {NWARM}
s_cbranch_scc1 {Lwarm}
s_sub_u32 s2, s2, {NWARM}""")
    k.stamp_init()
    k(f"""
s_load_dwordx4 s[4:7], s[0:1], {ARG['k']}
s_load_dwordx2 s[8:9], s[0:1], {ARG['shift']}
s_load_dwordx4 s[12:15], s[0:1], {ARG['c']}
s_load_dwordx2 s[10:11], s[0:1], {ARG['ws']}
s_mov_b32 s40, 0xffff0000
v_and_b32 v1, 7, v0
v_lshrrev_b32 v2, 3, v0
s_cmp_ge_u32 s2, 288
s_cbranch_scc1 {Lmod}
s_lshr_b32 s16, s2, 5
s_and_b32 s17, s2, 31
s_waitcnt lgkmcnt(0)""")
    k.srd(20, 4, 5, SD2)
    k.srd(24, 6, 7, SD2)
    k.srd(28, 8, 9, D * 8)
    k.srd(32, 10, 11, WS_Y2T)
    k(f"""s_lshl_b32 s18, s17, 6
v_lshl_add_u32 v3, v2, 1, s18
s_movk_i32 s19, 1152
v_mul_lo_u32 v3, v3, s19
s_lshl_b32 s18, s16, 7
v_lshl_add_u32 v4, v1, 4, s18
v_add_u32 v3, v3, v4""")
    A0 = 4
    for r in range(6):
        off = (r - 4) * 1152
        k(f"v_add_u32 v{A0+r}, {off & 0xffffffff:#x}, v3")
    KR = 12
    VR = 36
    WR = 48
    for r in range(6):
        k(f"buffer_load_dwordx4 v[{KR+4*r}:{KR+4*r+3}], v{A0+r}, s[20:23], 0 offen")
    for r in range(3):
        k(f"buffer_load_dwordx4 v[{VR+4*r}:{VR+4*r+3}], v{A0+3+r}, s[24:27], 0 offen")
    k(f"""s_lshl_b32 s18, s16, 9
v_lshl_add_u32 v10, v1, 6, s18""")
    for i in range(4):
        k(f"buffer_load_dwordx4 v[{WR+4*i}:{WR+4*i+3}], v10, s[28:31], 0 offen offset:{16*i}")
    k(f"""v_sub_u32 v10, 31, v2
v_lshlrev_b32 v11, 2, v1
v_xor_b32 v10, v10, v11
v_lshlrev_b32 v10, 2, v10
v_lshl_add_u32 v10, v1, 10, v10""")
    WF = 64
    KF = 96
    VF = 144
    U = 168
    P = 192
    k("s_waitcnt vmcnt(0)")
    k.stamp(2)
    for j in range(8):
        k(f"""v_lshlrev_b32 v{WF+0*8+j}, 16, v{WR+2*j}
v_and_b32 v{WF+1*8+j}, s40, v{WR+2*j}
v_lshlrev_b32 v{WF+2*8+j}, 16, v{WR+2*j+1}
v_and_b32 v{WF+3*8+j}, s40, v{WR+2*j+1}""")
    for r in range(6):
        for q in range(4):
            k(f"""v_lshlrev_b32 v{KF+8*r+2*q}, 16, v{KR+4*r+q}
v_and_b32 v{KF+8*r+2*q+1}, s40, v{KR+4*r+q}""")
    for r in range(3):
        for q in range(4):
            k(f"""v_lshlrev_b32 v{VF+8*r+2*q}, 16, v{VR+4*r+q}
v_and_b32 v{VF+8*r+2*q+1}, s40, v{VR+4*r+q}""")
    for o in range(3):
        for q in range(4):
            for t in range(4):
                k(f"v_pk_mul_f32 v[{P+2*t}:{P+2*t+1}], v[{KF+8*(o+t)+2*q}:{KF+8*(o+t)+2*q+1}], v[{WF+8*(3-t)+2*q}:{WF+8*(3-t)+2*q+1}]")
            for t in range(4):
                rnd_pair(k, P + 2 * t, P + 2 * t + 1, 200 + t, 40)
            for t in range(1, 4):
                k(f"v_pk_add_f32 v[{P}:{P+1}], v[{P}:{P+1}], v[{P+2*t}:{P+2*t+1}]")
                rnd_pair(k, P, P + 1, 200, 40)
            k(f"v_pk_mul_f32 v[{U+8*o+2*q}:{U+8*o+2*q+1}], v[{P}:{P+1}], v[{VF+8*o+2*q}:{VF+8*o+2*q+1}]")
    for j in range(8):
        k(f"""v_cvt_pk_bf16_f32 v{P+(j&1)*2}, v{U+16+j}, v{U+8+j}
v_cvt_pk_bf16_f32 v{P+(j&1)*2+1}, v{U+8+j}, v{U+j}
ds_write_b32 v10, v{P+(j&1)*2} offset:{j*128}
ds_write_b32 v10, v{P+(j&1)*2+1} offset:{8192+j*128}""")
    k(f"""v_lshrrev_b32 v4, 3, v0
v_and_b32 v5, 7, v0
v_lshrrev_b32 v6, 3, v4
v_xor_b32 v7, v5, v6
v_lshlrev_b32 v7, 4, v7
v_lshl_add_u32 v7, v4, 7, v7
v_xor_b32 v8, 64, v7
v_add_u32 v8, 4096, v8
s_mul_i32 s18, s16, {64*RS}
s_lshl_b32 s19, s17, 7
s_sub_u32 s18, s18, s19
s_add_u32 s18, s18, 3968
v_mul_u32_u24 v9, {RS}, v4
v_lshl_add_u32 v9, v5, 4, v9
v_add_u32 v9, s18, v9
v_add_u32 v11, {32*RS}, v9
s_waitcnt lgkmcnt(0)
s_barrier
ds_read_b128 v[12:15], v7
ds_read_b128 v[16:19], v8
ds_read_b128 v[20:23], v7 offset:8192
ds_read_b128 v[24:27], v8 offset:8192
s_mov_b32 s18, {WS_UR1}
s_waitcnt lgkmcnt(3)
buffer_store_dwordx4 v[12:15], v9, s[32:35], 0 offen
s_waitcnt lgkmcnt(2)
buffer_store_dwordx4 v[16:19], v11, s[32:35], 0 offen
s_waitcnt lgkmcnt(1)
buffer_store_dwordx4 v[20:23], v9, s[32:35], s18 offen
s_waitcnt lgkmcnt(0)
buffer_store_dwordx4 v[24:27], v11, s[32:35], s18 offen""")
    k.stamp(3)
    if k.stamps:
        k("s_waitcnt vmcnt(0)")
    k.stamp(4)
    k.stamp(5, real=True)
    k.stamp_flush()
    k("s_endpgm")
    k.put(Lmod)
    k(f"""s_sub_u32 s16, s2, 288
s_waitcnt lgkmcnt(0)""")
    k.srd(20, 12, 13, D * 2)
    k.srd(24, 14, 15, D * 6 * D * 2)
    k.srd_off(28, 10, 11, WS_MODP, 0x8000)
    WL = 32
    CL = 8
    k(f"""s_movk_i32 s19, 6912
v_mul_lo_u32 v3, v2, s19
s_lshl_b32 s18, s16, 7
v_lshl_add_u32 v4, v1, 4, s18
v_add_u32 v3, v3, v4
v_lshlrev_b32 v4, 1, v2""")
    for i in range(18):
        k(f"v_mov_b32 v{CL+i}, 0")
    for i in range(18):
        k(f"buffer_load_short_d16_hi v{CL+i}, v4, s[20:23], 0 offen offset:{64*i}")
    k("s_mov_b32 s18, 0")
    for i in range(18):
        k(f"buffer_load_dwordx4 v[{WL+4*i}:{WL+4*i+3}], v3, s[24:27], s18 offen")
        if i < 17:
            k(f"s_add_u32 s18, s18, {32*6912}")
    k("s_mov_b32 s19, 0xbfb8aa3b")
    k("s_waitcnt vmcnt(18)")
    for i in range(18):
        k(f"v_mul_f32 v{104+i}, s19, v{CL+i}")
    for i in range(18):
        k(f"v_exp_f32 v{104+i}, v{104+i}")
    for i in range(18):
        k(f"v_add_f32 v{104+i}, 1.0, v{104+i}")
    for i in range(18):
        k(f"v_rcp_f32 v{104+i}, v{104+i}")
    k("s_nop 0")
    for i in range(18):
        k(f"v_mul_f32 v{CL+i}, v{CL+i}, v{104+i}")
    for i in range(0, 18, 2):
        rnd_pair(k, CL + i, CL + i + 1, 104 + i, 40)
    ACC = 124
    for j in range(8):
        k(f"v_mov_b32 v{ACC+j}, 0")
    for i in range(18):
        k(f"s_waitcnt vmcnt({17-i})")
        for q in range(4):
            k(f"""v_lshlrev_b32 v{104+2*q}, 16, v{WL+4*i+q}
v_and_b32 v{104+2*q+1}, s40, v{WL+4*i+q}""")
        for j in range(8):
            k(f"v_fmac_f32 v{ACC+j}, v{CL+i}, v{104+j}")
    k(f"""v_lshlrev_b32 v4, 8, v2
v_lshl_add_u32 v4, v1, 5, v4
ds_write_b128 v4, v[{ACC}:{ACC+3}]
ds_write_b128 v4, v[{ACC+4}:{ACC+7}] offset:16
v_lshlrev_b32 v5, 2, v0
s_waitcnt lgkmcnt(0)
s_barrier
v_cmp_gt_u32 vcc, 64, v0
s_and_saveexec_b64 s[36:37], vcc
s_cbranch_execz {Lexit}""")
    for i in range(32):
        k(f"ds_read_b32 v{32+i}, v5 offset:{256*i}")
    k("s_waitcnt lgkmcnt(0)")
    for st in (16, 8, 4, 2, 1):
        for i in range(st):
            k(f"v_add_f32 v{32+i}, v{32+i}, v{32+i+st}")
    k(f"""s_mul_i32 s17, s16, 7282
s_lshr_b32 s17, s17, 16
s_mul_i32 s18, s17, 9
s_sub_u32 s18, s16, s18
v_cvt_pk_bf16_f32 v33, v32, v32
v_and_b32 v32, s40, v33
v_add_f32 v34, 1.0, v32
v_cvt_pk_bf16_f32 v34, v34, v34
s_cmp_eq_u32 s17, 1
s_cselect_b32 s19, 1, 0
s_cmp_eq_u32 s17, 4
s_cselect_b32 s19, 1, s19
s_cmp_eq_u32 s19, 1
s_cselect_b64 vcc, -1, 0
s_lshl_b32 s18, s18, 6
v_add_u32 v6, s18, v0
v_cndmask_b32 v33, v33, v34, vcc
v_lshlrev_b32 v7, 4, v6
s_lshl_b32 s19, s17, 1
buffer_store_short v33, v7, s[28:31], s19 offen
s_cmp_lg_u32 s17, 5
s_cbranch_scc1 {Lexit}
v_lshlrev_b32 v7, 2, v6
s_movk_i32 s19, 0x4000
buffer_store_dword v32, v7, s[28:31], s19 offen""")
    k("s_endpgm")
    k.put(Lwarm)
    k(f"""s_getpc_b64 s[4:5]
s_add_u32 s4, s4, code_begin@rel32@lo+4
s_addc_u32 s5, s5, code_begin@rel32@hi+12
s_getpc_b64 s[6:7]
s_add_u32 s6, s6, desc_begin@rel32@lo+4
s_addc_u32 s7, s7, desc_begin@rel32@hi+12
v_lshlrev_b32 v1, 7, v0
v_min_u32 v2, code_end-code_begin-4, v1
v_add_u32 v3, 32768, v1
v_min_u32 v3, code_end-code_begin-4, v3
v_and_b32 v4, 7, v0
v_lshlrev_b32 v4, 6, v4
v_min_u32 v4, desc_end-desc_begin-4, v4
global_load_dword v5, v2, s[4:5]
global_load_dword v6, v3, s[4:5]
global_load_dword v7, v4, s[6:7]
s_waitcnt vmcnt(0)""")
    k.put(Lexit)
    k("s_endpgm")
    k.vgpr = 208
    k.sgpr = 48
    return k


SU = 4160
SK = 4640
KB = 4 * SU
K2_LDS = KB + 2 * SK
PFW = os.environ.get('PFW', '1') == '1'


def gen_k2():
    k = K("conv_kernel")
    k.kid = 1
    Lexit = k.label("exit")
    k(f"""s_cmp_ge_u32 s2, 576
s_cbranch_scc1 {Lexit}""")
    k.stamp_init()
    k(f"""
s_and_b32 s3, s2, 7
s_mul_i32 s3, s3, 72
s_lshr_b32 s16, s2, 3
s_add_u32 s3, s3, s16
s_load_dwordx4 s[4:7], s[0:1], {ARG['ssmk']}
s_load_dwordx2 s[10:11], s[0:1], {ARG['ws']}
s_load_dwordx4 s[48:51], s[0:1], {ARG['wg']}
s_load_dwordx2 s[44:45], s[0:1], {ARG['wd']}
s_mov_b32 s40, 0xffff0000
v_mov_b32 v4, 0
v_mov_b32 v5, 0
v_mov_b32 v6, 0
v_mov_b32 v7, 0
v_and_b32 v1, 15, v0
v_lshrrev_b32 v2, 4, v0
v_lshrrev_b32 v3, 2, v1
v_and_b32 v8, 3, v0
s_movk_i32 s16, {SU}
v_mul_u32_u24 v9, s16, v3
v_lshl_add_u32 v9, v8, 4, v9
ds_write_b128 v9, v[4:7] offset:4096
v_lshrrev_b32 v9, 5, v0
s_movk_i32 s17, {SK}
v_mul_u32_u24 v9, s17, v9
v_and_b32 v10, 31, v0
v_lshl_add_u32 v9, v10, 4, v9
ds_write_b128 v9, v[4:7] offset:{KB}
s_lshl_b32 s18, s3, 12
s_lshl_b32 s19, s3, 1
s_and_b32 s19, s19, 0xfffffffc
v_lshlrev_b32 v11, 4, v0
s_waitcnt lgkmcnt(0)
s_load_dword s41, s[6:7], s19""")
    k.srd_off(20, 4, 5, "s18", 4096)
    k(f"""s_mul_i32 s18, s3, {RS}
s_add_u32 s12, s10, s18
s_addc_u32 s13, s11, 0""")
    k.srd_off(24, 12, 13, WS_UR0, 4096)
    k.srd_off(28, 12, 13, WS_UR1, 4096)
    k.srd_off(32, 10, 11, WS_Y2T, SD2)
    k.srd(52, 48, 49, D * F * 2)
    k.srd(56, 50, 51, D * F * 2)
    k.srd(60, 44, 45, D * F * 2)
    k("s_mul_i32 s47, s2, 9216")
    copies = [(20, KB + 456), (20, KB + SK + 448), (28, 12), (24, SU + 12), (28, 2 * SU + 16), (24, 3 * SU + 16)]
    for srd, dst in copies:
        k(f"s_movk_i32 m0, {dst}")
        k("s_nop 0")
        for i in range(4):
            k(f"buffer_load_dwordx4 v11, s[{srd}:{srd+3}], 0 offen offset:{1024*i} lds")
    k(f"""v_mul_u32_u24 v12, s16, v8
v_sub_u32 v13, v2, v3
v_lshl_add_u32 v12, v13, 4, v12
v_add_u32 v12, 48, v12
v_and_b32 v13, 1, v0
v_mul_u32_u24 v13, s17, v13
v_lshrrev_b32 v14, 1, v1
v_lshl_add_u32 v13, v14, 6, v13
v_lshl_add_u32 v13, v2, 4, v13
v_add_u32 v13, {KB}, v13
v_and_b32 v15, 1, v0
v_lshlrev_b32 v15, 3, v15
v_lshl_add_u32 v15, v14, 6, v15
v_lshl_add_u32 v15, v2, 4, v15
v_sub_u32 v16, {3*SU + 4104 - 3584}, v15
v_lshl_add_u32 v15, v14, 2, v2
v_mul_u32_u24 v15, 9216, v15
v_and_b32 v17, 1, v0
v_lshl_add_u32 v15, v17, 3, v15
s_lshl_b32 s46, s3, 4""")
    ACC = 20
    FR = 52
    for i in range(32):
        k(f"v_mov_b32 v{ACC+i}, 0")

    def reads(r):
        st = r & 1
        out = []
        for n in range(8):
            out.append(f"ds_read_b128 v[{FR+64*st+4*n}:{FR+64*st+4*n+3}], v12 offset:{3648 - 48 + 64*r - 512*n}")
            out.append(f"ds_read_b128 v[{FR+64*st+32+4*n}:{FR+64*st+32+4*n+3}], v13 offset:{64*r + 512*n}")
        return out

    pfl = []
    for i in range(9):
        for srd in (52, 56):
            pfl.append(f"buffer_load_dwordx4 v[{FR+128}:{FR+131}], v11, s[{srd}:{srd+3}], s47 offen offset:{1024*(i%4)}" + ("\ns_add_u32 s47, s47, 4096" if (i % 4 == 3 and srd == 56) else ""))
    k("s_waitcnt vmcnt(0)")
    k.stamp(2)
    for ln in reads(0):
        k(ln)
    for r in range(8):
        st = r & 1
        nxt = reads(r + 1) if r < 7 else []
        k("s_waitcnt lgkmcnt(0)")
        mf = []
        for w in range(8):
            for q in range(8 - w):
                t = q + w
                mf.append(f"v_mfma_f32_16x16x32_bf16 v[{ACC+4*t}:{ACC+4*t+3}], v[{FR+64*st+4*w}:{FR+64*st+4*w+3}], v[{FR+64*st+32+4*q}:{FR+64*st+32+4*q+3}], v[{ACC+4*t}:{ACC+4*t+3}]")
        for i, m in enumerate(mf):
            k(m)
            if i < len(nxt):
                k(nxt[i])
            if PFW and i >= 16 and (i - 16) % 6 == 0 and pfl:
                k(pfl.pop(0))
    k.stamp(3)
    UV = FR
    for t in range(8):
        k(f"ds_read_b64 v[{UV+2*t}:{UV+2*t+1}], v16 offset:{512*(7-t)}")
    k(f"""s_and_b32 s42, s3, 1
s_lshl_b32 s43, s41, 16
s_and_b32 s41, s41, s40
s_cmp_eq_u32 s42, 0
s_cselect_b32 s41, s43, s41
s_waitcnt lgkmcnt(0)""")
    T = FR + 32
    for t in range(8):
        a = ACC + 4 * t
        u0, u1 = UV + 2 * t, UV + 2 * t + 1
        b = T + 8 * (t & 1)
        k(f"""v_and_b32 v{b}, s40, v{u1}
v_lshlrev_b32 v{b+1}, 16, v{u1}
v_and_b32 v{b+2}, s40, v{u0}
v_lshlrev_b32 v{b+3}, 16, v{u0}
v_mul_f32 v{b}, s41, v{b}
v_mul_f32 v{b+1}, s41, v{b+1}
v_mul_f32 v{b+2}, s41, v{b+2}
v_mul_f32 v{b+3}, s41, v{b+3}""")
        rnd_pair(k, b, b + 1, b + 4, 40)
        rnd_pair(k, b + 2, b + 3, b + 5, 40)
        rnd_pair(k, a, a + 1, b + 4, 40)
        rnd_pair(k, a + 2, a + 3, b + 5, 40)
        k(f"""v_add_f32 v{b}, v{b}, v{a}
v_add_f32 v{b+1}, v{b+1}, v{a+1}
v_add_f32 v{b+2}, v{b+2}, v{a+2}
v_add_f32 v{b+3}, v{b+3}, v{a+3}
v_cvt_pk_bf16_f32 v{b+6}, v{b}, v{b+1}
v_cvt_pk_bf16_f32 v{b+7}, v{b+2}, v{b+3}
buffer_store_dwordx2 v[{b+6}:{b+7}], v15, s[32:35], s46 offen
s_add_u32 s46, s46, 294912""")
    if k.stamps:
        k("s_waitcnt vmcnt(0)")
    k.stamp(4)
    k.stamp(5, real=True)
    k.stamp_flush()
    k.put(Lexit)
    k("s_endpgm")
    k.vgpr = FR + 132
    k.sgpr = 64
    return k


def wave_sum(k, v, t):
    k(f"""s_nop 1
v_add_f32 v{v}, v{v}, v{v} quad_perm:[1,0,3,2] row_mask:0xf bank_mask:0xf
s_nop 1
v_add_f32 v{v}, v{v}, v{v} quad_perm:[2,3,0,1] row_mask:0xf bank_mask:0xf
s_nop 1
v_add_f32 v{v}, v{v}, v{v} row_half_mirror row_mask:0xf bank_mask:0xf
s_nop 1
v_add_f32 v{v}, v{v}, v{v} row_mirror row_mask:0xf bank_mask:0xf
v_mov_b32 v{t}, v{v}
s_nop 1
v_permlane16_swap_b32 v{v}, v{t}
v_add_f32 v{v}, v{v}, v{t}
v_mov_b32 v{t}, v{v}
s_nop 1
v_permlane32_swap_b32 v{v}, v{t}
v_add_f32 v{v}, v{v}, v{t}""")


def rnd_list(k, regs, tmp, smask):
    i = 0
    while i < len(regs):
        if i + 1 < len(regs):
            rnd_pair(k, regs[i], regs[i + 1], tmp + (i // 2) % 4, smask)
            i += 2
        else:
            k(f"""v_cvt_pk_bf16_f32 v{tmp}, v{regs[i]}, v{regs[i]}
v_and_b32 v{regs[i]}, s{smask}, v{tmp}""")
            i += 1


def layernorm(k, X, O, T, R):
    s, t2, m = R, R + 1, R + 2
    k(f"v_add_f32 v{s}, v{X}, v{X+1}")
    for i in range(2, 9):
        k(f"v_add_f32 v{s}, v{s}, v{X+i}")
    wave_sum(k, s, t2)
    k(f"v_mul_f32 v{m}, s44, v{s}")
    for i in range(9):
        k(f"v_sub_f32 v{O+i}, v{X+i}, v{m}")
    k(f"v_mul_f32 v{s}, v{O}, v{O}")
    for i in range(1, 9):
        k(f"v_fmac_f32 v{s}, v{O+i}, v{O+i}")
    wave_sum(k, s, t2)
    k(f"v_mul_f32 v{s}, s44, v{s}")
    rnd_pair(k, m, s, T, 40)
    k(f"v_add_f32 v{s}, s45, v{s}")
    k(f"""v_cvt_pk_bf16_f32 v{T}, v{s}, v{s}
v_and_b32 v{s}, s40, v{T}
v_sqrt_f32 v{s}, v{s}
s_nop 0
v_cvt_pk_bf16_f32 v{T}, v{s}, v{s}
v_and_b32 v{s}, s40, v{T}
v_rcp_f32 v{t2}, v{s}""")
    for i in range(9):
        k(f"v_sub_f32 v{O+i}, v{X+i}, v{m}")
    rnd_list(k, [O + i for i in range(9)], T, 40)
    for i in range(9):
        k(f"""v_mul_f32 v{T}, v{O+i}, v{t2}
v_fma_f32 v{T+1}, -v{T}, v{s}, v{O+i}
v_fma_f32 v{O+i}, v{T+1}, v{t2}, v{T}""")
    rnd_list(k, [O + i for i in range(9)], T, 40)


def gen_k3():
    k = K("rows_kernel")
    k.kid = 2
    Lexit = k.label("exit")
    L1 = k.label("no9")
    L2 = k.label("no2nd")
    k(f"""s_cmp_ge_u32 s2, 256
s_cbranch_scc1 {Lexit}""")
    k.stamp_init()
    k(f"""
s_load_dwordx2 s[4:5], s[0:1], {ARG['q']}
s_load_dwordx2 s[10:11], s[0:1], {ARG['ws']}
s_mov_b32 s40, 0xffff0000
s_mov_b32 s44, 0x3ae38e39
s_mov_b32 s45, 0x3727c5ac
v_and_b32 v1, 63, v0
v_lshrrev_b32 v2, 6, v0
s_nop 0
v_readfirstlane_b32 s16, v2
s_waitcnt lgkmcnt(0)""")
    k.srd(20, 4, 5, SD2)
    k.srd_off(24, 10, 11, WS_Y2T, SD2)
    k.srd_off(28, 10, 11, WS_MODP, 9216)
    k.srd_off(32, 10, 11, WS_X1, SD2)
    k.srd_off(36, 10, 11, WS_H2, SD2)
    Lnz = k.label("nozero")
    k(f"""s_cmp_lg_u32 s2, 0
s_cbranch_scc1 {Lnz}""")
    k.srd_off(48, 10, 11, WS_CNT, 12288)
    k(f"""v_mov_b32 v8, 0
v_mov_b32 v9, 0
v_mov_b32 v10, 0
v_mov_b32 v11, 0
v_lshlrev_b32 v3, 4, v0
buffer_store_dwordx4 v[8:11], v3, s[48:51], 0 offen
buffer_store_dwordx4 v[8:11], v3, s[48:51], 0 offen offset:0
v_add_u32 v3, 8192, v3
buffer_store_dwordx4 v[8:11], v3, s[48:51], 0 offen""")
    k.put(Lnz)
    X = 8
    Y = 18
    MP = 28
    O = 64
    T = 74
    R = 78
    k(f"""s_mul_i32 s17, s2, 9216
s_lshl_b32 s19, s16, 10
s_add_u32 s17, s17, s19
v_lshlrev_b32 v3, 4, v1
s_mov_b32 m0, s19
s_nop 0
buffer_load_dwordx4 v3, s[24:27], s17 offen lds
s_cmp_lg_u32 s16, 0
s_cbranch_scc1 {L1}
s_add_u32 s17, s17, 8192
s_movk_i32 m0, 8192
s_nop 0
buffer_load_dwordx4 v3, s[24:27], s17 offen lds""")
    k.put(L1)
    for i in range(9):
        k(f"v_mov_b32 v{X+i}, 0")
        k(f"v_mov_b32 v{Y+i}, 0")
    k(f"""s_lshl_b32 s17, s2, 3
s_add_u32 s17, s17, s16
s_mul_i32 s17, s17, 1152
v_lshlrev_b32 v4, 1, v1
v_lshlrev_b32 v5, 4, v1
s_movk_i32 s18, 4096
s_movk_i32 s19, 8192""")
    for i in range(9):
        k(f"buffer_load_short_d16_hi v{X+i}, v4, s[20:23], s17 offen offset:{128*i}")
    for i in range(9):
        so = "0" if i < 4 else ("s18" if i < 8 else "s19")
        k(f"buffer_load_dwordx4 v[{MP+4*i}:{MP+4*i+3}], v5, s[28:31], {so} offen offset:{1024*(i%4)}")
    k(f"""v_lshl_add_u32 v6, v2, 1, v5
v_lshrrev_b32 v7, 5, v1
v_lshlrev_b32 v7, 9, v7
v_bfe_u32 v3, v1, 2, 2
v_lshl_add_u32 v7, v3, 7, v7
v_lshl_add_u32 v7, v2, 4, v7
v_bfe_u32 v3, v1, 4, 1
v_lshl_add_u32 v7, v3, 3, v7
v_and_b32 v3, 3, v1
v_lshl_add_u32 v7, v3, 1, v7
s_waitcnt vmcnt(9)""")
    k.stamp(2)
    layernorm(k, X, O, T, R)
    k("""s_waitcnt vmcnt(0)
s_barrier""")
    k.stamp(3)
    for i in range(9):
        k(f"ds_read_u16_d16_hi v{Y+i}, v6 offset:{1024*i}")
    for i in range(9):
        k(f"""v_and_b32 v{T}, s40, v{MP+4*i}
v_mul_f32 v{O+i}, v{O+i}, v{T}""")
    rnd_list(k, [O + i for i in range(9)], T, 40)
    for i in range(9):
        k(f"""v_lshlrev_b32 v{T}, 16, v{MP+4*i}
v_add_f32 v{O+i}, v{O+i}, v{T}""")
    rnd_list(k, [O + i for i in range(9)], T, 40)
    k("s_waitcnt lgkmcnt(0)")
    for i in range(9):
        k(f"v_mul_f32 v{O+i}, v{O+i}, v{Y+i}")
    rnd_list(k, [O + i for i in range(9)], T, 40)
    for i in range(9):
        k(f"""v_lshlrev_b32 v{T}, 16, v{MP+4*i+1}
v_mul_f32 v{O+i}, v{O+i}, v{T}""")
    rnd_list(k, [O + i for i in range(9)], T, 40)
    for i in range(9):
        k(f"v_add_f32 v{X+i}, v{X+i}, v{O+i}")
    rnd_list(k, [X + i for i in range(9)], T, 40)
    for i in range(9):
        k(f"buffer_store_short_d16_hi v{X+i}, v4, s[32:35], s17 offen offset:{128*i}")
    layernorm(k, X, O, T, R)
    for i in range(9):
        k(f"""v_lshlrev_b32 v{T}, 16, v{MP+4*i+2}
v_mul_f32 v{O+i}, v{O+i}, v{T}""")
    rnd_list(k, [O + i for i in range(9)], T, 40)
    for i in range(9):
        k(f"""v_and_b32 v{T}, s40, v{MP+4*i+1}
v_add_f32 v{O+i}, v{O+i}, v{T}
v_cvt_pk_bf16_f32 v{O+i}, v{O+i}, v{O+i}
ds_write_b16 v7, v{O+i} offset:{9216+1024*i}""")
    k(f"""v_lshlrev_b32 v6, 4, v0
v_lshrrev_b32 v7, 3, v0
v_lshlrev_b32 v7, 8, v7
v_and_b32 v3, 7, v0
v_lshl_add_u32 v7, v3, 4, v7
s_lshr_b32 s17, s2, 1
s_mul_i32 s17, s17, 18432
s_and_b32 s18, s2, 1
s_lshl_b32 s18, s18, 7
s_add_u32 s17, s17, s18
s_waitcnt lgkmcnt(0)
s_barrier
ds_read_b128 v[8:11], v6 offset:9216
s_cmp_lg_u32 s16, 0
s_cbranch_scc1 {L2}
ds_read_b128 v[12:15], v6 offset:{9216+8192}
s_add_u32 s18, s17, 16384
s_waitcnt lgkmcnt(0)
buffer_store_dwordx4 v[12:15], v7, s[36:39], s18 offen""")
    k.put(L2)
    k(f"""s_waitcnt lgkmcnt(0)
buffer_store_dwordx4 v[8:11], v7, s[36:39], s17 offen""")
    k.stamp(6)
    if k.stamps:
        k("s_waitcnt vmcnt(0)")
    k.stamp(4)
    k.stamp(5, real=True)
    k.stamp_flush()
    k.put(Lexit)
    k("s_endpgm")
    k.vgpr = 84
    k.sgpr = 56
    return k


STG = 36864
NBUF = 4
G_LDS = STG * NBUF
EXACT_GU = os.environ.get("EXACT_GU", "0") == "1"


def gen_gemm(which):
    g1 = which == 1
    k = K("gemm1_kernel" if g1 else "gemm2_kernel")
    Lexit = k.label("exit")
    NT = 18 if g1 else 9
    NACC = NT * 4
    DAH = 4
    RING = 6
    NV = min(NACC, 56)
    def acc(ti):
        return vr(32 + 4 * ti, 4) if ti < NV else ar(4 * (ti - NV), 4)
    AB = 4 * (NACC - NV)
    NXS = 2 if g1 else 4
    XR = AB
    WRG = AB + 32 * NXS
    def xfrag(xs, kk, st):
        return ar(XR + 32 * xs + 16 * kk + 4 * st, 4)
    def wfrag(slot, half=None):
        if half is None:
            return ar(WRG + 4 * slot, 4)
        return ar(WRG + 4 * slot + 2 * half, 2)
    DUM = WRG + 4 * RING
    k.agpr = DUM + 4
    k.vgpr = 32 + 4 * NV
    k.sgpr = 64
    VX = 4
    VD = 8
    VB = 12
    k.kid = 3 if g1 else 4
    k(f"""s_cmp_ge_u32 s2, 256
s_cbranch_scc1 {Lexit}""")
    k.stamp_init()
    k(f"""s_load_dwordx4 s[4:7], s[0:1], {ARG['wg']}
s_load_dwordx2 s[8:9], s[0:1], {ARG['wd']}
s_load_dwordx2 s[10:11], s[0:1], {ARG['ws']}
v_and_b32 v1, 63, v0
v_lshrrev_b32 v2, 6, v0
s_and_b32 s16, s2, 7
s_lshr_b32 s17, s2, 3
v_readfirstlane_b32 s18, v2
s_nop 3
s_lshr_b32 s19, s18, 1
s_and_b32 s20, s18, 1""")
    PITCH = F * 2 if g1 else D * 2
    XST = 18432 if g1 else 147456
    if g1:
        k(f"""s_and_b32 s21, s17, 3
s_lshl_b32 s16, s16, 2
s_add_u32 s21, s21, s16
s_lshr_b32 s22, s17, 2
s_lshl_b32 s23, s22, 4
s_lshl_b32 s36, s18, 2
s_add_u32 s23, s23, s36
s_mul_i32 s36, s23, {XST}
s_mov_b32 s38, 0""")
    else:
        k(f"""s_and_b32 s21, s17, 3
s_and_b32 s39, s16, 3
s_lshr_b32 s16, s16, 2
s_lshl_b32 s16, s16, 3
s_lshr_b32 s22, s17, 2
s_add_u32 s22, s22, s16
s_lshl_b32 s23, s22, 3
s_lshl_b32 s36, s20, 2
s_add_u32 s23, s23, s36
s_mul_i32 s36, s23, {XST}
s_lshl_b32 s37, s39, 1
s_add_u32 s37, s37, s19
s_mul_i32 s38, s37, {18*1024}
s_add_u32 s36, s36, s38
s_mul_i32 s38, s37, {576*PITCH}""")
    k(f"""s_lshr_b32 s52, s21, 2
s_and_b32 s53, s21, 3
s_mul_i32 s37, s52, 1152
s_add_u32 s38, s38, s37
s_mul_i32 s37, s20, {32*PITCH}
s_add_u32 s38, s38, s37
s_lshl_b32 s37, s53, 8
s_add_u32 s40, s38, s37
s_lshl_b32 s37, s53, 5
s_add_u32 s41, s38, s37
s_add_u32 s41, s41, 1024
s_movk_i32 s37, {PITCH}""")
    k(f"v_lshl_add_u32 v{VX}, v1, 4, s36")
    for st in range(1, 4):
        k(f"v_add_u32 v{VX+st}, {XST}, v{VX+st-1}")
    k(f"""v_lshrrev_b32 v22, 4, v1
v_and_b32 v23, 15, v1
v_mul_lo_u32 v24, v22, s37
v_add_u32 v24, s40, v24
v_lshlrev_b32 v25, 1, v22
v_xor_b32 v25, v23, v25
v_lshl_add_u32 v{VD}, v25, 4, v24
v_xor_b32 v25, 8, v25
v_lshl_add_u32 v{VD+1}, v25, 4, v24
v_add_u32 v{VD+1}, {4*PITCH}, v{VD+1}
v_lshrrev_b32 v22, 1, v1
v_mul_lo_u32 v24, v22, s37
v_and_b32 v23, 1, v1
v_lshl_add_u32 v24, v23, 4, v24
v_add_u32 v{VD+2}, s41, v24""")
    k(f"""s_mul_i32 s42, s19, 18432
s_lshl_b32 s36, s20, 10
s_add_u32 s43, s42, s36
s_add_u32 s43, s43, 16384
s_lshl_b32 s36, s20, 13
s_add_u32 s42, s42, s36""")
    k(f"""v_lshrrev_b32 v22, 2, v1
v_and_b32 v23, 3, v1
v_lshlrev_b32 v23, 3, v23
v_lshl_add_u32 v24, v22, 8, v23
v_and_b32 v25, 7, v22""")
    if not g1:
        k(f"""s_mul_i32 s36, s19, 18432
v_add_u32 v24, s36, v24
v_add_u32 v23, s36, v23""")
    for t in range(8):
        k(f"""v_xor_b32 v26, {t}, v25
v_lshl_add_u32 v{VB+t}, v26, 5, v24""")
    k(f"""v_lshl_add_u32 v{VB+8}, v22, 5, v23
v_add_u32 v{VB+8}, 16384, v{VB+8}""")
    k("s_waitcnt lgkmcnt(0)")
    k.stamp(8)
    if g1:
        k(f"""s_cmp_eq_u32 s19, 0
s_cselect_b32 s12, s4, s6
s_cselect_b32 s13, s5, s7""")
        k.srd(24, 12, 13, D * F * 2)
        k.srd_off(28, 10, 11, WS_H2, SD2)
        k.srd_off(32, 10, 11, WS_HM, HM_BYTES)
        k.srd(56, 8, 9, D * F * 2)
        k(f"""s_lshl_b32 s36, s2, 12
v_lshl_add_u32 v21, v0, 4, s36
s_mov_b32 s60, 0""")
    else:
        k.srd(24, 8, 9, D * F * 2)
        k.srd_off(28, 10, 11, WS_HM, HM_BYTES)
        k.srd_off(32, 10, 11, WS_PART, 4 * PART1)

    def dma_list():
        out = []
        for n in range(8):
            out.append(f"""s_add_u32 s54, s45, s42
s_add_u32 m0, s54, {1024*n}
s_add_u32 s55, s44, {(n>>1)*8*PITCH}
buffer_load_dwordx4 v{VD+(n&1)}, s[24:27], s55 offen lds""")
        out.append(f"""s_add_u32 m0, s45, s43
s_nop 0
buffer_load_dwordx4 v{VD+2}, s[24:27], s44 offen lds
s_add_u32 s44, s44, {64*PITCH}
s_add_u32 s45, s45, {STG}
s_cmp_ge_u32 s45, {STG*NBUF}
s_cselect_b32 s45, 0, s45""")
        return out
    def xload_list(xs):
        out = []
        for kk in range(2):
            for st in range(4):
                out.append(f"buffer_load_dwordx4 {xfrag(xs, kk, st)}, v{VX+st}, s[28:31], s46 offen offset:{1024*kk}")
        out[-1] += "\ns_add_u32 s46, s46, 2048"
        return out
    k(f"""s_mov_b32 s44, 0
s_mov_b32 s45, 0
s_mov_b32 s46, 0""")
    zl = []
    for ti in range(NACC):
        for r in range(4):
            if ti < NV:
                zl.append(f"v_mov_b32 v{32+4*ti+r}, 0")
            else:
                zl.append(f"v_accvgpr_write_b32 a{4*(ti-NV)+r}, 0")
    if g1:
        pl = dma_list() + xload_list(0) + dma_list()
        W0 = 9
    else:
        pl = dma_list() + xload_list(0) + xload_list(1) + dma_list() + xload_list(2)
        W0 = 25
    per = (len(zl) + len(pl) - 1) // len(pl)
    k.stamp(9)
    for i, ln in enumerate(pl):
        k(ln)
        if i >= 8:
            for z in range(per + 6):
                if zl:
                    k(zl.pop(0))
    while zl:
        k(zl.pop(0))
    NF = 2 * NT

    def frag_info(f):
        kk = f // NT
        r = f % NT
        return kk, r % 9, r // 9

    def tr_reads(f, slot):
        kk, t, m = frag_info(f)
        if t < 8:
            off = m * 18432 + kk * 8192
            hs = 4096
        else:
            off = m * 18432 + kk * 1024
            hs = 512
        return [f"ds_read_b64_tr_b16 {wfrag(slot, 0)}, v{VB+t} offset:{off}",
                f"ds_read_b64_tr_b16 {wfrag(slot, 1)}, v{VB+t} offset:{off + hs}"]

    k.stamp(6)
    k(f"""s_waitcnt vmcnt({W0})
s_barrier""")
    k.stamp(2)
    if k.stamps:
        k("s_waitcnt lgkmcnt(0)")
    assert NF % RING == 0
    for f in range(DAH):
        for ln in tr_reads(f, f % RING):
            k(ln)

    def stage(xs, last):
        if last:
            vm = []
        elif g1:
            vm = xload_list(1 - xs) + dma_list()
            if PFW:
                vm.append(f"buffer_load_dwordx4 {ar(DUM, 4)}, v21, s[56:59], s60 offen\ns_add_u32 s60, s60, 0x100000")
        else:
            vm = dma_list() + xload_list((xs + NXS - 1) % NXS)
        nvm = len(vm)
        WB = nvm if g1 else nvm + 8
        PB = NF - DAH
        slots = {}
        for i in range(nvm):
            slots.setdefault(i * PB // nvm, []).append(vm[i])
        if not last:
            k(f"""s_add_u32 s48, s48, {STG}
s_cmp_ge_u32 s48, {STG*NBUF}
s_cselect_b32 s49, {(-STG*(NBUF-1)) & 0xffffffff:#x}, s50
s_cselect_b32 s48, 0, s48""")
        for f in range(NF):
            kk, t, m = frag_info(f)
            fa = f + DAH
            if f == PB and not last:
                k(f"s_waitcnt vmcnt({WB})")
                k("s_barrier")
            rd = []
            upd = None
            if fa < NF:
                rd = tr_reads(fa, fa % RING)
                if fa >= NF - 9 and not last:
                    upd = f"v_add_u32 v{VB + frag_info(fa)[1]}, s49, v{VB + frag_info(fa)[1]}"
            elif not last:
                rd = tr_reads(fa - NF, fa % RING)
            rem = min(DAH - 1, (NF - 1 - f) if last else DAH - 1)
            k(f"s_waitcnt lgkmcnt({2*rem})")
            ti_base = (m * 9 + t) * 4
            extra = list(slots.get(f, []))
            for st in range(4):
                k(f"v_mfma_f32_16x16x32_bf16 {acc(ti_base+st)}, {wfrag(f % RING)}, {xfrag(xs, kk, st)}, {acc(ti_base+st)}")
                if st == 0 and rd:
                    k(rd[0])
                if st == 1 and rd:
                    k(rd[1])
                    if upd:
                        k(upd)
                if st >= 2 and extra:
                    k(extra.pop(0))
            while extra:
                k(extra.pop(0))
        if not last and g1:
            k(f"s_waitcnt vmcnt({nvm - 8})")

    k(f"""s_mov_b32 s48, 0
s_mov_b32 s50, {STG}
s_mov_b32 s51, 0""")
    Lloop = k.label("loop")
    k.put(Lloop)
    for xs in range(NXS):
        stage(xs, False)
    k(f"""s_add_u32 s51, s51, 1
s_cmp_lt_u32 s51, {8 // NXS}
s_cbranch_scc1 {Lloop}""")
    stage(0, True)
    k.stamp(3)
    k("s_nop 7")
    k("s_nop 7")

    def accreg(ti, r, tmp):
        if ti < NV:
            return f"v{32+4*ti+r}"
        k(f"v_accvgpr_read_b32 v{tmp}, a{4*(ti-NV)+r}")
        return f"v{tmp}"

    if g1:
        k(f"""s_mul_i32 s36, s52, 18
s_lshl_b32 s37, s53, 2
s_add_u32 s38, s36, s37
s_lshl_b32 s38, s38, 10
s_lshr_b32 s37, s53, 1
s_add_u32 s39, s36, s37
s_add_u32 s39, s39, 16
s_lshl_b32 s39, s39, 10
s_and_b32 s37, s53, 1
s_lshl_b32 s37, s37, 3
s_add_u32 s39, s39, s37
s_mul_i32 s36, s23, 147456
s_mov_b32 s40, 0xffff0000
v_lshl_add_u32 v{VX}, v1, 4, s36""")
        for st in range(1, 4):
            k(f"v_add_u32 v{VX+st}, 147456, v{VX+st-1}")
        cnt = 0
        for st in range(4):
            for pr in range(5):
                tiles = [2 * pr, 2 * pr + 1] if pr < 4 else [8]
                ob = 8 + 4 * (cnt % 2)
                cnt += 1
                for hi, t in enumerate(tiles):
                    tg = t * 4 + st
                    tu = (9 + t) * 4 + st
                    gn = [accreg(tg, r, 16 + r) for r in range(4)]
                    un = [accreg(tu, r, 20 + r) for r in range(4)]
                    if EXACT_GU:
                        for h2 in range(2):
                            k(f"""v_cvt_pk_bf16_f32 v28, {gn[2*h2]}, {gn[2*h2+1]}
v_cvt_pk_bf16_f32 v29, {un[2*h2]}, {un[2*h2+1]}
v_pk_max_i16 v28, v28, 0
v_lshlrev_b32 v30, 16, v29
v_and_b32 v31, s40, v29
v_lshlrev_b32 v{24+2*h2}, 16, v28
v_and_b32 v{25+2*h2}, s40, v28
v_mul_f32 v{24+2*h2}, v{24+2*h2}, v30
v_mul_f32 v{25+2*h2}, v{25+2*h2}, v31""")
                    else:
                        for r in range(4):
                            k(f"v_max_f32 v{24+r}, 0, {gn[r]}")
                            k(f"v_mul_f32 v{24+r}, v{24+r}, {un[r]}")
                    k(f"""v_cvt_pk_bf16_f32 v{ob+2*hi}, v24, v25
v_cvt_pk_bf16_f32 v{ob+2*hi+1}, v26, v27""")
                if pr < 4:
                    k(f"buffer_store_dwordx4 v[{ob}:{ob+3}], v{VX+st}, s[32:35], s38 offen offset:{1024*pr}")
                else:
                    k(f"buffer_store_dwordx2 v[{ob}:{ob+1}], v{VX+st}, s[32:35], s39 offen")
        k.stamp(7)
        if k.stamps:
            k("s_waitcnt vmcnt(0)")
        k.stamp(4)
        k.stamp(5, real=True)
        k.stamp_flush()
    else:
        Lk1 = k.label("kh1")
        k(f"""s_waitcnt vmcnt(0)
s_barrier
s_mul_i32 s36, s18, 18432
v_lshl_add_u32 v22, v1, 4, s36
s_xor_b32 s37, s18, 2
s_mul_i32 s37, s37, 18432
v_lshl_add_u32 v23, v1, 4, s37
s_lshl_b32 s36, s19, 1
s_add_u32 s36, s36, s23
s_mul_i32 s36, s36, 36
s_lshl_b32 s36, s36, 10
s_mul_i32 s37, s39, {PART1}
s_add_u32 s36, s36, s37
v_lshl_add_u32 v24, v1, 4, s36
v_add_u32 v25, {36*1024}, v24
s_lshl_b32 s36, s53, 13
s_add_u32 s37, s36, 4096
s_lshl_b32 s38, s53, 10
s_add_u32 s38, s38, 32768
s_cmp_eq_u32 s19, 1
s_cbranch_scc1 {Lk1}""")
        for kh in range(2):
            if kh == 1:
                k.put(Lk1)
            keep = [2 * kh, 2 * kh + 1]
            send = [2 - 2 * kh, 3 - 2 * kh]
            for i, st in enumerate(send):
                for t in range(9):
                    k(f"ds_write_b128 v22, {acc(t*4+st)} offset:{(i*9+t)*1024}")
            k("""s_waitcnt lgkmcnt(0)
s_barrier""")
            for i, st in enumerate(send):
                for t in range(9):
                    k(f"ds_read_b128 {acc(t*4+st)}, v23 offset:{(i*9+t)*1024}")
            n = 18
            for i in range(2):
                for t in range(9):
                    n -= 1
                    k(f"s_waitcnt lgkmcnt({min(n,15)})")
                    a = 32 + 4 * (t * 4 + keep[i])
                    b = 32 + 4 * (t * 4 + send[i])
                    k(f"""v_pk_add_f32 v[{a}:{a+1}], v[{a}:{a+1}], v[{b}:{b+1}]
v_pk_add_f32 v[{a+2}:{a+3}], v[{a+2}:{a+3}], v[{b+2}:{b+3}]""")
                    so = "s36" if t < 4 else ("s37" if t < 8 else "s38")
                    k(f"buffer_store_dwordx4 v[{a}:{a+3}], v{24+i}, s[32:35], {so} offen offset:{1024*(t%4)}")
            k.stamp(7)
            if k.stamps:
                k("s_waitcnt vmcnt(0)")
            k.stamp(4)
            k.stamp(5, real=True)
            k.stamp_flush()
            if kh == 0:
                k("s_endpgm")
    k.put(Lexit)
    k("s_endpgm")
    return k


TPW = int(os.environ.get("TPW", "1"))


def gen_k6():
    k = K("final_kernel")
    k.kid = {"2": 1, "1": 4, "0": 5}[os.environ.get("FUSED", "2")]
    Lexit = k.label("exit")
    k(f"""s_cmp_ge_u32 s2, {1152 // TPW}
s_cbranch_scc1 {Lexit}""")
    k.stamp_init()
    k(f"""s_load_dwordx2 s[4:5], s[0:1], {ARG['out']}
s_load_dwordx2 s[10:11], s[0:1], {ARG['ws']}
s_mov_b32 s40, 0xffff0000
v_and_b32 v1, 63, v0
v_lshrrev_b32 v2, 6, v0
s_lshl_b32 s16, s2, 2
v_readfirstlane_b32 s17, v2
s_nop 3
s_add_u32 s16, s16, s17
s_mul_i32 s16, s16, {TPW}
s_mov_b32 s18, 0x71c71c8
s_mul_hi_u32 s17, s16, s18
s_mul_i32 s18, s17, 36
s_sub_u32 s18, s16, s18
s_lshl_b32 s19, s16, 10
v_lshl_add_u32 v3, v1, 4, s19
s_mov_b32 s36, {PART1}
s_mov_b32 s37, {2*PART1}
s_mov_b32 s38, {3*PART1}
v_and_b32 v4, 15, v1
v_lshrrev_b32 v5, 4, v1
s_lshl_b32 s19, s17, 4
v_add_u32 v4, s19, v4
s_movk_i32 s19, 1152
v_mul_lo_u32 v4, v4, s19
s_lshl_b32 s19, s18, 5
v_lshl_add_u32 v6, v5, 3, s19
v_add_u32 v4, v4, v6
v_lshlrev_b32 v6, 1, v6
s_waitcnt lgkmcnt(0)""")
    k.srd(20, 4, 5, SD2)
    k.srd_off(24, 10, 11, WS_PART, 4 * PART1)
    k.srd_off(28, 10, 11, WS_X1, SD2)
    k.srd_off(32, 10, 11, WS_GBV, D * 4)
    for t in range(TPW):
        b = 8 + 24 * t
        k(f"""buffer_load_dwordx4 v[{b}:{b+3}], v3, s[24:27], 0 offen offset:{1024*t}
buffer_load_dwordx4 v[{b+4}:{b+7}], v3, s[24:27], s36 offen offset:{1024*t}
buffer_load_dwordx4 v[{b+8}:{b+11}], v3, s[24:27], s37 offen offset:{1024*t}
buffer_load_dwordx4 v[{b+12}:{b+15}], v3, s[24:27], s38 offen offset:{1024*t}
buffer_load_dwordx2 v[{b+16}:{b+17}], v4, s[28:31], 0 offen offset:{32*t}
buffer_load_dwordx4 v[{b+20}:{b+23}], v6, s[32:35], 0 offen offset:{64*t}""")
    for t in range(TPW):
        b = 8 + 24 * t
        k(f"""s_waitcnt vmcnt({6*(TPW-1-t) + t})
v_pk_add_f32 v[{b}:{b+1}], v[{b}:{b+1}], v[{b+4}:{b+5}]
v_pk_add_f32 v[{b+2}:{b+3}], v[{b+2}:{b+3}], v[{b+6}:{b+7}]
v_pk_add_f32 v[{b+8}:{b+9}], v[{b+8}:{b+9}], v[{b+12}:{b+13}]
v_pk_add_f32 v[{b+10}:{b+11}], v[{b+10}:{b+11}], v[{b+14}:{b+15}]
v_pk_add_f32 v[{b}:{b+1}], v[{b}:{b+1}], v[{b+8}:{b+9}]
v_pk_add_f32 v[{b+2}:{b+3}], v[{b+2}:{b+3}], v[{b+10}:{b+11}]""")
        rnd_pair(k, b, b + 1, b + 4, 40)
        rnd_pair(k, b + 2, b + 3, b + 5, 40)
        k(f"""v_pk_mul_f32 v[{b}:{b+1}], v[{b}:{b+1}], v[{b+20}:{b+21}]
v_pk_mul_f32 v[{b+2}:{b+3}], v[{b+2}:{b+3}], v[{b+22}:{b+23}]""")
        rnd_pair(k, b, b + 1, b + 4, 40)
        rnd_pair(k, b + 2, b + 3, b + 5, 40)
        k(f"""v_lshlrev_b32 v{b+8}, 16, v{b+16}
v_and_b32 v{b+9}, s40, v{b+16}
v_lshlrev_b32 v{b+10}, 16, v{b+17}
v_and_b32 v{b+11}, s40, v{b+17}
v_pk_add_f32 v[{b}:{b+1}], v[{b}:{b+1}], v[{b+8}:{b+9}]
v_pk_add_f32 v[{b+2}:{b+3}], v[{b+2}:{b+3}], v[{b+10}:{b+11}]
v_cvt_pk_bf16_f32 v{b+4}, v{b}, v{b+1}
v_cvt_pk_bf16_f32 v{b+5}, v{b+2}, v{b+3}
buffer_store_dwordx2 v[{b+4}:{b+5}], v4, s[20:23], 0 offen offset:{32*t}""")
    k.stamp(3)
    if k.stamps:
        k("s_waitcnt vmcnt(0)")
    k.stamp(4)
    k.stamp(5, real=True)
    k.stamp_flush()
    k.put(Lexit)
    k("s_endpgm")
    k.vgpr = 8 + 24 * TPW
    k.sgpr = 48
    return k


HEADER = open("adaLN_cond__ssm_conv_h3__glu_gated_reglu__prompt.s.ref").read().split("; Override launch geometry")[0]


def build(path):
    import gen_mlp, importlib
    gen_mega = importlib.import_module(os.environ.get('MEGA', 'gen_mega'))
    if os.environ.get("FUSED", "2") == "2":
        ks = [(gen_mega.gen_mega(), 256, 256, gen_mega.M_LDS)]
        if not gen_mega.INK:
            ks.append((gen_mega.gen_final16(), 640, 256, 0))
    elif os.environ.get("FUSED", "2") == "1":
        ks = [(gen_k1(), 342 + NWARM, 256, 16384), (gen_k2(), 576, 64, K2_LDS), (gen_k3(), 256, 512, 18432),
              (gen_mlp.gen_mlp(), 256, 256, gen_mlp.M_LDS), (gen_k6(), 1152 // TPW, 256, 0)]
    else:
        ks = [(gen_k1(), 342 + NWARM, 256, 16384), (gen_k2(), 576, 64, K2_LDS), (gen_k3(), 256, 512, 18432),
              (gen_gemm(1), 256, 256, G_LDS), (gen_gemm(2), 256, 256, G_LDS), (gen_k6(), 1152 // TPW, 256, 0)]
    out = HEADER
    for kk, g, b, lds in ks:
        out += f"; @launch kernel={kk.name} grid=({g},1,1) block=({b},1,1) lds={lds}\n"
    out += '.amdgcn_target "amdgcn-amd-amdhsa--gfx950"\n.text\n'
    for i, (kk, *_) in enumerate(ks):
        if i == (0 if len(ks) <= 2 else 1):
            out += ".p2align 8\ncode_begin:\n"
        out += kk.text()
    out += "code_end:\n"
    out += '.section .rodata,"a"\n.p2align 6\ndesc_begin:\n'
    for kk, *_ in ks:
        out += kk.desc()
    out += "desc_end:\n"
    open(path, "w").write(out)


if __name__ == "__main__":
    build(sys.argv[1] if len(sys.argv) > 1 else "adaLN_cond__ssm_conv_h3__glu_gated_reglu__prompt.s")
```

```python
class K:
    def __init__(self, name):
        self.name = name
        self.lines = []
        self.nlab = 0
        self.vgpr = 0
        self.agpr = 0
        self.sgpr = 0
        self.wgy = False
    def __call__(self, s):
        for ln in s.strip("\n").split("\n"):
            ln = ln.strip()
            if ln:
                self.lines.append("  " + ln)
    def label(self, base="L"):
        self.nlab += 1
        return f"{self.name}_{base}{self.nlab}"
    def put(self, lab):
        self.lines.append(lab + ":")
    def srd(self, d, lo, hi, nbytes):
        self(f"""s_mov_b32 s{d}, s{lo}
s_mov_b32 s{d+1}, s{hi}
s_mov_b32 s{d+2}, {nbytes}
s_mov_b32 s{d+3}, 0x00020000""")
    def srd_off(self, d, lo, hi, off, nbytes):
        self(f"""s_add_u32 s{d}, s{lo}, {off}
s_addc_u32 s{d+1}, s{hi}, 0
s_mov_b32 s{d+2}, {nbytes}
s_mov_b32 s{d+3}, 0x00020000""")
    stamps = False
    kid = 0
    wsg = 99
    def stamp(self, i, real=False):
        if not self.stamps:
            return
        self(f"s_memtime s[{70+2*i}:{71+2*i}]" if not real else f"s_memrealtime s[{70+2*i}:{71+2*i}]")
        self.nst = max(getattr(self, "nst", 0), i + 1)
    def stamp_flush(self, ws_lo=10, ws_hi=11, vt=0):
        if not self.stamps:
            return
        n = self.nst
        self(f"""s_waitcnt lgkmcnt(0)
s_add_u32 s64, s{ws_lo}, {0x8000000 + self.kid * 0x400000}
s_addc_u32 s65, s{ws_hi}, 0
s_mov_b32 s66, 0x400000
s_mov_b32 s67, 0x00020000
s_mov_b64 exec, 1
s_lshl_b32 s68, s2, 11
s_lshl_b32 s69, s{self.wsg}, 7
s_add_u32 s68, s68, s69
v_mov_b32 v{vt}, s68""")
        for i in range(n):
            self(f"""v_mov_b32 v{vt+2}, s{70+2*i}
v_mov_b32 v{vt+3}, s{71+2*i}
buffer_store_dwordx2 v[{vt+2}:{vt+3}], v{vt}, s[64:67], 0 offen offset:{8*i}
s_nop 1""")
    def stamp_debug(self, order):
        import os
        if not (self.stamps and os.environ.get("DBGOUT")):
            return
        L = self.label("nodbg")
        self(f"""s_cmp_lg_u32 s2, {os.environ["DBGOUT"]}
s_cbranch_scc1 {L}
s_cmp_lg_u32 s{self.wsg}, 0
s_cbranch_scc1 {L}
s_load_dwordx2 s[64:65], s[0:1], 104
s_waitcnt lgkmcnt(0)
s_mov_b64 exec, 1
v_mov_b32 v0, 0""")
        for n, i in enumerate(order):
            base = 0 if i == 5 else 1
            self(f"""s_sub_u32 s66, s{70+2*i}, s{70+2*base}
v_mov_b32 v2, s66
global_store_dword v0, v2, s[64:65] offset:{4*(n+1)}
s_nop 1""")
        self.put(L)
    def stamp_init(self):
        if not self.stamps:
            return
        self(f"""v_lshrrev_b32 v1, 6, v0
s_nop 0
v_readfirstlane_b32 s{self.wsg}, v1""")
        self.stamp(0, real=True)
        self.stamp(1)
    def text(self):
        out = [f".globl {self.name}", ".p2align 8", f".type {self.name},@function", f"{self.name}:"]
        out += self.lines
        return "\n".join(out) + "\n"
    def desc(self):
        acc_off = (self.vgpr + 3) // 4 * 4
        nfv = acc_off + self.agpr if self.agpr else self.vgpr
        s = f""".p2align 6
.amdhsa_kernel {self.name}
  .amdhsa_next_free_vgpr {nfv}
  .amdhsa_next_free_sgpr {102 if self.stamps else self.sgpr}
  .amdhsa_accum_offset {acc_off}
  .amdhsa_group_segment_fixed_size 0
  .amdhsa_kernarg_size 120
  .amdhsa_user_sgpr_count 2
  .amdhsa_user_sgpr_kernarg_segment_ptr 1
  .amdhsa_system_sgpr_workgroup_id_x 1
  .amdhsa_float_denorm_mode_32 3
  .amdhsa_float_denorm_mode_16_64 3
.end_amdhsa_kernel
"""
        return s

def vr(a, n=1):
    return f"v{a}" if n == 1 else f"v[{a}:{a+n-1}]"
def ar(a, n=1):
    return f"a{a}" if n == 1 else f"a[{a}:{a+n-1}]"
def sr(a, n=1):
    return f"s{a}" if n == 1 else f"s[{a}:{a+n-1}]"
```

```python
import os
from asmlib import *
from gen import (S, D, F, ARG, RS, WS_UR0, WS_UR1, WS_Y2T, WS_X1, WS_H2, WS_MODP, WS_GBV, WS_HM, WS_PART, WS_CNT,
                 SD2, HM_BYTES, PART1, rnd_pair, rnd_list, SU, SK, KB, K2_LDS)

STG = 36864
NBUF = 4
M_LDS = 163840
SPIN_MAX = 1 << 20
F0, F1, F2, F3, FREG, F4, F5 = 0, 2048, 3072, 4096, 5120, 6144, 7168
INK = os.environ.get('INK', '1') == '1'
KAREA = 16 * SU
KS = KAREA + 8 * SK + 64
VS = KS + 32768
YT_LDS = KS
ROW_LDS = 3 * STG
NONCE_LDS = M_LDS - 16
P0_LDS = 3 * STG
NKV = 198
CHT = int(os.environ.get('CHT', '0'))
XPOL = os.environ.get('XPOL', ' sc1')
DAH2 = int(os.environ.get('DAH2', '7'))
CT1 = os.environ.get('CT1', '1') == '1'
CT2 = os.environ.get('CT2', '1') == '1'
HMPOL = os.environ.get('HMPOL', '')
WBL = int(os.environ.get('WBL', '-1'))
P16_BYTES = 4 * 128 * 4 * 5120
SC_BYTES = 4 * 64 * 4 * 256
NHMT = int(os.environ.get('NHMT', '3'))
PFD = int(os.environ.get('PFD', '3'))
PF_WD = os.environ.get('PF_WD', '0') == '1'
G1_HM = os.environ.get('G1_HM', '1') == '1'
G1_WD = os.environ.get('G1_WD', '1') == '1'
NREP = int(os.environ.get('NREP', '16'))
REPS = 8192 + 768
SL1 = int(os.environ.get('SL1', '6'))


def wave_sum2(k, va, vb, ta, tb):
    for ctl in ("quad_perm:[1,0,3,2]", "quad_perm:[2,3,0,1]", "row_half_mirror", "row_mirror"):
        k(f"""s_nop 0
v_add_f32 v{va}, v{va}, v{va} {ctl} row_mask:0xf bank_mask:0xf
v_add_f32 v{vb}, v{vb}, v{vb} {ctl} row_mask:0xf bank_mask:0xf""")
    for op in ("v_permlane16_swap_b32", "v_permlane32_swap_b32"):
        k(f"""v_mov_b32 v{ta}, v{va}
v_mov_b32 v{tb}, v{vb}
s_nop 1
{op} v{va}, v{ta}
{op} v{vb}, v{tb}
v_add_f32 v{va}, v{va}, v{ta}
v_add_f32 v{vb}, v{vb}, v{tb}""")


def rnd18(k, O, T):
    for i in range(9):
        rnd_pair(k, O + 2 * i, O + 2 * i + 1, T + (i % 4), 40)


def pk(op, d, a, b, c=None, mods=""):
    s = f"v_pk_{op}_f32 v[{d}:{d+1}], v[{a}:{a+1}], v[{b}:{b+1}]"
    if c is not None:
        s += f", v[{c}:{c+1}]"
    return s + (" " + mods if mods else "")


def layernorm2(k, X, O, T, R):
    s, t2, m, q = R, R + 2, R + 4, R + 6
    k(pk("add", s, X, X + 2))
    for i in range(2, 9):
        k(pk("add", s, s, X + 2 * i))
    k("s_nop 0")
    wave_sum2(k, s, s + 1, t2, t2 + 1)
    k(f"""v_mul_f32 v{m}, s44, v{s}
v_mul_f32 v{m+1}, s44, v{s+1}""")
    for i in range(9):
        k(pk("add", O + 2 * i, X + 2 * i, m, mods="neg_lo:[0,1] neg_hi:[0,1]"))
    k(pk("mul", s, O, O))
    for i in range(1, 9):
        k(pk("fma", s, O + 2 * i, O + 2 * i, s))
    k("s_nop 0")
    wave_sum2(k, s, s + 1, t2, t2 + 1)
    k(f"""v_mul_f32 v{s}, s44, v{s}
v_mul_f32 v{s+1}, s44, v{s+1}""")
    rnd_pair(k, m, m + 1, T, 40)
    rnd_pair(k, s, s + 1, T + 1, 40)
    k(f"""v_add_f32 v{s}, s45, v{s}
v_add_f32 v{s+1}, s45, v{s+1}""")
    rnd_pair(k, s, s + 1, T, 40)
    k(f"""v_sqrt_f32 v{s}, v{s}
v_sqrt_f32 v{s+1}, v{s+1}
s_nop 0""")
    rnd_pair(k, s, s + 1, T, 40)
    k(f"""v_rcp_f32 v{t2}, v{s}
v_rcp_f32 v{t2+1}, v{s+1}""")
    for i in range(9):
        k(pk("add", O + 2 * i, X + 2 * i, m, mods="neg_lo:[0,1] neg_hi:[0,1]"))
    rnd18(k, O, T)
    for i in range(9):
        a = T + 2 * (i & 1)
        k(pk("mul", a, O + 2 * i, t2))
        k(pk("fma", q, a, s, O + 2 * i, mods="neg_lo:[1,0,0] neg_hi:[1,0,0]"))
        k(pk("fma", O + 2 * i, q, t2, a))
    rnd18(k, O, T)


def gen_mega(exact=True):
    k = K("mega_kernel")
    k.kid = 0
    k.wsg = 18
    Lexit = k.label("exit")
    RING = 9
    NV = 56
    WRG = 192
    DUM = WRG + 4 * RING
    k.agpr = DUM + 4
    k.vgpr = 256
    k.sgpr = 70
    VX, VD, VB, VD2 = 4, 8, 12, 27
    P1, P2 = F * 2, D * 2

    def publish(off_sgpr_or_imm, rep=True):
        Lw = k.label("pubskip")
        k(f"""s_waitcnt vmcnt(0) lgkmcnt(0)
s_barrier
s_cmp_lg_u32 s18, 0
s_cbranch_scc1 {Lw}
s_mov_b64 exec, {(1 << NREP) - 1 if rep else 1}
v_mul_u32_u24 v2, {REPS}, v1
v_add_u32 v2, {off_sgpr_or_imm}, v2
v_mov_b32 v3, s3
global_store_dword v2, v3, s[12:13] sc1
s_mov_b64 exec, -1""")
        k.put(Lw)

    def wait_flags(base, nlanes, barrier=True, sleep=1, x4=True, rep=True):
        Lw = k.label("wskip")
        Lp = k.label("poll")
        Lq = k.label("pdone")
        k(f"""s_cmp_lg_u32 s18, 0
s_cbranch_scc1 {Lw}
v_min_u32 v2, {nlanes-1}, v1
v_lshlrev_b32 v2, {4 if x4 else 2}, v2
v_add_u32 v2, {base}, v2
s_and_b32 s36, s2, {NREP - 1}
s_mul_i32 s36, s36, {REPS if rep else 0}
v_add_u32 v2, s36, v2
s_mov_b32 s36, 0""")
        k.put(Lp)
        if x4:
            k(f"""global_load_dwordx4 v[28:31], v2, s[12:13] sc1
s_add_u32 s36, s36, 1
s_waitcnt vmcnt(0)
v_xor_b32 v28, s3, v28
v_xor_b32 v29, s3, v29
v_xor_b32 v30, s3, v30
v_xor_b32 v31, s3, v31
v_or3_b32 v28, v28, v29, v30
v_or_b32 v28, v28, v31
v_cmp_ne_u32 vcc, 0, v28""")
        else:
            k(f"""global_load_dword v28, v2, s[12:13] sc1
s_add_u32 s36, s36, 1
s_waitcnt vmcnt(0)
v_cmp_ne_u32 vcc, s3, v28""")
        k(f"""s_cmp_ge_u32 s36, {SPIN_MAX}
s_cbranch_scc1 {Lq}
s_cbranch_vccz {Lq}
s_sleep {sleep}
s_branch {Lp}""")
        k.put(Lq)
        k.put(Lw)
        if barrier:
            k("s_barrier")

    def code_touch(lo_wg, hi_wg):
        L = k.label("noct")
        k(f"""s_cmp_lt_u32 s2, {lo_wg}
s_cbranch_scc1 {L}
s_cmp_ge_u32 s2, {hi_wg}
s_cbranch_scc1 {L}
s_getpc_b64 s[36:37]
s_add_u32 s36, s36, code_begin@rel32@lo+4
s_addc_u32 s37, s37, code_begin@rel32@hi+12
v_lshlrev_b32 v2, 7, v0
v_min_u32 v3, code_end-code_begin-4, v2
v_add_u32 v2, 32768, v2
v_min_u32 v2, code_end-code_begin-4, v2
global_load_dword v254, v3, s[36:37]
global_load_dword v255, v2, s[36:37]""")
        k.put(L)

    def conv_hm_touch(which):
        k.srd_off(60, 10, 11, WS_HM, HM_BYTES)
        k(f"""s_lshr_b32 s36, s2, 3
s_lshl_b32 s36, s36, 2
s_add_u32 s36, s36, s18
s_lshl_b32 s36, s36, 1
s_sub_u32 s36, {575 - 144 * which}, s36
v_lshrrev_b32 v248, 5, v1
v_sub_u32 v248, s36, v248
v_mul_u32_u24 v249, 7282, v248
v_lshrrev_b32 v249, 16, v249
s_mov_b32 s36, {147456 - 9*4096}
v_mul_lo_u32 v249, v249, s36
v_lshl_add_u32 v249, v248, 12, v249
v_and_b32 v248, 31, v1
v_lshl_add_u32 v249, v248, 7, v249
s_bfe_u32 s36, s2, 0x10002
s_mul_i32 s36, s36, {64*147456}
s_and_b32 s37, s2, 3
s_mul_i32 s37, s37, 36864
s_add_u32 s36, s36, s37
buffer_load_dword v255, v249, s[60:63], s36 offen sc1""")

    def modflag_load():
        k(f"""v_min_u32 v2, 53, v1
v_lshlrev_b32 v2, 2, v2
s_and_b32 s36, s2, {NREP - 1}
s_mul_i32 s36, s36, {REPS}
s_add_u32 s36, s36, {F1 + 144 * 4}
v_add_u32 v2, s36, v2
global_load_dword v28, v2, s[12:13] sc1""")

    def modp_issue():
        k.srd_off(56, 10, 11, WS_MODP, 9216)
        k("""s_movk_i32 s36, 4096
s_movk_i32 s37, 8192
v_lshlrev_b32 v29, 4, v1""")
        for i in range(9):
            so = "0" if i < 4 else ("s36" if i < 8 else "s37")
            k(f"buffer_load_dwordx4 a[{4*i}:{4*i+3}], v29, s[56:59], {so} offen offset:{1024*(i%4)} sc1")
        k("s_mov_b32 s33, 1" if False else "s_mov_b32 s47, 1")

    def modp_blocking():
        Lp = k.label("mpoll")
        Lq = k.label("mdone")
        k("s_mov_b32 s38, 0")
        k.put(Lp)
        modflag_load()
        k(f"""s_add_u32 s38, s38, 1
s_waitcnt vmcnt(0)
v_cmp_ne_u32 vcc, s3, v28
s_cmp_ge_u32 s38, {SPIN_MAX}
s_cbranch_scc1 {Lq}
s_cbranch_vccz {Lq}
s_sleep 8
s_branch {Lp}""")
        k.put(Lq)
        modp_issue()

    k(f"""s_cmp_ge_u32 s2, 256
s_cbranch_scc1 {Lexit}""")
    k.stamp_init()
    Lp0mod = k.label("p0mod")
    Lp0idle = k.label("p0idle")
    Lp0done = k.label("p0done")
    Lnw0 = k.label("nonce_skip")
    k(f"""s_load_dwordx4 s[4:7], s[0:1], {ARG['k']}
s_load_dwordx2 s[8:9], s[0:1], {ARG['shift']}
s_load_dwordx4 s[48:51], s[0:1], {ARG['c']}
s_load_dwordx4 s[52:55], s[0:1], {ARG['dbg']}
s_load_dwordx2 s[64:65], s[0:1], {ARG['ssmk']}
s_load_dwordx2 s[66:67], s[0:1], {ARG['q']}
s_memrealtime s[56:57]
s_getreg_b32 s69, hwreg(HW_REG_XCC_ID, 0, 4)
s_mov_b32 s40, 0xffff0000
v_and_b32 v1, 63, v0
v_lshrrev_b32 v2, 6, v0
s_nop 0
v_readfirstlane_b32 s18, v2
v_and_b32 v4, 7, v0
v_lshrrev_b32 v5, 3, v0
s_waitcnt lgkmcnt(0)
s_mov_b32 s10, s54
s_mov_b32 s11, s55
s_add_u32 s12, s10, {WS_CNT}
s_addc_u32 s13, s11, 0
v_mov_b32 v252, 0
s_cmp_lg_u32 s18, 0
s_cbranch_scc1 {Lnw0}
s_cmp_lg_u32 s2, 255
s_cbranch_scc1 {Lnw0}
s_or_b32 s56, s56, 1
s_lshl_b32 s56, s56, 4
s_mov_b64 exec, 1
v_mov_b32 v250, s56
global_store_dword v252, v250, s[52:53] sc1
s_mov_b64 exec, -1""")
    k.put(Lnw0)
    if os.environ.get("ST0"):
        k.stamp(14)

    def nonce_resolve(preloaded=False):
        L = k.label("nres")
        Lp = k.label("npoll")
        Lq = k.label("ndone")
        k(f"""s_cmp_lg_u32 s18, 0
s_cbranch_scc1 {L}
s_mov_b32 s36, 0""")
        if not preloaded:
            k("global_load_dword v253, v252, s[52:53] sc1")
        k.put(Lp)
        k(f"""s_add_u32 s36, s36, 1
s_waitcnt vmcnt(0)
v_readfirstlane_b32 s3, v253
s_cmp_ge_u32 s36, {SPIN_MAX}
s_cbranch_scc1 {Lq}
s_cmp_lg_u32 s3, 0
s_cbranch_scc1 {Lq}
global_load_dword v253, v252, s[52:53] sc1
s_branch {Lp}""")
        k.put(Lq)
        k(f"""v_mov_b32 v250, s3
v_mov_b32 v251, {NONCE_LDS}
ds_write_b32 v251, v250
s_add_u32 s36, s69, 1
s_or_b32 s36, s36, s3
s_lshl_b32 s37, s2, 2
s_add_u32 s37, s37, {FREG}
s_mov_b64 exec, 1
v_mov_b32 v250, s36
v_mov_b32 v251, s37
global_store_dword v251, v250, s[12:13] sc1
s_mov_b64 exec, -1""")
        k.put(L)

    X = 200
    O = 218

    def x_loads():
        k.srd(56, 66, 67, SD2)
        for i in range(18):
            k(f"v_mov_b32 v{X+i}, 0")
        for r in range(2):
            for i in range(9):
                k(f"buffer_load_short_d16_hi v{X+2*i+r}, v236, s[56:59], s68 offen offset:{1152*r + 128*i}")

    def late_kernargs():
        k(f"""s_load_dwordx4 s[4:7], s[0:1], {ARG['ssmk']}
s_load_dwordx4 s[48:51], s[0:1], {ARG['wg']}
s_load_dwordx2 s[8:9], s[0:1], {ARG['wd']}
s_mov_b32 s44, 0x3ae38e39
s_mov_b32 s45, 0x3727c5ac""")

    Lp1done = k.label("p1done")
    k(f"""s_lshl_b32 s68, s2, 3
s_lshl_b32 s37, s18, 1
s_add_u32 s68, s68, s37
s_mul_i32 s68, s68, 1152
v_lshlrev_b32 v236, 1, v1""")
    k(f"""s_and_b32 s36, s18, 1
s_cmp_eq_u32 s36, 0
s_cselect_b32 s38, s4, s6
s_cselect_b32 s39, s5, s7""")
    k.srd(20, 38, 39, SD2)
    k(f"""s_lshr_b32 s36, s2, 3
s_lshl_b32 s36, s36, 1
s_lshr_b32 s37, s18, 1
s_add_u32 s36, s36, s37
s_mul_i32 s36, s36, {32*1152}
s_and_b32 s37, s2, 7
s_lshl_b32 s37, s37, 7
s_add_u32 s36, s36, s37
v_lshrrev_b32 v3, 1, v1
v_mul_u32_u24 v3, 1152, v3
v_and_b32 v6, 1, v1
v_lshl_add_u32 v3, v6, 7, v3
buffer_load_dword v254, v3, s[20:23], s36 offen
s_mov_b32 s44, 0x3ae38e39
s_mov_b32 s45, 0x3727c5ac
s_cmp_ge_u32 s2, 198
s_cbranch_scc1 {Lp0idle}
s_cmp_ge_u32 s2, 144
s_cbranch_scc1 {Lp0mod}""")
    k.srd(20, 4, 5, SD2)
    k.srd(24, 6, 7, SD2)
    k.srd(28, 8, 9, D * 8)
    k(f"""s_and_b32 s16, s2, 7
s_mul_i32 s16, s16, 72
s_lshr_b32 s36, s2, 3
s_lshl_b32 s36, s36, 2
s_add_u32 s16, s16, s36
s_add_u32 s15, s16, s18
s_mul_i32 s14, s18, {4*SU}
s_mul_i32 s17, s18, {2*SK}
s_add_u32 s17, s17, {KAREA}
s_mul_i32 s36, s18, {128*1152}
s_lshl_b32 s37, s16, 1
s_and_b32 s43, s37, 8
s_andn2_b32 s37, s37, 15
s_add_u32 s36, s36, s37
v_mul_u32_u24 v3, 1152, v1
v_add_u32 v3, s36, v3
s_lshl_b32 s41, s18, 11
s_lshl_b32 s36, s16, 3
v_mov_b32 v4, s36""")
    WR = 52
    for i in range(2):
        k(f"buffer_load_dwordx4 v[{WR+4*i}:{WR+4*i+3}], v4, s[28:31], 0 offen offset:{16*i}")

    k("s_waitcnt vmcnt(2)")

    def stage_dma(tensor, c):
        srd = 20 if tensor == "k" else 24
        for n in range(2):
            dst = (KS + 8192 * c if tensor == "k" else VS + 8192 * (c & 1)) + 1024 * n
            k(f"""s_add_u32 m0, s41, {dst}
s_mov_b32 s36, {(512 * c + 64 * n) * 1152}
buffer_load_dwordx4 v3, s[{srd}:{srd+3}], s36 offen lds""")
    for tensor, c in (("k", 0), ("v", 0), ("k", 1), ("v", 1), ("k", 2)):
        stage_dma(tensor, c)
    k(f"""v_mov_b32 v244, 0
v_mov_b32 v245, 0
v_mov_b32 v246, 0
v_mov_b32 v247, 0
v_bfe_u32 v240, v1, 2, 2
v_and_b32 v241, 3, v1
v_mul_u32_u24 v240, {SU}, v240
v_lshl_add_u32 v240, v241, 4, v240
v_add_u32 v240, s14, v240
ds_write_b128 v240, v[244:247] offset:4096
v_lshrrev_b32 v240, 5, v1
v_mul_u32_u24 v240, {SK}, v240
v_and_b32 v242, 31, v1
v_lshl_add_u32 v240, v242, 4, v240
v_add_u32 v240, s17, v240
ds_write_b128 v240, v[244:247]
v_lshlrev_b32 v240, 4, v241
v_add_u32 v240, {KS - 64}, v240
ds_write_b128 v240, v[244:247]
v_lshlrev_b32 v5, 5, v0
v_add_u32 v5, s43, v5
v_add_u32 v6, {VS}, v5
v_add_u32 v5, {KS - 48}, v5
v_lshlrev_b32 v7, 2, v0
v_sub_u32 v7, 4102, v7
s_lshl_b32 s36, s15, 12
v_lshlrev_b32 v11, 4, v1""")
    k.srd_off(60, 64, 65, "s36", 4096)
    WF = 60
    KR = 16
    VR = 26
    KF = 76
    U = 96
    P = 104
    k("s_waitcnt vmcnt(10)")
    for j in range(4):
        k(f"""v_lshlrev_b32 v{WF+0*4+j}, 16, v{WR+2*j}
v_and_b32 v{WF+1*4+j}, s40, v{WR+2*j}
v_lshlrev_b32 v{WF+2*4+j}, 16, v{WR+2*j+1}
v_and_b32 v{WF+3*4+j}, s40, v{WR+2*j+1}""")
    Lch = k.label("chunk")
    Lw2 = k.label("chw2")
    Lw3 = k.label("chw3")
    Lwd = k.label("chwd")
    Li1 = k.label("chi1")
    Lid = k.label("chid")
    NEX = 8 + 18 + 1
    k("s_mov_b32 s42, 0\ns_movk_i32 s43, 8192")
    k.put(Lch)
    k(f"""s_cmp_eq_u32 s42, 2
s_cbranch_scc1 {Lw2}
s_cmp_eq_u32 s42, 3
s_cbranch_scc1 {Lw3}
s_waitcnt vmcnt(6)
s_branch {Lwd}""")
    k.put(Lw2)
    k(f"""s_waitcnt vmcnt({4 + NEX})
s_branch {Lwd}""")
    k.put(Lw3)
    k(f"s_waitcnt vmcnt({NEX})")
    k.put(Lwd)
    k("""s_waitcnt lgkmcnt(0)
s_barrier""")
    for r in range(5):
        k(f"ds_read_b64 v[{KR+2*r}:{KR+2*r+1}], v5 offset:{16*r}")
    for r in range(2):
        k(f"ds_read_b64 v[{VR+2*r}:{VR+2*r+1}], v6 offset:{16*r}")
    k(f"""v_add_u32 v5, 8192, v5
v_add_u32 v6, s43, v6
s_sub_u32 s43, 0, s43""")
    for r in range(5):
        k(f"s_waitcnt lgkmcnt({6 - r})")
        for q in range(2):
            k(f"""v_lshlrev_b32 v{KF+4*r+2*q}, 16, v{KR+2*r+q}
v_and_b32 v{KF+4*r+2*q+1}, s40, v{KR+2*r+q}""")
    k(f"""s_waitcnt lgkmcnt(0)
s_barrier
s_cmp_eq_u32 s42, 1
s_cbranch_scc1 {Li1}
s_cmp_lg_u32 s42, 0
s_cbranch_scc1 {Lid}""")
    stage_dma("v", 2)
    stage_dma("k", 3)
    k(f"s_branch {Lid}")
    k.put(Li1)
    stage_dma("v", 3)
    for dst in (456, SK + 448):
        k(f"s_add_u32 m0, s17, {dst}")
        k("s_nop 0")
        for i in range(4):
            k(f"buffer_load_dwordx4 v11, s[60:63], 0 offen offset:{1024*i} lds")
    x_loads()
    k("global_load_dword v253, v252, s[52:53] sc1")
    k.put(Lid)
    for o in range(2):
        for q in range(2):
            for t in range(4):
                k(f"v_pk_mul_f32 v[{P+2*t}:{P+2*t+1}], v[{KF+4*(o+t)+2*q}:{KF+4*(o+t)+2*q+1}], v[{WF+4*(3-t)+2*q}:{WF+4*(3-t)+2*q+1}]")
            k(f"""v_lshlrev_b32 v{P+12}, 16, v{VR+2*o+q}
v_and_b32 v{P+13}, s40, v{VR+2*o+q}""")
            for t in range(4):
                rnd_pair(k, P + 2 * t, P + 2 * t + 1, P + 8 + t, 40)
            for t in range(1, 4):
                k(f"v_pk_add_f32 v[{P}:{P+1}], v[{P}:{P+1}], v[{P+2*t}:{P+2*t+1}]")
                rnd_pair(k, P, P + 1, P + 8, 40)
            k(f"v_pk_mul_f32 v[{U+4*o+2*q}:{U+4*o+2*q+1}], v[{P}:{P+1}], v[{P+12}:{P+13}]")
    for j in range(4):
        b = j * 4 * SU
        k(f"""v_cvt_pk_bf16_f32 v{P+j}, v{U+4+j}, v{U+j}
ds_write_b32 v7, v{P+j} offset:{b + SU + 2}
ds_write_b32 v7, v{P+j} offset:{b + 3*SU + 6}
ds_write_b16 v7, v{P+j} offset:{b}
ds_write_b16_d16_hi v7, v{P+j} offset:{b + 2}
ds_write_b16 v7, v{P+j} offset:{b + 2*SU + 4}
ds_write_b16_d16_hi v7, v{P+j} offset:{b + 2*SU + 6}""")
    k(f"""v_add_u32 v7, {(-1024) & 0xffffffff:#x}, v7
s_add_u32 s42, s42, 1
s_cmp_lt_u32 s42, 4
s_cbranch_scc1 {Lch}""")
    k.stamp(6)
    late_kernargs()
    nonce_resolve(preloaded=True)
    k.srd_off(32, 10, 11, WS_Y2T, SD2)
    k(f"""v_and_b32 v17, 15, v1
v_lshrrev_b32 v18, 4, v1
v_lshrrev_b32 v19, 2, v17
v_and_b32 v8, 3, v1
v_mul_u32_u24 v12, {SU}, v8
v_sub_u32 v13, v18, v19
v_lshl_add_u32 v12, v13, 4, v12
v_add_u32 v12, 48, v12
v_add_u32 v12, s14, v12
v_and_b32 v13, 1, v1
v_mul_u32_u24 v13, {SK}, v13
v_lshrrev_b32 v14, 1, v17
v_lshl_add_u32 v13, v14, 6, v13
v_lshl_add_u32 v13, v18, 4, v13
v_add_u32 v13, s17, v13
v_and_b32 v15, 1, v1
v_lshlrev_b32 v15, 3, v15
v_lshl_add_u32 v16, v14, 6, v15
v_lshl_add_u32 v16, v18, 4, v16
v_sub_u32 v16, {3*SU + 4104 - 3584}, v16
v_add_u32 v16, s14, v16
v_lshrrev_b32 v9, 1, v18
v_lshl_add_u32 v14, v14, 1, v9
v_lshl_add_u32 v15, v14, 7, v15
v_and_b32 v9, 1, v18
v_lshl_add_u32 v15, v9, 4, v15
s_lshl_b32 s36, s18, 5
s_add_u32 s36, s36, {YT_LDS}
v_add_u32 v15, s36, v15""")
    CACC = 32
    FR = 64
    for i in range(32):
        k(f"v_mov_b32 v{CACC+i}, 0")
    k(f"""s_lshl_b32 s37, s15, 1
s_and_b32 s39, s37, 0xfffffffc""")
    modflag_load()
    k(f"""s_waitcnt vmcnt(0) lgkmcnt(0)
s_barrier
s_load_dword s41, s[6:7], s39
v_mov_b32 v250, {NONCE_LDS}
ds_read_b32 v250, v250
s_mov_b32 s47, 0""")

    def creads(r):
        st = r & 1
        out = []
        for n in range(8):
            out.append(f"ds_read_b128 v[{FR+64*st+4*n}:{FR+64*st+4*n+3}], v12 offset:{3648 - 48 + 64*r - 512*n}")
            out.append(f"ds_read_b128 v[{FR+64*st+32+4*n}:{FR+64*st+32+4*n+3}], v13 offset:{64*r + 512*n}")
        return out
    k.stamp(7)
    for ln in creads(0):
        k(ln)
    Lnm = k.label("nomodp")
    k(f"""s_waitcnt lgkmcnt(0)
v_cmp_ne_u32 vcc, v250, v28
s_nop 4
s_cbranch_vccnz {Lnm}""")
    modp_issue()
    k.put(Lnm)
    Lc = k.label("cloop")
    k("s_mov_b32 s37, 0")
    k.put(Lc)
    for rr in range(2):
        st = rr
        nxt = creads(rr + 1)
        k("s_waitcnt lgkmcnt(0)")
        i = 0
        for w in range(8):
            for q in range(8 - w):
                t = q + w
                k(f"v_mfma_f32_16x16x32_bf16 v[{CACC+4*t}:{CACC+4*t+3}], v[{FR+64*st+4*w}:{FR+64*st+4*w+3}], v[{FR+64*st+32+4*q}:{FR+64*st+32+4*q+3}], v[{CACC+4*t}:{CACC+4*t+3}]")
                if i < len(nxt):
                    k(nxt[i])
                i += 1
    k(f"""v_add_u32 v12, 128, v12
v_add_u32 v13, 128, v13
s_add_u32 s37, s37, 1
s_cmp_lt_u32 s37, 4
s_cbranch_scc1 {Lc}
s_waitcnt lgkmcnt(0)""")
    k.stamp(8)
    UV = FR
    for t in range(8):
        k(f"ds_read_b64 v[{UV+2*t}:{UV+2*t+1}], v16 offset:{512*(7-t)}")
    k(f"""s_and_b32 s42, s15, 1
s_lshl_b32 s43, s41, 16
s_and_b32 s41, s41, s40
s_cmp_eq_u32 s42, 0
s_cselect_b32 s41, s43, s41
s_waitcnt lgkmcnt(0)""")
    T = FR + 32
    for t in range(8):
        a = CACC + 4 * t
        u0, u1 = UV + 2 * t, UV + 2 * t + 1
        b = T + 8 * (t & 1)
        k(f"""v_and_b32 v{b}, s40, v{u1}
v_lshlrev_b32 v{b+1}, 16, v{u1}
v_and_b32 v{b+2}, s40, v{u0}
v_lshlrev_b32 v{b+3}, 16, v{u0}
v_pk_mul_f32 v[{b}:{b+1}], v[{b}:{b+1}], s[42:43] op_sel_hi:[1,0]
v_pk_mul_f32 v[{b+2}:{b+3}], v[{b+2}:{b+3}], s[42:43] op_sel_hi:[1,0]""" if False else f"""v_and_b32 v{b}, s40, v{u1}
v_lshlrev_b32 v{b+1}, 16, v{u1}
v_and_b32 v{b+2}, s40, v{u0}
v_lshlrev_b32 v{b+3}, 16, v{u0}
v_mul_f32 v{b}, s41, v{b}
v_mul_f32 v{b+1}, s41, v{b+1}
v_mul_f32 v{b+2}, s41, v{b+2}
v_mul_f32 v{b+3}, s41, v{b+3}""")
        rnd_pair(k, b, b + 1, b + 4, 40)
        rnd_pair(k, b + 2, b + 3, b + 5, 40)
        rnd_pair(k, a, a + 1, b + 4, 40)
        rnd_pair(k, a + 2, a + 3, b + 5, 40)
        k(f"""v_pk_add_f32 v[{b}:{b+1}], v[{b}:{b+1}], v[{a}:{a+1}]
v_pk_add_f32 v[{b+2}:{b+3}], v[{b+2}:{b+3}], v[{a+2}:{a+3}]
v_cvt_pk_bf16_f32 v{b+6}, v{b}, v{b+1}
v_cvt_pk_bf16_f32 v{b+7}, v{b+2}, v{b+3}
ds_write_b64 v15, v[{b+6}:{b+7}] offset:{2048*t}""")
    k(f"""v_lshlrev_b32 v4, 4, v0
v_add_u32 v4, {YT_LDS}, v4
v_lshrrev_b32 v5, 3, v0
v_mul_u32_u24 v5, 18432, v5
v_and_b32 v6, 7, v0
v_lshl_add_u32 v5, v6, 4, v5
s_lshl_b32 s36, s16, 5
v_readfirstlane_b32 s3, v250
s_waitcnt lgkmcnt(0)
s_barrier""")
    for it in range(4):
        k(f"ds_read_b128 v[{32+4*it}:{35+4*it}], v4 offset:{4096*it}")
    for it in range(4):
        k(f"""s_waitcnt lgkmcnt({3-it})
buffer_store_dwordx4 v[{32+4*it}:{35+4*it}], v5, s[32:35], s36 offen sc1
s_add_u32 s36, s36, {32*18432}""")
    k(f"""s_lshl_b32 s37, s2, 2
s_add_u32 s37, s37, {F1}""")
    publish("s37")
    layernorm2(k, X, O, 240, 244)
    k(f"s_branch {Lp1done}")
    k.put(Lp0mod)
    k("s_sub_u32 s16, s2, 144")
    k.srd(20, 48, 49, D * 2)
    k.srd(24, 50, 51, D * 6 * D * 2)
    k.srd_off(28, 10, 11, WS_MODP, 0x8000)
    WL = 32
    CL = 8
    k(f"""s_movk_i32 s37, 6912
v_mul_lo_u32 v3, v5, s37
s_lshl_b32 s36, s16, 7
v_lshl_add_u32 v6, v4, 4, s36
v_add_u32 v3, v3, v6
v_lshlrev_b32 v6, 1, v5""")
    for i in range(18):
        k(f"v_mov_b32 v{CL+i}, 0")
    for i in range(18):
        k(f"buffer_load_short_d16_hi v{CL+i}, v6, s[20:23], 0 offen offset:{64*i}")
    k("s_mov_b32 s36, 0")
    for i in range(18):
        k(f"buffer_load_dwordx4 v[{WL+4*i}:{WL+4*i+3}], v3, s[24:27], s36 offen")
        if i < 17:
            k(f"s_add_u32 s36, s36, {32*6912}")
    k("s_mov_b32 s37, 0xbfb8aa3b")
    k("s_waitcnt vmcnt(18)")
    for i in range(18):
        k(f"v_mul_f32 v{104+i}, s37, v{CL+i}")
    for i in range(18):
        k(f"v_exp_f32 v{104+i}, v{104+i}")
    for i in range(18):
        k(f"v_add_f32 v{104+i}, 1.0, v{104+i}")
    for i in range(18):
        k(f"v_rcp_f32 v{104+i}, v{104+i}")
    k("s_nop 0")
    for i in range(18):
        k(f"v_mul_f32 v{CL+i}, v{CL+i}, v{104+i}")
    for i in range(0, 18, 2):
        rnd_pair(k, CL + i, CL + i + 1, 104 + i, 40)
    ACC = 124
    for j in range(8):
        k(f"v_mov_b32 v{ACC+j}, 0")
    for i in range(18):
        k(f"s_waitcnt vmcnt({17-i})")
        for q in range(4):
            k(f"""v_lshlrev_b32 v{104+2*q}, 16, v{WL+4*i+q}
v_and_b32 v{104+2*q+1}, s40, v{WL+4*i+q}""")
        for j in range(8):
            k(f"v_fmac_f32 v{ACC+j}, v{CL+i}, v{104+j}")
    x_loads()
    nonce_resolve()
    Lm1 = k.label("mod_w0")
    k(f"""v_lshlrev_b32 v6, 8, v5
v_lshl_add_u32 v6, v4, 5, v6
ds_write_b128 v6, v[{ACC}:{ACC+3}]
ds_write_b128 v6, v[{ACC+4}:{ACC+7}] offset:16
v_lshlrev_b32 v7, 2, v0
s_waitcnt lgkmcnt(0)
s_barrier
v_mov_b32 v250, {NONCE_LDS}
ds_read_b32 v250, v250
s_waitcnt lgkmcnt(0)
v_readfirstlane_b32 s3, v250
s_cmp_lg_u32 s18, 0
s_cbranch_scc1 {Lp0done}""")
    for i in range(32):
        k(f"ds_read_b32 v{32+i}, v7 offset:{256*i}")
    k("s_waitcnt lgkmcnt(0)")
    for st in (16, 8, 4, 2, 1):
        for i in range(st):
            k(f"v_add_f32 v{32+i}, v{32+i}, v{32+i+st}")
    k(f"""s_mul_i32 s17, s16, 7282
s_lshr_b32 s17, s17, 16
s_mul_i32 s36, s17, 9
s_sub_u32 s36, s16, s36
v_cvt_pk_bf16_f32 v33, v32, v32
v_and_b32 v32, s40, v33
v_add_f32 v34, 1.0, v32
v_cvt_pk_bf16_f32 v34, v34, v34
s_cmp_eq_u32 s17, 1
s_cselect_b32 s37, 1, 0
s_cmp_eq_u32 s17, 4
s_cselect_b32 s37, 1, s37
s_cmp_eq_u32 s37, 1
s_cselect_b64 vcc, -1, 0
s_lshl_b32 s36, s36, 6
v_add_u32 v8, s36, v0
v_cndmask_b32 v33, v33, v34, vcc
v_lshlrev_b32 v9, 4, v8
s_lshl_b32 s37, s17, 1
buffer_store_short v33, v9, s[28:31], s37 offen sc1
s_cmp_lg_u32 s17, 5
s_cbranch_scc1 {Lp0done}
v_lshlrev_b32 v9, 2, v8
s_movk_i32 s37, 0x4000
buffer_store_dword v32, v9, s[28:31], s37 offen sc1
s_branch {Lp0done}""")

    k.put(Lp0idle)
    k(f"""s_getpc_b64 s[4:5]
s_add_u32 s4, s4, code_begin@rel32@lo+4
s_addc_u32 s5, s5, code_begin@rel32@hi+12
s_getpc_b64 s[6:7]
s_add_u32 s6, s6, desc_begin@rel32@lo+4
s_addc_u32 s7, s7, desc_begin@rel32@hi+12
v_lshlrev_b32 v6, 7, v0
v_min_u32 v7, code_end-code_begin-4, v6
v_add_u32 v8, 32768, v6
v_min_u32 v8, code_end-code_begin-4, v8
v_lshlrev_b32 v9, 6, v4
v_min_u32 v9, desc_end-desc_begin-4, v9
global_load_dword v10, v7, s[4:5]
global_load_dword v11, v8, s[4:5]
global_load_dword v12, v9, s[6:7]""")
    x_loads()
    nonce_resolve()
    k(f"""s_waitcnt lgkmcnt(0)
s_barrier
v_mov_b32 v250, {NONCE_LDS}
ds_read_b32 v250, v250
s_waitcnt lgkmcnt(0)
v_readfirstlane_b32 s3, v250""")
    k.put(Lp0done)
    k.stamp(3)
    late_kernargs()
    k(f"""s_lshl_b32 s37, s2, 2
s_add_u32 s37, s37, {F1}""")
    publish("s37")
    code_touch(198, 206)
    layernorm2(k, X, O, 240, 244)
    k.srd(20, 48, 49, D * F * 2)
    k.srd(24, 50, 51, D * F * 2)
    k(f"""s_sub_u32 s42, s2, 144
s_lshl_b32 s42, s42, 2
s_add_u32 s42, s42, s18
s_lshl_b32 s42, s42, 13
s_add_u32 s39, s42, {448*8192}
v_lshlrev_b32 v4, 7, v1
buffer_load_dword v254, v4, s[20:23], s42 offen
buffer_load_dword v255, v4, s[20:23], s39 offen""")
    modp_blocking()
    k.srd_off(32, 10, 11, WS_HM, HM_BYTES)
    k(f"""buffer_load_dword v254, v4, s[24:27], s42 offen
buffer_load_dword v255, v4, s[24:27], s39 offen""")
    k(f"""s_sub_u32 s36, s2, 144
s_lshr_b32 s36, s36, 3
s_lshl_b32 s36, s36, 2
s_add_u32 s36, s36, s18
s_lshl_b32 s36, s36, 1
v_lshrrev_b32 v5, 5, v1
v_add_u32 v5, s36, v5
v_and_b32 v6, 31, v1
v_lshlrev_b32 v6, 7, v6
s_bfe_u32 s36, s2, 0x10002
s_mul_i32 s36, s36, {64*147456}
s_and_b32 s37, s2, 3
s_mul_i32 s37, s37, 36864
s_add_u32 s36, s36, s37
v_add_u32 v6, s36, v6
s_movk_i32 s37, 7282
s_mov_b32 s41, {147456 - 9*4096}""")
    for it in range(NHMT):
        k(f"""v_min_u32 v7, 575, v5
v_mul_lo_u32 v8, v7, s37
v_lshrrev_b32 v8, 16, v8
v_mul_lo_u32 v8, v8, s41
v_lshl_add_u32 v8, v7, 12, v8
v_add_u32 v8, v8, v6
v_add_u32 v5, 112, v5
s_waitcnt vmcnt({PFD - 1})
buffer_load_dword v254, v8, s[32:35], 0 offen sc1""")
    k.put(Lp1done)
    k.stamp(9)

    k(f"""s_waitcnt lgkmcnt(0)
s_mov_b32 s4, s48
s_mov_b32 s5, s49
s_mov_b32 s6, s50
s_mov_b32 s7, s51
s_and_b32 s16, s2, 7
s_lshr_b32 s17, s2, 3
s_lshr_b32 s19, s18, 1
s_and_b32 s20, s18, 1
s_and_b32 s53, s17, 3
s_and_b32 s62, s16, 3
s_lshr_b32 s37, s16, 2
s_lshl_b32 s52, s62, 1
s_bfe_u32 s36, s17, 0x10002
s_add_u32 s52, s52, s36
s_lshl_b32 s22, s37, 2
s_lshr_b32 s36, s17, 3
s_add_u32 s22, s22, s36
s_lshl_b32 s23, s22, 4
s_lshl_b32 s36, s18, 2
s_add_u32 s23, s23, s36
s_lshl_b32 s63, s37, 3
s_lshr_b32 s36, s17, 2
s_add_u32 s63, s63, s36
s_lshl_b32 s64, s63, 3
s_lshl_b32 s37, s18, 1
s_add_u32 s64, s64, s37
s_mul_i32 s36, s23, 18432""")
    Y = 50
    T = 86
    R = 90
    MP = 100
    k(f"v_lshl_add_u32 v{VX}, v1, 4, s36")
    for st in range(1, 4):
        k(f"v_add_u32 v{VX+st}, 18432, v{VX+st-1}")

    def dma_voffs(vd, pitch):
        k(f"""s_mul_i32 s37, s20, {32*pitch}
s_add_u32 s38, s38, s37
s_lshl_b32 s37, s53, 8
s_add_u32 s39, s38, s37
s_lshl_b32 s37, s53, 5
s_add_u32 s41, s38, s37
s_add_u32 s41, s41, 1024
s_movk_i32 s37, {pitch}
v_lshrrev_b32 v22, 4, v1
v_and_b32 v23, 15, v1
v_mul_lo_u32 v24, v22, s37
v_add_u32 v24, s39, v24
v_lshlrev_b32 v25, 1, v22
v_xor_b32 v25, v23, v25
v_lshl_add_u32 v{vd}, v25, 4, v24
v_xor_b32 v25, 8, v25
v_lshl_add_u32 v{vd+1}, v25, 4, v24
v_add_u32 v{vd+1}, {4*pitch}, v{vd+1}
v_lshrrev_b32 v22, 1, v1
v_mul_lo_u32 v24, v22, s37
v_and_b32 v23, 1, v1
v_lshl_add_u32 v24, v23, 4, v24
v_add_u32 v{vd+2}, s41, v24""")
    VD2 = 25
    k("s_mul_i32 s38, s52, 1152")
    dma_voffs(VD, P1)
    k(f"""s_mul_i32 s42, s19, 18432
s_lshl_b32 s36, s20, 10
s_add_u32 s43, s42, s36
s_add_u32 s43, s43, 16384
s_lshl_b32 s36, s20, 13
s_add_u32 s42, s42, s36
v_lshrrev_b32 v22, 2, v1
v_and_b32 v23, 3, v1
v_lshlrev_b32 v23, 3, v23
v_lshl_add_u32 v24, v22, 8, v23
v_and_b32 v25, 7, v22""")
    for t in range(8):
        k(f"""v_xor_b32 v26, {t}, v25
v_lshl_add_u32 v{VB+t}, v26, 5, v24""")
    k(f"""v_lshl_add_u32 v{VB+8}, v22, 5, v23
v_add_u32 v{VB+8}, 16384, v{VB+8}
s_mov_b32 s54, 0
s_mov_b32 s55, 0
s_mov_b32 s46, 0
s_mov_b32 s65, {8*P1}
s_mov_b32 s66, {64*P1}
s_cmp_eq_u32 s19, 0
s_cselect_b32 s14, s4, s6
s_cselect_b32 s15, s5, s7""")
    k.srd(24, 14, 15, D * F * 2)

    def dma_list():
        out = []
        for n in range(8):
            pre = "s_add_u32 s60, s55, s42\ns_mov_b32 s61, s54\n" if n == 0 else ""
            post = "\ns_add_u32 s61, s61, s65" if (n & 1) and n < 7 else ""
            out.append(f"""{pre}s_add_u32 m0, s60, {1024*n}
s_nop 0
buffer_load_dwordx4 v{VD+(n&1)}, s[24:27], s61 offen lds{post}""")
        out.append(f"""s_add_u32 m0, s55, s43
s_nop 0
buffer_load_dwordx4 v{VD+2 if not os.environ.get("XNOB") else VD}, s[24:27], s54 offen lds
s_add_u32 s54, s54, s66
s_add_u32 s55, s55, {STG}
s_cmp_ge_u32 s55, {STG*NBUF}
s_cselect_b32 s55, 0, s55""")
        return out
    k.srd_off(28, 10, 11, WS_Y2T, SD2)
    BC = "op_sel_hi:[1,0]"
    Lhm = k.label("havemodp")
    Lwm = k.label("waitmodp")
    k(f"""s_cmp_eq_u32 s47, 1
s_cbranch_scc1 {Lhm}""")
    modp_blocking()
    k.put(Lhm)
    k(f"""s_lshr_b32 s38, s2, 1
s_mul_i32 s38, s38, 18432
s_and_b32 s36, s2, 1
s_lshl_b32 s36, s36, 4
s_add_u32 s38, s38, s36
s_lshl_b32 s36, s18, 12
s_add_u32 s38, s38, s36
s_add_u32 s39, s38, 2048
v_lshlrev_b32 v141, 5, v1
v_lshlrev_b32 v142, 4, v1
s_lshl_b32 s36, s18, 2
s_add_u32 s36, s36, {ROW_LDS}
v_add_u32 v142, s36, v142
v_lshrrev_b32 v143, 5, v1
v_lshlrev_b32 v143, 9, v143
v_bfe_u32 v144, v1, 2, 2
v_lshl_add_u32 v143, v144, 7, v143
v_bfe_u32 v144, v1, 4, 1
v_lshl_add_u32 v143, v144, 3, v143
v_and_b32 v144, 3, v1
v_lshl_add_u32 v143, v144, 1, v143
s_lshl_b32 s36, s18, 5
s_add_u32 s36, s36, {ROW_LDS + 9216}
v_add_u32 v143, s36, v143
s_cmp_ge_u32 s2, 144
s_cbranch_scc1 {Lwm}
s_waitcnt vmcnt(0)""")
    k.put(Lwm)
    k(f"s_waitcnt vmcnt({2 + NHMT + 0})")
    for i in range(9):
        for d in range(3):
            k(f"v_accvgpr_read_b32 v{MP+4*i+d}, a{4*i+d}")
    for i in range(9):
        k(f"v_and_b32 v{T+2*(i&1)}, s40, v{MP+4*i}")
        k(pk("mul", O + 2 * i, O + 2 * i, T + 2 * (i & 1), mods=BC))
    rnd18(k, O, T)
    for i in range(9):
        k(f"v_lshlrev_b32 v{T+2*(i&1)}, 16, v{MP+4*i}")
        k(pk("add", O + 2 * i, O + 2 * i, T + 2 * (i & 1), mods=BC))
    rnd18(k, O, T)
    k.stamp(10)
    if CT2:
        code_touch(248, 256)
    wait_flags(str(F1), 36, sleep=SL1)
    k.stamp(11)
    Lno9 = k.label("no9")
    k(f"""s_lshl_b32 s37, s18, 11
s_add_u32 m0, s37, {ROW_LDS}
s_nop 0
buffer_load_dwordx4 v141, s[28:31], s38 offen sc1 lds
s_add_u32 m0, s37, {ROW_LDS + 1024}
s_nop 0
buffer_load_dwordx4 v141, s[28:31], s39 offen sc1 lds
s_cmp_lg_u32 s18, 0
s_cbranch_scc1 {Lno9}
s_add_u32 s38, s38, 16384
s_mov_b32 m0, {ROW_LDS + 8192}
s_nop 0
buffer_load_dwordx4 v141, s[28:31], s38 offen sc1 lds""")
    k.put(Lno9)
    k.srd_off(28, 10, 11, WS_X1, SD2)
    k.srd_off(32, 10, 11, WS_H2, SD2)
    ring0 = dma_list() + dma_list()

    def ring_some(n):
        for _ in range(n):
            if ring0:
                k(ring0.pop(0))
    k("""s_waitcnt vmcnt(0)
s_barrier""")
    for i in range(9):
        k(f"ds_read_b32 v{Y+i}, v142 offset:{1024*i}")
    for i in range(9):
        a = T + 2 * (i & 1)
        k(f"""s_waitcnt lgkmcnt({8-i})
v_lshlrev_b32 v{a}, 16, v{Y+i}
v_and_b32 v{a+1}, s40, v{Y+i}""")
        k(pk("mul", O + 2 * i, O + 2 * i, a))
    if os.environ.get("ST2"):
        k.stamp(13)
    rnd18(k, O, T)
    ring_some(5)
    for i in range(9):
        k(f"v_lshlrev_b32 v{T+2*(i&1)}, 16, v{MP+4*i+1}")
        k(pk("mul", O + 2 * i, O + 2 * i, T + 2 * (i & 1), mods=BC))
    rnd18(k, O, T)
    ring_some(4)
    for i in range(9):
        k(pk("add", X + 2 * i, X + 2 * i, O + 2 * i))
    rnd18(k, X, T)
    ring_some(5)
    layernorm2(k, X, O, T, R)
    ring_some(4)
    for i in range(9):
        k(f"v_lshlrev_b32 v{T+2*(i&1)}, 16, v{MP+4*i+2}")
        k(pk("mul", O + 2 * i, O + 2 * i, T + 2 * (i & 1), mods=BC))
    rnd18(k, O, T)
    for i in range(9):
        k(f"v_and_b32 v{T+2*(i&1)}, s40, v{MP+4*i+1}")
        k(pk("add", O + 2 * i, O + 2 * i, T + 2 * (i & 1), mods=BC))
        k(f"""v_cvt_pk_bf16_f32 v{O+2*i}, v{O+2*i}, v{O+2*i+1}
ds_write_b16 v143, v{O+2*i} offset:{1024*i}
ds_write_b16_d16_hi v143, v{O+2*i} offset:{1024*i+16}""")
    while ring0:
        k(ring0.pop(0))
    if os.environ.get("ST2"):
        k.stamp(14)
    Lno3 = k.label("no3rd")
    k(f"""v_lshlrev_b32 v142, 4, v0
v_add_u32 v142, {ROW_LDS + 9216}, v142
v_lshrrev_b32 v143, 3, v0
v_lshlrev_b32 v143, 8, v143
v_and_b32 v144, 7, v0
v_lshl_add_u32 v143, v144, 4, v143
s_lshr_b32 s36, s2, 1
s_mul_i32 s36, s36, 18432
s_and_b32 s37, s2, 1
s_lshl_b32 s37, s37, 7
s_add_u32 s36, s36, s37
s_add_u32 s37, s36, 8192
s_add_u32 s38, s36, 16384
s_waitcnt lgkmcnt(0)
s_barrier
ds_read_b128 v[32:35], v142
ds_read_b128 v[36:39], v142 offset:4096
s_cmp_lg_u32 s18, 0
s_cbranch_scc1 {Lno3}
ds_read_b128 v[40:43], v142 offset:8192
s_waitcnt lgkmcnt(0)
buffer_store_dwordx4 v[40:43], v143, s[32:35], s38 offen sc1""")
    k.put(Lno3)
    k(f"""s_waitcnt lgkmcnt(0)
buffer_store_dwordx4 v[32:35], v143, s[32:35], s36 offen sc1
buffer_store_dwordx4 v[36:39], v143, s[32:35], s37 offen sc1
s_lshl_b32 s37, s2, 2
s_add_u32 s37, s37, {F2}""")
    if os.environ.get("ST2"):
        k.stamp(15)
    publish("s37")
    k.stamp(12)
    for r in range(2):
        for i in range(9):
            k(f"buffer_store_short_d16_hi v{X+2*i+r}, v236, s[28:31], s68 offen offset:{1152*r + 128*i} sc1")

    VD2 = 25
    k(f"""s_mul_i32 s38, s62, 18
s_add_u32 s38, s38, s19
s_mul_i32 s38, s38, {64*P2}""")
    dma_voffs(32, P2)
    k(f"""v_mov_b32 v{VD2}, v32
v_mov_b32 v{VD2+1}, v33
v_mov_b32 v{VD2+2}, v34
s_mul_i32 s36, s52, 18
s_lshl_b32 s37, s53, 2
s_add_u32 s38, s36, s37
s_lshl_b32 s38, s38, 10
s_lshr_b32 s37, s53, 1
s_add_u32 s39, s36, s37
s_add_u32 s39, s39, 16
s_lshl_b32 s39, s39, 10
s_mul_i32 s36, s23, 147456
s_add_u32 s38, s38, s36
s_add_u32 s39, s39, s36
v_and_b32 v32, 15, v1
v_lshl_add_u32 v22, v32, 7, s38
v_add_u32 v23, 2048, v22
v_and_b32 v32, 3, v1
v_lshl_add_u32 v32, v32, 7, s39
v_add_u32 v33, 512, v32
v_lshrrev_b32 v24, 2, v1
v_cmp_eq_u32 vcc, 4, v24
s_mov_b32 s47, 0
s_nop 0
v_cndmask_b32 v22, v22, v32, vcc
v_cndmask_b32 v23, v23, v33, vcc
s_lshl_b32 s36, s17, 2
s_add_u32 s36, s36, s18
s_mul_i32 s36, s36, {11*128}
v_min_u32 v24, 10, v1
v_lshl_add_u32 v24, v24, 7, s36
s_mov_b32 s67, 0
s_mul_i32 s36, s62, {1152*P2}""")
    k.srd_off(56, 8, 9, "s36", 1152 * P2)
    k.srd_off(28, 10, 11, WS_H2, SD2)
    k.srd_off(32, 10, 11, WS_HM, HM_BYTES)

    def wfrag(slot, half=None):
        if half is None:
            return ar(WRG + 4 * slot, 4)
        return ar(WRG + 4 * slot + 2 * half, 2)

    class Ph:
        pass

    def make_phase(g1):
        p = Ph()
        p.g1 = g1
        p.NST = 4 if g1 else 2
        p.NACC = 72 if g1 else 18
        p.NXS = 4
        p.XR = 64 if g1 else 0
        p.NF = 36
        p.DAH = 4 if g1 else DAH2
        p.acc = lambda ti: vr(32 + 4 * ti, 4) if ti < NV else ar(4 * (ti - NV), 4)
        p.xfrag = lambda xs, n: ar(p.XR + 32 * xs + 4 * n, 4)
        return p

    def xload_list(p, xs):
        out = []
        for n in range(8):
            ks_, st = divmod(n, p.NST)
            out.append(f"buffer_load_dwordx4 {p.xfrag(xs, n)}, v{VX+st}, s[28:31], s46 offen offset:{1024*ks_}{XPOL}")
        out[-1] += f"\ns_add_u32 s46, s46, {2048 if p.g1 else 4096}"
        return out

    def zero_list(p):
        zl = []
        for ti in range(p.NACC):
            for r in range(4):
                if ti < NV:
                    zl.append(f"v_mov_b32 v{32+4*ti+r}, 0")
                else:
                    zl.append(f"v_accvgpr_write_b32 a{4*(ti-NV)+r}, 0")
        return zl

    def frag_info(p, f):
        if p.g1:
            kk, r = divmod(f, 18)
            return kk, r % 9, r // 9
        q, t = divmod(f, 9)
        return q & 1, t, q >> 1

    def tr_reads(p, f, slot):
        kk, t, m = frag_info(p, f)
        if t < 8:
            off, hs = m * 18432 + kk * 8192, 4096
        else:
            off, hs = m * 18432 + kk * 1024, 512
        return [f"ds_read_b64_tr_b16 {wfrag(slot, 0)}, v{VB+t} offset:{off}",
                f"ds_read_b64_tr_b16 {wfrag(slot, 1)}, v{VB+t} offset:{off + hs}"]

    def pf_list(xs):
        out = []
        if G1_HM:
            out.append(f"buffer_load_dword a{DUM}, v{22+(xs&1)}, s[32:35], s47 offen sc1" + ("\ns_add_u32 s47, s47, 147456" if xs & 1 else ""))
        if G1_WD:
            out.append(f"buffer_load_dword a{DUM+1}, v24, s[56:59], s67 offen\ns_add_u32 s67, s67, {128*11*128}")
        return out

    def stage(p, xs, last, pre=None):
        NF = p.NF
        DAH = p.DAH
        if last:
            vm = dma_list() if p.g1 else []
        else:
            vm = dma_list() + xload_list(p, (xs + p.NXS - 1) % p.NXS)
            if p.g1:
                vm += pf_list(xs)
        nvm = len(vm)
        WB = nvm + 8
        PB = NF - DAH
        slots = {}
        for i in range(nvm):
            slots.setdefault(i * PB // nvm, []).append(vm[i])
        if pre:
            k(pre)
        if not last:
            k(f"""s_add_u32 s48, s48, {STG}
s_cmp_ge_u32 s48, {STG*NBUF}
s_cselect_b32 s49, {(-STG*(NBUF-1)) & 0xffffffff:#x}, s50
s_cselect_b32 s48, 0, s48""")
        for f in range(NF):
            kk, t, m = frag_info(p, f)
            fa = f + DAH
            if f == PB and not last:
                k(f"s_waitcnt vmcnt({WB})")
                k("s_barrier")
            rd = []
            upd = None
            if fa < NF:
                rd = tr_reads(p, fa, fa % RING)
                if fa >= NF - 9 and not last:
                    tt = frag_info(p, fa)[1]
                    upd = f"v_add_u32 v{VB+tt}, s49, v{VB+tt}"
            elif not last:
                rd = tr_reads(p, fa - NF, fa % RING)
            rem = min(DAH - 1, (NF - 1 - f) if last else DAH - 1)
            k(f"s_waitcnt lgkmcnt({2*rem})")
            extra = list(slots.get(f, []))
            for st in range(p.NST):
                if p.g1:
                    ti, xn = (m * 9 + t) * 4 + st, 4 * kk + st
                else:
                    ti, xn = t * 2 + st, 2 * (2 * m + kk) + st
                k(f"v_mfma_f32_16x16x32_bf16 {p.acc(ti)}, {wfrag(f % RING)}, {p.xfrag(xs, xn)}, {p.acc(ti)}")
                if st == 0 and rd:
                    k(rd[0])
                if st == 1 and rd:
                    k(rd[1])
                    if upd:
                        k(upd)
                if st >= 2 and extra:
                    k(extra.pop(0))
            while extra:
                k(extra.pop(0))

    def start_phase(p):
        pl = xload_list(p, 0) + xload_list(p, 1) + xload_list(p, 2)
        for ln in pl:
            k(ln)
        if k.stamps:
            k("s_waitcnt lgkmcnt(0)")
        for f in range(p.DAH):
            for ln in tr_reads(p, f, f % RING):
                k(ln)
        k("s_waitcnt vmcnt(16)")

    p1 = make_phase(True)
    for z in zero_list(p1):
        k(z)
    k(f"""s_mov_b32 s48, 0
s_mov_b32 s50, {STG}
s_mov_b32 s51, 0
s_lshl_b32 s37, s22, 7
s_add_u32 s37, s37, {F2}""")
    wait_flags("s37", 8, sleep=2)
    if not (os.environ.get('ST0') or os.environ.get('ST1') or os.environ.get('ST2')):
        k.stamp(13)
    start_phase(p1)
    Lloop = k.label("loop")
    Lsk = k.label("noswitch")
    k.put(Lloop)
    for xs in range(4):
        pre = None
        if xs == 2:
            pre = "s_cmp_eq_u32 s51, 1\ns_cselect_b32 s30, 0, s30"
        if xs == 3:
            k(f"""s_cmp_lg_u32 s51, 1
s_cbranch_scc1 {Lsk}
s_mov_b32 s24, s8
s_mov_b32 s25, s9
s_mov_b32 s54, 0
s_mov_b32 s65, {8*P2}
s_mov_b32 s66, {128*P2}
v_mov_b32 v{VD}, v{VD2}
v_mov_b32 v{VD+1}, v{VD2+1}
v_mov_b32 v{VD+2}, v{VD2+2}""")
            k.put(Lsk)
        stage(p1, xs, False, pre)
    k(f"""s_add_u32 s51, s51, 1
s_cmp_lt_u32 s51, 2
s_cbranch_scc1 {Lloop}""")
    stage(p1, 0, True)
    if not (os.environ.get('ST0') or os.environ.get('ST1') or os.environ.get('ST2')):
        k.stamp(14)
    k("s_nop 7")

    def accreg(ti, r, tmp):
        if ti < NV:
            return f"v{32+4*ti+r}"
        k(f"v_accvgpr_read_b32 v{tmp}, a{4*(ti-NV)+r}")
        return f"v{tmp}"

    k(f"""v_and_b32 v2, 31, v1
v_lshlrev_b32 v2, 5, v2
s_lshl_b32 s36, s16, 2
s_add_u32 s36, s36, {FREG}
v_add_u32 v2, s36, v2
global_load_dword v21, v2, s[12:13] sc1
s_mul_i32 s36, s52, 18
s_lshl_b32 s37, s53, 2
s_add_u32 s38, s36, s37
s_lshl_b32 s38, s38, 10
s_lshr_b32 s37, s53, 1
s_add_u32 s39, s36, s37
s_add_u32 s39, s39, 16
s_lshl_b32 s39, s39, 10
s_and_b32 s37, s53, 1
s_lshl_b32 s37, s37, 3
s_add_u32 s39, s39, s37
s_mul_i32 s36, s23, 147456
v_lshl_add_u32 v{VX}, v1, 4, s36""")
    for st in range(1, 4):
        k(f"v_add_u32 v{VX+st}, 147456, v{VX+st-1}")
    for st in range(4):
        for pr in range(5):
            tiles = [2 * pr, 2 * pr + 1] if pr < 4 else [8]
            ob = 32 + 4 * (tiles[0] * 4 + st)
            for hi, t in enumerate(tiles):
                tg = t * 4 + st
                tu = (9 + t) * 4 + st
                gn = [f"v{32+4*tg+r}" for r in range(4)]
                un = [accreg(tu, r, 22 + r) for r in range(4)]
                if exact:
                    for h2 in range(2):
                        k(f"""v_cvt_pk_bf16_f32 v30, {gn[2*h2]}, {gn[2*h2+1]}
v_cvt_pk_bf16_f32 v31, {un[2*h2]}, {un[2*h2+1]}
v_pk_max_i16 v30, v30, 0
v_lshlrev_b32 v2, 16, v31
v_and_b32 v3, s40, v31
v_lshlrev_b32 v{26+2*h2}, 16, v30
v_and_b32 v{27+2*h2}, s40, v30
v_pk_mul_f32 v[{26+2*h2}:{27+2*h2}], v[{26+2*h2}:{27+2*h2}], v[2:3]""")
                else:
                    for r in range(4):
                        k(f"v_max_f32 v{26+r}, 0, {gn[r]}")
                        k(f"v_mul_f32 v{26+r}, v{26+r}, {un[r]}")
                k(f"""v_cvt_pk_bf16_f32 v{ob+2*hi}, v26, v27
v_cvt_pk_bf16_f32 v{ob+2*hi+1}, v28, v29""")
            if os.environ.get("XNOST"):
                pass
            elif pr < 4:
                k(f"buffer_store_dwordx4 v[{ob}:{ob+3}], v{VX+st}, s[32:35], s38 offen offset:{1024*pr}{HMPOL}")
            else:
                k(f"buffer_store_dwordx2 v[{ob}:{ob+1}], v{VX+st}, s[32:35], s39 offen{HMPOL}")
    p2 = make_phase(False)
    Lw = k.label("h_notw0")
    Lf1 = k.label("fast1")
    Lf2 = k.label("fast2")
    k(f"""s_waitcnt vmcnt(0) lgkmcnt(0)
s_barrier
s_add_u32 s36, s69, 1
s_or_b32 s36, s36, s3
v_cmp_ne_u32 vcc, s36, v21
s_cmp_ge_u32 s69, 8
s_cselect_b64 s[38:39], -1, vcc
s_cmp_lg_u32 s18, 0
s_cbranch_scc1 {Lw}
s_cmp_eq_u64 s[38:39], 0
s_cbranch_scc1 {Lf1}
buffer_wbl2 sc1
s_waitcnt vmcnt(0)""")
    k.put(Lf1)
    k(f"""s_lshl_b32 s36, s22, 5
s_lshl_b32 s37, s52, 2
s_add_u32 s36, s36, s37
s_add_u32 s36, s36, s53
s_lshl_b32 s36, s36, 2
s_add_u32 s36, s36, {F3}
s_mov_b64 exec, 1
v_mov_b32 v2, s36
v_mov_b32 v3, s3
global_store_dword v2, v3, s[12:13] sc1
s_lshl_b32 s36, s2, 2
s_add_u32 s36, s36, {F5}
v_mov_b32 v2, s36
global_store_dword v2, v3, s[12:13] sc1
s_mov_b64 exec, -1""")
    k.put(Lw)
    k.srd_off(28, 10, 11, WS_HM, HM_BYTES)
    k(f"""s_mul_i32 s36, s64, 147456
s_mul_i32 s37, s62, {36*1024}
s_add_u32 s36, s36, s37
v_lshl_add_u32 v{VX}, v1, 4, s36
s_mov_b32 s36, {STG}
s_mov_b32 s46, 0
s_mov_b32 s48, {STG}
s_mov_b32 s51, 0""")
    for st in range(1, 4):
        k(f"v_add_u32 v{VX+st}, 147456, v{VX+st-1}")
    for t in range(9):
        k(f"v_add_u32 v{VB+t}, s36, v{VB+t}")
    for z in zero_list(p2):
        k(z)
    k(f"""s_lshr_b32 s37, s63, 1
s_lshl_b32 s37, s37, 7
s_lshl_b32 s36, s62, 5
s_add_u32 s37, s37, s36
s_add_u32 s37, s37, {F3}""")
    wait_flags("s37", 2, barrier=False, rep=False)
    k(f"""s_cmp_lg_u32 s18, 0
s_cbranch_scc1 {Lf2}
s_cmp_eq_u64 s[38:39], 0
s_cbranch_scc1 {Lf2}
buffer_inv sc1
s_waitcnt vmcnt(0)""")
    k.put(Lf2)
    k("s_barrier")
    if not (os.environ.get('ST0') or os.environ.get('ST1') or os.environ.get('ST2')):
        k.stamp(15)
    start_phase(p2)
    if os.environ.get("ST3"):
        k.stamp(11)
    Lloop2 = k.label("loop2")
    k.put(Lloop2)
    for xs in range(4):
        pre = None
        if xs == 2:
            pre = "s_cmp_eq_u32 s51, 1\ns_cselect_b32 s30, 0, s30"
        if xs == 3:
            pre = "s_cmp_eq_u32 s51, 1\ns_cselect_b32 s26, 0, s26"
        if xs == WBL:
            Lnw = k.label("nowbl")
            k(f"""s_cmp_lg_u32 s51, 1
s_cbranch_scc1 {Lnw}
s_cmp_lg_u32 s17, 0
s_cbranch_scc1 {Lnw}
s_cmp_lg_u32 s18, 3
s_cbranch_scc1 {Lnw}
buffer_wbl2 sc1""")
            k.put(Lnw)
        stage(p2, xs, False, pre)
    k(f"""s_add_u32 s51, s51, 1
s_cmp_lt_u32 s51, 2
s_cbranch_scc1 {Lloop2}""")
    def last_stage():
        stage(p2, 0, True)
        if os.environ.get("ST3"):
            k.stamp(13)
    if INK:
        return epilogue_inkernel(k, p2, publish, wait_flags, Lexit, last_stage)
    last_stage()
    acc = p2.acc
    Lk1 = k.label("kh1")
    k.srd_off(32, 10, 11, WS_PART, P16_BYTES + SC_BYTES)
    k(f"""s_waitcnt vmcnt(0)
s_barrier
s_mul_i32 s36, s18, 18432
v_lshl_add_u32 v22, v1, 4, s36
s_xor_b32 s37, s18, 2
s_mul_i32 s37, s37, 18432
v_lshl_add_u32 v23, v1, 4, s37
s_lshl_b32 s36, s19, 1
s_add_u32 s36, s36, s64
s_lshl_b32 s37, s62, 7
s_add_u32 s36, s36, s37
s_lshl_b32 s37, s36, 2
s_add_u32 s37, s37, s53
s_mul_i32 s37, s37, 5120
v_lshl_add_u32 v24, v1, 4, s37
v_add_u32 v25, {4*5120}, v24
s_lshr_b32 s36, s36, 1
s_lshl_b32 s36, s36, 2
s_add_u32 s36, s36, s53
s_lshl_b32 s36, s36, 8
s_add_u32 s36, s36, {P16_BYTES}
v_lshl_add_u32 v26, v1, 2, s36
s_movk_i32 s38, 4096
s_cmp_eq_u32 s19, 1
s_cbranch_scc1 {Lk1}""")
    for kh in range(2):
        if kh == 1:
            k.put(Lk1)
        keep = [2 * kh, 2 * kh + 1]
        send = [2 - 2 * kh, 3 - 2 * kh]
        for i, st in enumerate(send):
            for t in range(9):
                k(f"ds_write_b128 v22, {acc(t*4+st)} offset:{(i*9+t)*1024}")
        k("""s_waitcnt lgkmcnt(0)
s_barrier""")
        for i, st in enumerate(send):
            for t in range(9):
                k(f"ds_read_b128 {acc(t*4+st)}, v23 offset:{(i*9+t)*1024}")
        k("v_mov_b32 v27, 0")
        n = 18
        for i in range(2):
            for t in range(9):
                n -= 1
                k(f"s_waitcnt lgkmcnt({min(n,15)})")
                a = 32 + 4 * (t * 4 + keep[i])
                b = 32 + 4 * (t * 4 + send[i])
                k(f"""v_pk_add_f32 v[{a}:{a+1}], v[{a}:{a+1}], v[{b}:{b+1}]
v_pk_add_f32 v[{a+2}:{a+3}], v[{a+2}:{a+3}], v[{b+2}:{b+3}]
v_max3_f32 v27, |v{a}|, |v{a+1}|, v27
v_max3_f32 v27, |v{a+2}|, |v{a+3}|, v27""")
        k(f"""v_frexp_exp_i32_f32 v27, v27
v_max_i32 v27, {(-100) & 0xffffffff:#x}, v27
v_sub_u32 v28, 15, v27
v_add_u32 v29, -15, v27
v_ldexp_f32 v28, 1.0, v28
v_ldexp_f32 v29, 1.0, v29
buffer_store_dword v29, v26, s[32:35], 0 offen""")
        for i in range(2):
            for pr in range(5):
                tiles = [2 * pr, 2 * pr + 1] if pr < 4 else [8]
                ob = 32 + 4 * (tiles[0] * 4 + send[i])
                for hi, t in enumerate(tiles):
                    a = 32 + 4 * (t * 4 + keep[i])
                    k(f"""v_pk_mul_f32 v[{a}:{a+1}], v[{a}:{a+1}], v[28:29] op_sel_hi:[1,0]
v_pk_mul_f32 v[{a+2}:{a+3}], v[{a+2}:{a+3}], v[28:29] op_sel_hi:[1,0]
v_cvt_pk_f16_f32 v{ob+2*hi}, v{a}, v{a+1}
v_cvt_pk_f16_f32 v{ob+2*hi+1}, v{a+2}, v{a+3}""")
                if pr < 4:
                    k(f"buffer_store_dwordx4 v[{ob}:{ob+3}], v{24+i}, s[32:35], 0 offen offset:{1024*pr}")
                else:
                    k(f"buffer_store_dwordx2 v[{ob}:{ob+1}], v{24+i}, s[32:35], s38 offen")
        if k.stamps:
            k("s_waitcnt vmcnt(0)")
        k.stamp(4)
        k.stamp(5, real=True)
        k.stamp_flush()
        if kh == 0:
            k("s_endpgm")
    k.put(Lexit)
    k("s_endpgm")
    return k


def epilogue_inkernel(k, p2, publish, wait_flags, Lexit, last_stage):
    SLOT = 10240 + 256
    k("""s_lshl_b32 s67, s63, 2
s_add_u32 s67, s67, s53""")
    NI = 3
    ISG = [(48, 49, 50), (51, 52, 54), (14, 15, 47)]
    k.srd_off(56, 10, 11, WS_X1, SD2)
    k.srd_off(24, 10, 11, WS_GBV, D * 4)
    k(f"""v_and_b32 v4, 15, v1
v_lshrrev_b32 v5, 4, v1
v_mul_u32_u24 v4, 1152, v4
v_lshl_add_u32 v4, v5, 3, v4
v_lshlrev_b32 v5, 4, v5
s_lshl_b32 s36, s67, 2
s_add_u32 s36, s36, s62
s_mul_i32 s36, s36, {4*SLOT}
v_lshl_add_u32 v6, v1, 4, s36
s_add_u32 s36, s36, 10240
v_lshl_add_u32 v7, v1, 2, s36""")
    for j in range(1, 4):
        k(f"""s_add_u32 s{43+j}, s62, {j}
s_and_b32 s{43+j}, s{43+j}, 3
s_mul_i32 s{43+j}, s{43+j}, {SLOT}""")
    for n in range(NI):
        o0, o1, og = ISG[n]
        k(f"""s_add_u32 s36, s18, {4*n}
s_cmp_ge_u32 s36, 5
s_cselect_b32 s37, 1, 0
s_cselect_b32 s38, 5, 0
s_sub_u32 s38, s36, s38
s_lshl_b32 s39, s53, 3
s_lshl_b32 s41, s38, 1
s_add_u32 s39, s39, s41
s_add_u32 s41, s53, 32
s_cmp_eq_u32 s38, 4
s_cselect_b32 s39, s41, s39
s_cselect_b32 s41, 0x7fffff00, 32
s_lshl_b32 s42, s63, 3
s_add_u32 s37, s37, s42
s_lshl_b32 s42, s62, 1
s_add_u32 s37, s37, s42
s_mul_i32 s37, s37, {16*1152}
s_lshl_b32 s42, s39, 5
s_add_u32 s{o0}, s37, s42
s_add_u32 s{o1}, s{o0}, s41
s_lshl_b32 s{og}, s39, 6
s_cmp_ge_u32 s36, 10
s_cselect_b32 s{o0}, 0x7fffff00, s{o0}
s_cselect_b32 s{o1}, 0x7fffff00, s{o1}""")
    XG = 168
    IT = 32
    Lp5 = k.label("poll5")
    Lq5 = k.label("pdone5")
    k(f"""s_lshl_b32 s37, s63, 2
s_add_u32 s37, s37, s62
s_lshl_b32 s37, s37, 4
s_add_u32 s37, s37, {F5}
v_and_b32 v2, 3, v1
v_lshl_add_u32 v2, v2, 2, s37
global_load_dword v28, v2, s[12:13] sc1""")
    last_stage()
    k(f"""s_load_dwordx2 s[4:5], s[0:1], {ARG['out']}
s_mov_b32 s36, 0""")
    k.put(Lp5)
    k(f"""s_add_u32 s36, s36, 1
s_waitcnt vmcnt(0)
v_cmp_ne_u32 vcc, s3, v28
s_cmp_ge_u32 s36, {SPIN_MAX}
s_cbranch_scc1 {Lq5}
s_cbranch_vccz {Lq5}
s_sleep 2
global_load_dword v28, v2, s[12:13] sc1
s_branch {Lp5}""")
    k.put(Lq5)
    for n in range(NI):
        o0, o1, og = ISG[n]
        g = XG + 12 * n
        k(f"""buffer_load_dwordx2 v[{g}:{g+1}], v4, s[56:59], s{o0} offen sc1
buffer_load_dwordx2 v[{g+2}:{g+3}], v4, s[56:59], s{o1} offen sc1
buffer_load_dwordx4 v[{g+4}:{g+7}], v5, s[24:27], s{og} offen sc1
buffer_load_dwordx4 v[{g+8}:{g+11}], v5, s[24:27], s{og} offen offset:64 sc1""")
    Lj = k.label("join")
    Lown = k.label("own")
    OWN = 3 * STG
    SLOT = 10240 + 256
    k.srd_off(32, 10, 11, WS_PART, 64 * 16 * SLOT)
    k(f"""s_lshl_b32 s67, s63, 2
s_add_u32 s67, s67, s53
s_lshl_b32 s36, s67, 2
s_add_u32 s36, s36, s18
s_lshl_b32 s36, s36, 2
s_add_u32 s36, s36, s62
s_mul_i32 s36, s36, {SLOT}
v_lshl_add_u32 v24, v1, 4, s36
v_add_u32 v25, 5120, v24
s_add_u32 s36, s36, 10240
v_lshl_add_u32 v26, v1, 2, s36
v_lshlrev_b32 v21, 4, v1
v_add_u32 v21, {OWN}, v21
s_movk_i32 s38, 4096
v_mov_b32 v27, 0
s_cmp_eq_u32 s18, s62
s_cbranch_scc1 {Lown}""")
    for ti in range(18):
        a = 32 + 4 * ti
        k(f"""v_max3_f32 v27, |v{a}|, |v{a+1}|, v27
v_max3_f32 v27, |v{a+2}|, |v{a+3}|, v27""")
    k(f"""v_frexp_exp_i32_f32 v27, v27
v_max_i32 v27, {(-100) & 0xffffffff:#x}, v27
v_sub_u32 v28, 15, v27
v_add_u32 v29, -15, v27
v_ldexp_f32 v28, 1.0, v28
v_ldexp_f32 v29, 1.0, v29
buffer_store_dword v29, v26, s[32:35], 0 offen sc1""")
    cnt = 0
    for i in range(2):
        for pr in range(5):
            tiles = [2 * pr, 2 * pr + 1] if pr < 4 else [8]
            ob = 120 + 4 * cnt
            cnt += 1
            for hi, t in enumerate(tiles):
                a = 32 + 4 * (t * 2 + i)
                k(f"""v_pk_mul_f32 v[{a}:{a+1}], v[{a}:{a+1}], v[28:29] op_sel_hi:[1,0]
v_pk_mul_f32 v[{a+2}:{a+3}], v[{a+2}:{a+3}], v[28:29] op_sel_hi:[1,0]
v_cvt_pk_f16_f32 v{ob+2*hi}, v{a}, v{a+1}
v_cvt_pk_f16_f32 v{ob+2*hi+1}, v{a+2}, v{a+3}""")
            so = "0" if pr < 4 else "s38"
            k(f"buffer_store_dwordx4 v[{ob}:{ob+3}], v{24+i}, s[32:35], {so} offen offset:{1024*(pr%4)} sc1")
    k(f"s_branch {Lj}")
    k.put(Lown)
    for i in range(2):
        for t in range(9):
            a = 32 + 4 * (t * 2 + i)
            k(f"ds_write_b128 v21, v[{a}:{a+3}] offset:{(i*10+t)*1024}")
    k.put(Lj)
    k(f"""s_lshl_b32 s37, s67, 2
s_add_u32 s37, s37, s62
s_lshl_b32 s37, s37, 2
s_add_u32 s37, s37, {F4}""")
    publish("s37", rep=False)
    k.stamp(2)
    for n in range(NI):
        b = IT + 40 * n
        k(f"""s_add_u32 s36, s18, {4*n}
s_min_u32 s36, s36, 9
s_lshl_b32 s36, s36, 11
v_add_u32 v8, s36, v21
ds_read_b128 v[{b+12}:{b+15}], v8
ds_read_b128 v[{b+16}:{b+19}], v8 offset:1024""")
    k(f"""s_lshl_b32 s37, s67, 4
s_add_u32 s37, s37, {F4}""")
    wait_flags("s37", 1, rep=False)
    k.stamp(3)
    k("s_waitcnt lgkmcnt(0)")
    k.srd(28, 4, 5, SD2)
    for n in range(NI):
        b = IT + 40 * n
        k(f"""s_add_u32 s36, s18, {4*n}
s_min_u32 s36, s36, 9
s_lshl_b32 s39, s36, 10""")
        for j in range(1, 4):
            k(f"""s_add_u32 s41, s39, s{43+j}
buffer_load_dwordx4 v[{b+4*(j-1)}:{b+4*(j-1)+3}], v6, s[32:35], s41 offen sc1""")
        if n == 0:
            for j in range(1, 4):
                k(f"buffer_load_dword v{8+j}, v7, s[32:35], s{43+j} offen sc1")
    for n in range(NI):
        o0, o1, og = ISG[n]
        b = IT + 40 * n
        A = b + 12
        k(f"s_waitcnt vmcnt({3*(NI-1-n) + 2*n})")
        for j in range(1, 4):
            for e in range(8):
                src = b + 4 * (j - 1) + e // 2
                k(f"v_fma_mix_f32 v{A+e}, v{src}, v{8+j}, v{A+e} op_sel:[{e&1},0,0] op_sel_hi:[1,0,0]")
        for h in range(4):
            rnd_pair(k, A + 2 * h, A + 2 * h + 1, b + 32 + h, 40)
        for h in range(4):
            k(f"v_pk_mul_f32 v[{A+2*h}:{A+2*h+1}], v[{A+2*h}:{A+2*h+1}], v[{XG+12*n+4+2*h}:{XG+12*n+5+2*h}]")
        for h in range(4):
            rnd_pair(k, A + 2 * h, A + 2 * h + 1, b + 32 + h, 40)
        for h in range(4):
            k(f"""v_lshlrev_b32 v{b+2*h}, 16, v{XG+12*n+h}
v_and_b32 v{b+2*h+1}, s40, v{XG+12*n+h}
v_pk_add_f32 v[{A+2*h}:{A+2*h+1}], v[{A+2*h}:{A+2*h+1}], v[{b+2*h}:{b+2*h+1}]
v_cvt_pk_bf16_f32 v{b+32+h}, v{A+2*h}, v{A+2*h+1}""")
        k(f"""buffer_store_dwordx2 v[{b+32}:{b+33}], v4, s[28:31], s{o0} offen
buffer_store_dwordx2 v[{b+34}:{b+35}], v4, s[28:31], s{o1} offen""")
    if k.stamps:
        k("s_waitcnt vmcnt(0)")
    k.stamp(4)
    k.stamp(5, real=True)
    k("s_waitcnt lgkmcnt(0)" if k.stamps else "")
    k.stamp_debug((6, 7, 8, 9, 10, 11, 12, 13, 14, 15, 2, 3, 4, 5))
    k.stamp_flush()
    k.put(Lexit)
    k("s_endpgm")
    return k


def gen_final16():
    k = K("final_kernel")
    k.kid = 1
    Lexit = k.label("exit")
    k(f"""s_cmp_ge_u32 s2, 640
s_cbranch_scc1 {Lexit}""")
    k.stamp_init()
    k(f"""s_load_dwordx2 s[4:5], s[0:1], {ARG['out']}
s_load_dwordx2 s[10:11], s[0:1], {ARG['ws']}
s_mov_b32 s40, 0xffff0000
v_and_b32 v1, 63, v0
v_lshrrev_b32 v2, 6, v0
s_lshl_b32 s16, s2, 2
v_readfirstlane_b32 s17, v2
s_nop 3
s_add_u32 s16, s16, s17
s_mul_i32 s17, s16, 52429
s_lshr_b32 s17, s17, 18
s_mul_i32 s18, s17, 5
s_sub_u32 s18, s16, s18
s_lshl_b32 s19, s16, 10
v_lshl_add_u32 v3, v1, 4, s19
s_lshr_b32 s20, s17, 2
s_and_b32 s21, s17, 3
s_lshr_b32 s19, s20, 1
s_lshl_b32 s19, s19, 2
s_add_u32 s19, s19, s21
s_lshl_b32 s19, s19, 8
s_add_u32 s19, s19, {P16_BYTES}
v_lshl_add_u32 v7, v1, 2, s19
s_lshl_b32 s22, s21, 3
s_lshl_b32 s23, s18, 1
s_add_u32 s22, s22, s23
s_add_u32 s23, s21, 32
s_cmp_eq_u32 s18, 4
s_cselect_b32 s22, s23, s22
s_cselect_b32 s41, 0x7fffff00, 0
v_and_b32 v4, 15, v1
v_lshrrev_b32 v5, 4, v1
s_lshl_b32 s19, s20, 4
v_add_u32 v4, s19, v4
s_movk_i32 s19, 1152
v_mul_lo_u32 v4, v4, s19
s_lshl_b32 s19, s22, 5
v_lshl_add_u32 v6, v5, 3, s19
v_add_u32 v4, v4, v6
v_lshlrev_b32 v6, 1, v6
s_mov_b32 s36, {P16_BYTES // 4}
s_mov_b32 s37, {2 * P16_BYTES // 4}
s_mov_b32 s38, {3 * P16_BYTES // 4}
s_mov_b32 s42, {SC_BYTES // 4}
s_mov_b32 s43, {2 * SC_BYTES // 4}
s_mov_b32 s44, {3 * SC_BYTES // 4}
s_waitcnt lgkmcnt(0)""")
    k.srd(20, 4, 5, SD2)
    k.srd_off(24, 10, 11, WS_PART, P16_BYTES + SC_BYTES)
    k.srd_off(28, 10, 11, WS_X1, SD2)
    k.srd_off(32, 10, 11, WS_GBV, D * 4)
    for j, (so, ss) in enumerate((("0", "0"), ("s36", "s42"), ("s37", "s43"), ("s38", "s44"))):
        k(f"""buffer_load_dwordx4 v[{8+4*j}:{11+4*j}], v3, s[24:27], {so} offen
buffer_load_dword v{24+j}, v7, s[24:27], {ss} offen""")
    k("""buffer_load_dwordx2 v[28:29], v4, s[28:31], 0 offen
buffer_load_dwordx2 v[30:31], v4, s[28:31], s41 offen offset:32
buffer_load_dwordx4 v[32:35], v6, s[32:35], 0 offen
buffer_load_dwordx4 v[36:39], v6, s[32:35], 0 offen offset:64""")
    A = 40
    for j in range(4):
        k(f"s_waitcnt vmcnt({4 + 2*(3-j)})")
        for e in range(8):
            src = 8 + 4 * j + e // 2
            sel = e & 1
            c = "0" if j == 0 else f"v{A+e}"
            k(f"v_fma_mix_f32 v{A+e}, v{src}, v{24+j}, {c} op_sel:[{sel},0,0] op_sel_hi:[1,0,0]")
    for h in range(4):
        rnd_pair(k, A + 2 * h, A + 2 * h + 1, 8 + h, 40)
    k("s_waitcnt vmcnt(0)")
    for h in range(4):
        k(f"v_pk_mul_f32 v[{A+2*h}:{A+2*h+1}], v[{A+2*h}:{A+2*h+1}], v[{32+2*h}:{33+2*h}]")
    for h in range(4):
        rnd_pair(k, A + 2 * h, A + 2 * h + 1, 8 + h, 40)
    for h in range(4):
        k(f"""v_lshlrev_b32 v{12+2*h}, 16, v{28+h}
v_and_b32 v{13+2*h}, s40, v{28+h}
v_pk_add_f32 v[{A+2*h}:{A+2*h+1}], v[{A+2*h}:{A+2*h+1}], v[{12+2*h}:{13+2*h}]
v_cvt_pk_bf16_f32 v{20+h}, v{A+2*h}, v{A+2*h+1}""")
    k("""buffer_store_dwordx2 v[20:21], v4, s[20:23], 0 offen
buffer_store_dwordx2 v[22:23], v4, s[20:23], s41 offen offset:32""")
    k.stamp(3)
    if k.stamps:
        k("s_waitcnt vmcnt(0)")
    k.stamp(4)
    k.stamp(5, real=True)
    k.stamp_flush()
    k.put(Lexit)
    k("s_endpgm")
    k.vgpr = 48
    k.sgpr = 48
    return k
```

```python
import os
from asmlib import *
from gen import (S, D, F, ARG, RS, WS_UR0, WS_UR1, WS_Y2T, WS_X1, WS_H2, WS_MODP, WS_GBV, WS_HM, WS_PART, WS_CNT,
                 SD2, HM_BYTES, PART1, rnd_pair, rnd_list, SU, SK, KB, K2_LDS)

STG = 36864
NBUF = 4
M_LDS = STG * NBUF
SPIN_MAX = 1 << 20
F0, F1, F2, F3, FREG, F4, F5 = 0, 2048, 3072, 4096, 5120, 6144, 7168
INK = os.environ.get('INK', '1') == '1'
CONV_LDS = 26112
YT_LDS = 4 * CONV_LDS
ROW_LDS = 3 * STG
NONCE_LDS = M_LDS - 16
P0_LDS = 3 * STG
NKV = 198
CHT = int(os.environ.get('CHT', '0'))
XPOL = os.environ.get('XPOL', ' sc1')
DAH2 = int(os.environ.get('DAH2', '7'))
CT1 = os.environ.get('CT1', '1') == '1'
CT2 = os.environ.get('CT2', '1') == '1'
HMPOL = os.environ.get('HMPOL', '')
WBL = int(os.environ.get('WBL', '-1'))
P16_BYTES = 4 * 128 * 4 * 5120
SC_BYTES = 4 * 64 * 4 * 256
NHMT = int(os.environ.get('NHMT', '1'))
PFD = int(os.environ.get('PFD', '3'))
PF_WD = os.environ.get('PF_WD', '0') == '1'
G1_HM = os.environ.get('G1_HM', '1') == '1'
G1_WD = os.environ.get('G1_WD', '1') == '1'
NREP = int(os.environ.get('NREP', '16'))
REPS = 8192 + 768
SL1 = int(os.environ.get('SL1', '6'))


def wave_sum2(k, va, vb, ta, tb):
    for ctl in ("quad_perm:[1,0,3,2]", "quad_perm:[2,3,0,1]", "row_half_mirror", "row_mirror"):
        k(f"""s_nop 0
v_add_f32 v{va}, v{va}, v{va} {ctl} row_mask:0xf bank_mask:0xf
v_add_f32 v{vb}, v{vb}, v{vb} {ctl} row_mask:0xf bank_mask:0xf""")
    for op in ("v_permlane16_swap_b32", "v_permlane32_swap_b32"):
        k(f"""v_mov_b32 v{ta}, v{va}
v_mov_b32 v{tb}, v{vb}
s_nop 1
{op} v{va}, v{ta}
{op} v{vb}, v{tb}
v_add_f32 v{va}, v{va}, v{ta}
v_add_f32 v{vb}, v{vb}, v{tb}""")


def rnd18(k, O, T):
    for i in range(9):
        rnd_pair(k, O + 2 * i, O + 2 * i + 1, T + (i % 4), 40)


def pk(op, d, a, b, c=None, mods=""):
    s = f"v_pk_{op}_f32 v[{d}:{d+1}], v[{a}:{a+1}], v[{b}:{b+1}]"
    if c is not None:
        s += f", v[{c}:{c+1}]"
    return s + (" " + mods if mods else "")


def layernorm2(k, X, O, T, R):
    s, t2, m, q = R, R + 2, R + 4, R + 6
    k(pk("add", s, X, X + 2))
    for i in range(2, 9):
        k(pk("add", s, s, X + 2 * i))
    k("s_nop 0")
    wave_sum2(k, s, s + 1, t2, t2 + 1)
    k(f"""v_mul_f32 v{m}, s44, v{s}
v_mul_f32 v{m+1}, s44, v{s+1}""")
    for i in range(9):
        k(pk("add", O + 2 * i, X + 2 * i, m, mods="neg_lo:[0,1] neg_hi:[0,1]"))
    k(pk("mul", s, O, O))
    for i in range(1, 9):
        k(pk("fma", s, O + 2 * i, O + 2 * i, s))
    k("s_nop 0")
    wave_sum2(k, s, s + 1, t2, t2 + 1)
    k(f"""v_mul_f32 v{s}, s44, v{s}
v_mul_f32 v{s+1}, s44, v{s+1}""")
    rnd_pair(k, m, m + 1, T, 40)
    rnd_pair(k, s, s + 1, T + 1, 40)
    k(f"""v_add_f32 v{s}, s45, v{s}
v_add_f32 v{s+1}, s45, v{s+1}""")
    rnd_pair(k, s, s + 1, T, 40)
    k(f"""v_sqrt_f32 v{s}, v{s}
v_sqrt_f32 v{s+1}, v{s+1}
s_nop 0""")
    rnd_pair(k, s, s + 1, T, 40)
    k(f"""v_rcp_f32 v{t2}, v{s}
v_rcp_f32 v{t2+1}, v{s+1}""")
    for i in range(9):
        k(pk("add", O + 2 * i, X + 2 * i, m, mods="neg_lo:[0,1] neg_hi:[0,1]"))
    rnd18(k, O, T)
    for i in range(9):
        a = T + 2 * (i & 1)
        k(pk("mul", a, O + 2 * i, t2))
        k(pk("fma", q, a, s, O + 2 * i, mods="neg_lo:[1,0,0] neg_hi:[1,0,0]"))
        k(pk("fma", O + 2 * i, q, t2, a))
    rnd18(k, O, T)


def gen_mega(exact=True):
    k = K("mega_kernel")
    k.kid = 0
    k.wsg = 18
    Lexit = k.label("exit")
    RING = 9
    NV = 56
    WRG = 192
    DUM = WRG + 4 * RING
    k.agpr = DUM + 4
    k.vgpr = 256
    k.sgpr = 70
    VX, VD, VB, VD2 = 4, 8, 12, 27
    P1, P2 = F * 2, D * 2

    def publish(off_sgpr_or_imm, rep=True):
        Lw = k.label("pubskip")
        k(f"""s_waitcnt vmcnt(0) lgkmcnt(0)
s_barrier
s_cmp_lg_u32 s18, 0
s_cbranch_scc1 {Lw}
s_mov_b64 exec, {(1 << NREP) - 1 if rep else 1}
v_mul_u32_u24 v2, {REPS}, v1
v_add_u32 v2, {off_sgpr_or_imm}, v2
v_mov_b32 v3, s3
global_store_dword v2, v3, s[12:13] sc1
s_mov_b64 exec, -1""")
        k.put(Lw)

    def wait_flags(base, nlanes, barrier=True, sleep=1, x4=True, rep=True):
        Lw = k.label("wskip")
        Lp = k.label("poll")
        Lq = k.label("pdone")
        k(f"""s_cmp_lg_u32 s18, 0
s_cbranch_scc1 {Lw}
v_min_u32 v2, {nlanes-1}, v1
v_lshlrev_b32 v2, {4 if x4 else 2}, v2
v_add_u32 v2, {base}, v2
s_and_b32 s36, s2, {NREP - 1}
s_mul_i32 s36, s36, {REPS if rep else 0}
v_add_u32 v2, s36, v2
s_mov_b32 s36, 0""")
        k.put(Lp)
        if x4:
            k(f"""global_load_dwordx4 v[28:31], v2, s[12:13] sc1
s_add_u32 s36, s36, 1
s_waitcnt vmcnt(0)
v_xor_b32 v28, s3, v28
v_xor_b32 v29, s3, v29
v_xor_b32 v30, s3, v30
v_xor_b32 v31, s3, v31
v_or3_b32 v28, v28, v29, v30
v_or_b32 v28, v28, v31
v_cmp_ne_u32 vcc, 0, v28""")
        else:
            k(f"""global_load_dword v28, v2, s[12:13] sc1
s_add_u32 s36, s36, 1
s_waitcnt vmcnt(0)
v_cmp_ne_u32 vcc, s3, v28""")
        k(f"""s_cmp_ge_u32 s36, {SPIN_MAX}
s_cbranch_scc1 {Lq}
s_cbranch_vccz {Lq}
s_sleep {sleep}
s_branch {Lp}""")
        k.put(Lq)
        k.put(Lw)
        if barrier:
            k("s_barrier")

    def code_touch(lo_wg, hi_wg):
        L = k.label("noct")
        k(f"""s_cmp_lt_u32 s2, {lo_wg}
s_cbranch_scc1 {L}
s_cmp_ge_u32 s2, {hi_wg}
s_cbranch_scc1 {L}
s_getpc_b64 s[36:37]
s_add_u32 s36, s36, code_begin@rel32@lo+4
s_addc_u32 s37, s37, code_begin@rel32@hi+12
v_lshlrev_b32 v2, 7, v0
v_min_u32 v3, code_end-code_begin-4, v2
v_add_u32 v2, 32768, v2
v_min_u32 v2, code_end-code_begin-4, v2
global_load_dword v254, v3, s[36:37]
global_load_dword v255, v2, s[36:37]""")
        k.put(L)

    def conv_hm_touch(which):
        k.srd_off(60, 10, 11, WS_HM, HM_BYTES)
        k(f"""s_lshr_b32 s36, s2, 3
s_lshl_b32 s36, s36, 2
s_add_u32 s36, s36, s18
s_lshl_b32 s36, s36, 1
s_sub_u32 s36, {575 - 144 * which}, s36
v_lshrrev_b32 v248, 5, v1
v_sub_u32 v248, s36, v248
v_mul_u32_u24 v249, 7282, v248
v_lshrrev_b32 v249, 16, v249
s_mov_b32 s36, {147456 - 9*4096}
v_mul_lo_u32 v249, v249, s36
v_lshl_add_u32 v249, v248, 12, v249
v_and_b32 v248, 31, v1
v_lshl_add_u32 v249, v248, 7, v249
s_bfe_u32 s36, s2, 0x10002
s_mul_i32 s36, s36, {64*147456}
s_and_b32 s37, s2, 3
s_mul_i32 s37, s37, 36864
s_add_u32 s36, s36, s37
buffer_load_dword v255, v249, s[60:63], s36 offen sc1""")

    def modflag_load():
        k(f"""v_min_u32 v2, 53, v1
v_lshlrev_b32 v2, 2, v2
s_and_b32 s36, s2, {NREP - 1}
s_mul_i32 s36, s36, {REPS}
s_add_u32 s36, s36, {F1 + 144 * 4}
v_add_u32 v2, s36, v2
global_load_dword v28, v2, s[12:13] sc1""")

    def modp_issue():
        k.srd_off(56, 10, 11, WS_MODP, 9216)
        k("""s_movk_i32 s36, 4096
s_movk_i32 s37, 8192
v_lshlrev_b32 v29, 4, v1""")
        for i in range(9):
            so = "0" if i < 4 else ("s36" if i < 8 else "s37")
            k(f"buffer_load_dwordx4 a[{4*i}:{4*i+3}], v29, s[56:59], {so} offen offset:{1024*(i%4)} sc1")
        k("s_mov_b32 s33, 1" if False else "s_mov_b32 s47, 1")

    def modp_blocking():
        Lp = k.label("mpoll")
        Lq = k.label("mdone")
        k("s_mov_b32 s38, 0")
        k.put(Lp)
        modflag_load()
        k(f"""s_add_u32 s38, s38, 1
s_waitcnt vmcnt(0)
v_cmp_ne_u32 vcc, s3, v28
s_cmp_ge_u32 s38, {SPIN_MAX}
s_cbranch_scc1 {Lq}
s_cbranch_vccz {Lq}
s_sleep 8
s_branch {Lp}""")
        k.put(Lq)
        modp_issue()

    k(f"""s_cmp_ge_u32 s2, 256
s_cbranch_scc1 {Lexit}""")
    k.stamp_init()
    Lp0mod = k.label("p0mod")
    Lp0idle = k.label("p0idle")
    Lp0done = k.label("p0done")
    Lnw0 = k.label("nonce_skip")
    k(f"""s_load_dwordx4 s[4:7], s[0:1], {ARG['k']}
s_load_dwordx2 s[8:9], s[0:1], {ARG['shift']}
s_load_dwordx4 s[48:51], s[0:1], {ARG['c']}
s_load_dwordx4 s[52:55], s[0:1], {ARG['dbg']}
s_load_dwordx2 s[64:65], s[0:1], {ARG['ssmk']}
s_load_dwordx2 s[66:67], s[0:1], {ARG['q']}
s_memrealtime s[56:57]
s_getreg_b32 s69, hwreg(HW_REG_XCC_ID, 0, 4)
s_mov_b32 s40, 0xffff0000
v_and_b32 v1, 63, v0
v_lshrrev_b32 v2, 6, v0
s_nop 0
v_readfirstlane_b32 s18, v2
v_and_b32 v4, 7, v0
v_lshrrev_b32 v5, 3, v0
s_waitcnt lgkmcnt(0)
s_mov_b32 s10, s54
s_mov_b32 s11, s55
s_add_u32 s12, s10, {WS_CNT}
s_addc_u32 s13, s11, 0
v_mov_b32 v252, 0
s_cmp_lg_u32 s18, 0
s_cbranch_scc1 {Lnw0}
s_cmp_lg_u32 s2, 255
s_cbranch_scc1 {Lnw0}
s_or_b32 s56, s56, 1
s_lshl_b32 s56, s56, 4
s_mov_b64 exec, 1
v_mov_b32 v250, s56
global_store_dword v252, v250, s[52:53] sc1
s_mov_b64 exec, -1""")
    k.put(Lnw0)
    if os.environ.get("ST0"):
        k.stamp(14)

    def nonce_resolve(preloaded=False):
        L = k.label("nres")
        Lp = k.label("npoll")
        Lq = k.label("ndone")
        k(f"""s_cmp_lg_u32 s18, 0
s_cbranch_scc1 {L}
s_mov_b32 s36, 0""")
        if not preloaded:
            k("global_load_dword v253, v252, s[52:53] sc1")
        k.put(Lp)
        k(f"""s_add_u32 s36, s36, 1
s_waitcnt vmcnt(0)
v_readfirstlane_b32 s3, v253
s_cmp_ge_u32 s36, {SPIN_MAX}
s_cbranch_scc1 {Lq}
s_cmp_lg_u32 s3, 0
s_cbranch_scc1 {Lq}
global_load_dword v253, v252, s[52:53] sc1
s_branch {Lp}""")
        k.put(Lq)
        k(f"""v_mov_b32 v250, s3
v_mov_b32 v251, {NONCE_LDS}
ds_write_b32 v251, v250
s_add_u32 s36, s69, 1
s_or_b32 s36, s36, s3
s_lshl_b32 s37, s2, 2
s_add_u32 s37, s37, {FREG}
s_mov_b64 exec, 1
v_mov_b32 v250, s36
v_mov_b32 v251, s37
global_store_dword v251, v250, s[12:13] sc1
s_mov_b64 exec, -1""")
        k.put(L)

    def conv_early():
        L = k.label("noconv_early")
        k(f"""s_cmp_ge_u32 s2, 144
s_cbranch_scc1 {L}
s_mul_i32 s14, s18, {CONV_LDS}
s_lshl_b32 s15, s2, 2
s_add_u32 s15, s15, s18
v_mov_b32 v244, 0
v_mov_b32 v245, 0
v_mov_b32 v246, 0
v_mov_b32 v247, 0
v_bfe_u32 v240, v1, 2, 2
v_and_b32 v241, 3, v1
v_mul_u32_u24 v240, {SU}, v240
v_lshl_add_u32 v240, v241, 4, v240
v_add_u32 v240, s14, v240
ds_write_b128 v240, v[244:247] offset:4096
v_lshrrev_b32 v240, 5, v1
v_mul_u32_u24 v240, {SK}, v240
v_and_b32 v241, 31, v1
v_lshl_add_u32 v240, v241, 4, v240
v_add_u32 v240, s14, v240
ds_write_b128 v240, v[244:247] offset:{KB}
s_lshl_b32 s36, s15, 12
v_lshlrev_b32 v240, 4, v1""")
        k.srd_off(60, 64, 65, "s36", 4096)
        k("s_waitcnt lgkmcnt(0)")
        for dst in (KB + 456, KB + SK + 448):
            k(f"s_add_u32 m0, s14, {dst}")
            k("s_nop 0")
            for i in range(4):
                k(f"buffer_load_dwordx4 v240, s[60:63], 0 offen offset:{1024*i} lds")
        k.put(L)

    X = 200
    O = 218

    def x_loads():
        k.srd(56, 66, 67, SD2)
        for i in range(18):
            k(f"v_mov_b32 v{X+i}, 0")
        k(f"""s_lshl_b32 s68, s2, 3
s_lshl_b32 s37, s18, 1
s_add_u32 s68, s68, s37
s_mul_i32 s68, s68, 1152
v_lshlrev_b32 v236, 1, v1""")
        for r in range(2):
            for i in range(9):
                k(f"buffer_load_short_d16_hi v{X+2*i+r}, v236, s[56:59], s68 offen offset:{1152*r + 128*i}")

    k(f"""s_cmp_ge_u32 s2, {NKV + 54}
s_cbranch_scc1 {Lp0idle}
s_cmp_ge_u32 s2, {NKV}
s_cbranch_scc1 {Lp0mod}""")
    k.srd(20, 4, 5, SD2)
    k.srd(24, 6, 7, SD2)
    k.srd(28, 8, 9, D * 8)
    k.srd(32, 10, 11, WS_Y2T)
    k(f"""s_mul_i32 s16, s2, 2979
s_lshr_b32 s16, s16, 16
s_mul_i32 s17, s16, 22
s_sub_u32 s17, s2, s17
v_and_b32 v4, 15, v0
v_lshrrev_b32 v5, 4, v0
s_mul_i32 s36, s17, {96*1152}
v_mul_u32_u24 v3, {6*1152}, v5
s_lshl_b32 s37, s16, 7
s_add_u32 s36, s36, s37
v_lshl_add_u32 v3, v4, 3, v3
v_add_u32 v3, s36, v3""")
    A0 = 6
    for r in range(4):
        k(f"v_add_u32 v{A0+r}, {((r - 4) * 1152) & 0xffffffff:#x}, v3")
    k("v_add_u32 v10, 3456, v3")

    def rowaddr(r):
        if r < 4:
            return f"v{A0+r}", 0
        if r < 7:
            return "v3", 1152 * (r - 4)
        return "v10", 1152 * (r - 7)
    KR = 16
    VR = 36
    WR = 52
    for r in range(10):
        a, o = rowaddr(r)
        k(f"buffer_load_dwordx2 v[{KR+2*r}:{KR+2*r+1}], {a}, s[20:23], 0 offen offset:{o}")
    for r in range(7):
        a, o = rowaddr(r + 3)
        k(f"buffer_load_dwordx2 v[{VR+2*r}:{VR+2*r+1}], {a}, s[24:27], 0 offen offset:{o}")
    k(f"""s_lshl_b32 s36, s16, 9
v_lshl_add_u32 v11, v4, 5, s36""")
    for i in range(2):
        k(f"buffer_load_dwordx4 v[{WR+4*i}:{WR+4*i+3}], v11, s[28:31], 0 offen offset:{16*i}")
    conv_early()
    x_loads()
    k("""v_sub_u32 v11, 15, v5
v_mul_u32_u24 v11, 3, v11""")
    for e in range(3):
        k(f"""v_add_u32 v15, {e}, v11
v_lshrrev_b32 v{12+e}, 2, v15
v_xor_b32 v{12+e}, v{12+e}, v4
v_lshlrev_b32 v{12+e}, 4, v{12+e}
v_and_b32 v15, 3, v15
v_lshl_add_u32 v{12+e}, v15, 2, v{12+e}
v_lshl_add_u32 v{12+e}, v4, 10, v{12+e}
v_add_u32 v{12+e}, {P0_LDS}, v{12+e}""")
    WF = 60
    KF = 76
    U = 116
    P = 144
    Lwa = k.label("kvw_a")
    Lwb = k.label("kvw_b")
    k(f"""s_cmp_ge_u32 s2, 144
s_cbranch_scc1 {Lwa}
s_waitcnt vmcnt(26)""")
    if CHT & 1:
        conv_hm_touch(0)
    k(f"s_branch {Lwb}")
    k.put(Lwa)
    k("s_waitcnt vmcnt(18)")
    k.put(Lwb)
    k("global_load_dword v253, v252, s[52:53] sc1")
    k.stamp(2)
    for j in range(4):
        k(f"""v_lshlrev_b32 v{WF+0*4+j}, 16, v{WR+2*j}
v_and_b32 v{WF+1*4+j}, s40, v{WR+2*j}
v_lshlrev_b32 v{WF+2*4+j}, 16, v{WR+2*j+1}
v_and_b32 v{WF+3*4+j}, s40, v{WR+2*j+1}""")
    for r in range(10):
        for q in range(2):
            k(f"""v_lshlrev_b32 v{KF+4*r+2*q}, 16, v{KR+2*r+q}
v_and_b32 v{KF+4*r+2*q+1}, s40, v{KR+2*r+q}""")
    for o in range(7):
        for q in range(2):
            for t in range(4):
                k(f"v_pk_mul_f32 v[{P+2*t}:{P+2*t+1}], v[{KF+4*(o+t)+2*q}:{KF+4*(o+t)+2*q+1}], v[{WF+4*(3-t)+2*q}:{WF+4*(3-t)+2*q+1}]")
            k(f"""v_lshlrev_b32 v{P+12}, 16, v{VR+2*o+q}
v_and_b32 v{P+13}, s40, v{VR+2*o+q}""")
            for t in range(4):
                rnd_pair(k, P + 2 * t, P + 2 * t + 1, P + 8 + t, 40)
            for t in range(1, 4):
                k(f"v_pk_add_f32 v[{P}:{P+1}], v[{P}:{P+1}], v[{P+2*t}:{P+2*t+1}]")
                rnd_pair(k, P, P + 1, P + 8, 40)
            k(f"v_pk_mul_f32 v[{U+4*o+2*q}:{U+4*o+2*q+1}], v[{P}:{P+1}], v[{P+12}:{P+13}]")
    n = 0
    for j in range(4):
        for e in range(3):
            hi = 6 - 2 * e
            b = P + 2 * (n % 4)
            n += 1
            k(f"""v_cvt_pk_bf16_f32 v{b}, v{U+4*hi+j}, v{U+4*(hi-1)+j}
v_cvt_pk_bf16_f32 v{b+1}, v{U+4*(hi-1)+j}, v{U+4*(hi-2)+j}
ds_write_b32 v{12+e}, v{b} offset:{j*256}
ds_write_b32 v{12+e}, v{b+1} offset:{16384+j*256}""")
    nonce_resolve(preloaded=True)
    k(f"""v_lshrrev_b32 v8, 2, v5
v_xor_b32 v8, v4, v8
v_lshlrev_b32 v8, 4, v8
v_lshl_add_u32 v8, v5, 8, v8
v_add_u32 v8, {P0_LDS}, v8
s_mul_i32 s36, s16, {64*RS}
s_mul_i32 s37, s17, 192
s_sub_u32 s36, s36, s37
s_add_u32 s36, s36, {4096 - 192}
v_mul_u32_u24 v9, {RS}, v5
v_lshl_add_u32 v9, v4, 4, v9
v_add_u32 v9, s36, v9
v_cmp_gt_u32 vcc, 12, v4
s_waitcnt lgkmcnt(0)
s_barrier""")
    for it in range(4):
        k(f"v_xor_b32 v{10+it}, {64*it}, v8")
    k(f"v_mov_b32 v250, {NONCE_LDS}\nds_read_b32 v250, v250")
    for a in range(2):
        for it in range(4):
            k(f"ds_read_b128 v[{16+16*a+4*it}:{16+16*a+4*it+3}], v{10+it} offset:{16384*a + 4096*it}")
    k("s_mov_b64 exec, vcc")
    for a in range(2):
        for it in range(4):
            k(f"""v_add_u32 v15, {WS_UR1*a + 16*RS*it}, v9
s_waitcnt lgkmcnt({7 - 4*a - it})
buffer_store_dwordx4 v[{16+16*a+4*it}:{16+16*a+4*it+3}], v15, s[32:35], 0 offen sc1""")
    k(f"""s_mov_b64 exec, -1
v_readfirstlane_b32 s3, v250
s_branch {Lp0done}""")

    k.put(Lp0mod)
    k(f"s_sub_u32 s16, s2, {NKV}")
    k.srd(20, 48, 49, D * 2)
    k.srd(24, 50, 51, D * 6 * D * 2)
    k.srd_off(28, 10, 11, WS_MODP, 0x8000)
    WL = 32
    CL = 8
    k(f"""s_movk_i32 s37, 6912
v_mul_lo_u32 v3, v5, s37
s_lshl_b32 s36, s16, 7
v_lshl_add_u32 v6, v4, 4, s36
v_add_u32 v3, v3, v6
v_lshlrev_b32 v6, 1, v5""")
    for i in range(18):
        k(f"v_mov_b32 v{CL+i}, 0")
    for i in range(18):
        k(f"buffer_load_short_d16_hi v{CL+i}, v6, s[20:23], 0 offen offset:{64*i}")
    k("s_mov_b32 s36, 0")
    for i in range(18):
        k(f"buffer_load_dwordx4 v[{WL+4*i}:{WL+4*i+3}], v3, s[24:27], s36 offen")
        if i < 17:
            k(f"s_add_u32 s36, s36, {32*6912}")
    k("s_mov_b32 s37, 0xbfb8aa3b")
    k("s_waitcnt vmcnt(18)")
    for i in range(18):
        k(f"v_mul_f32 v{104+i}, s37, v{CL+i}")
    for i in range(18):
        k(f"v_exp_f32 v{104+i}, v{104+i}")
    for i in range(18):
        k(f"v_add_f32 v{104+i}, 1.0, v{104+i}")
    for i in range(18):
        k(f"v_rcp_f32 v{104+i}, v{104+i}")
    k("s_nop 0")
    for i in range(18):
        k(f"v_mul_f32 v{CL+i}, v{CL+i}, v{104+i}")
    for i in range(0, 18, 2):
        rnd_pair(k, CL + i, CL + i + 1, 104 + i, 40)
    ACC = 124
    for j in range(8):
        k(f"v_mov_b32 v{ACC+j}, 0")
    for i in range(18):
        k(f"s_waitcnt vmcnt({17-i})")
        for q in range(4):
            k(f"""v_lshlrev_b32 v{104+2*q}, 16, v{WL+4*i+q}
v_and_b32 v{104+2*q+1}, s40, v{WL+4*i+q}""")
        for j in range(8):
            k(f"v_fmac_f32 v{ACC+j}, v{CL+i}, v{104+j}")
    x_loads()
    nonce_resolve()
    Lm1 = k.label("mod_w0")
    k(f"""v_lshlrev_b32 v6, 8, v5
v_lshl_add_u32 v6, v4, 5, v6
ds_write_b128 v6, v[{ACC}:{ACC+3}]
ds_write_b128 v6, v[{ACC+4}:{ACC+7}] offset:16
v_lshlrev_b32 v7, 2, v0
s_waitcnt lgkmcnt(0)
s_barrier
v_mov_b32 v250, {NONCE_LDS}
ds_read_b32 v250, v250
s_waitcnt lgkmcnt(0)
v_readfirstlane_b32 s3, v250
s_cmp_lg_u32 s18, 0
s_cbranch_scc1 {Lp0done}""")
    for i in range(32):
        k(f"ds_read_b32 v{32+i}, v7 offset:{256*i}")
    k("s_waitcnt lgkmcnt(0)")
    for st in (16, 8, 4, 2, 1):
        for i in range(st):
            k(f"v_add_f32 v{32+i}, v{32+i}, v{32+i+st}")
    k(f"""s_mul_i32 s17, s16, 7282
s_lshr_b32 s17, s17, 16
s_mul_i32 s36, s17, 9
s_sub_u32 s36, s16, s36
v_cvt_pk_bf16_f32 v33, v32, v32
v_and_b32 v32, s40, v33
v_add_f32 v34, 1.0, v32
v_cvt_pk_bf16_f32 v34, v34, v34
s_cmp_eq_u32 s17, 1
s_cselect_b32 s37, 1, 0
s_cmp_eq_u32 s17, 4
s_cselect_b32 s37, 1, s37
s_cmp_eq_u32 s37, 1
s_cselect_b64 vcc, -1, 0
s_lshl_b32 s36, s36, 6
v_add_u32 v8, s36, v0
v_cndmask_b32 v33, v33, v34, vcc
v_lshlrev_b32 v9, 4, v8
s_lshl_b32 s37, s17, 1
buffer_store_short v33, v9, s[28:31], s37 offen sc1
s_cmp_lg_u32 s17, 5
s_cbranch_scc1 {Lp0done}
v_lshlrev_b32 v9, 2, v8
s_movk_i32 s37, 0x4000
buffer_store_dword v32, v9, s[28:31], s37 offen sc1
s_branch {Lp0done}""")

    k.put(Lp0idle)
    k(f"""s_getpc_b64 s[4:5]
s_add_u32 s4, s4, code_begin@rel32@lo+4
s_addc_u32 s5, s5, code_begin@rel32@hi+12
s_getpc_b64 s[6:7]
s_add_u32 s6, s6, desc_begin@rel32@lo+4
s_addc_u32 s7, s7, desc_begin@rel32@hi+12
v_lshlrev_b32 v6, 7, v0
v_min_u32 v7, code_end-code_begin-4, v6
v_add_u32 v8, 32768, v6
v_min_u32 v8, code_end-code_begin-4, v8
v_lshlrev_b32 v9, 6, v4
v_min_u32 v9, desc_end-desc_begin-4, v9
global_load_dword v10, v7, s[4:5]
global_load_dword v11, v8, s[4:5]
global_load_dword v12, v9, s[6:7]""")
    x_loads()
    nonce_resolve()
    k(f"""s_waitcnt lgkmcnt(0)
s_barrier
v_mov_b32 v250, {NONCE_LDS}
ds_read_b32 v250, v250
s_waitcnt lgkmcnt(0)
v_readfirstlane_b32 s3, v250""")
    k.put(Lp0done)
    k.stamp(3)
    k(f"""s_load_dwordx4 s[4:7], s[0:1], {ARG['ssmk']}
s_load_dwordx4 s[48:51], s[0:1], {ARG['wg']}
s_load_dwordx2 s[8:9], s[0:1], {ARG['wd']}
s_lshl_b32 s36, s16, 5
s_add_u32 s36, s36, s17
s_lshl_b32 s36, s36, 2
s_lshl_b32 s37, s2, 2
s_add_u32 s37, s37, {F1 - 54*4}
s_cmp_lt_u32 s2, {NKV}
s_cselect_b32 s37, s36, s37""")
    publish("s37")
    if os.environ.get("ST1"):
        k.stamp(14)
    k("""s_mov_b32 s44, 0x3ae38e39
s_mov_b32 s45, 0x3727c5ac""")
    Lp1pf = k.label("p1pf")
    Lp1done = k.label("p1done")
    Lln = k.label("ln1")
    Lpf2 = k.label("p1pf2")
    k(f"""s_cmp_ge_u32 s2, 144
s_cbranch_scc1 {Lp1pf}""")
    k.put(Lln)
    layernorm2(k, X, O, 240, 244)
    k(f"""s_cmp_ge_u32 s2, 144
s_cbranch_scc1 {Lpf2}""")
    k(f"""v_and_b32 v17, 15, v1
v_lshrrev_b32 v18, 4, v1
v_lshrrev_b32 v19, 2, v17
v_and_b32 v8, 3, v1
s_movk_i32 s16, {SU}
s_movk_i32 s17, {SK}
s_lshl_b32 s37, s15, 1
s_and_b32 s37, s37, 0xfffffffc
v_lshlrev_b32 v11, 4, v1
s_load_dword s41, s[6:7], s37
s_mul_i32 s36, s15, {RS}
s_add_u32 s38, s10, s36
s_addc_u32 s39, s11, 0""")
    k.srd_off(24, 38, 39, WS_UR0, 4096)
    k.srd_off(28, 38, 39, WS_UR1, 4096)
    k.srd_off(32, 10, 11, WS_Y2T, SD2)

    def dma_copy(srd, dst, sc):
        k(f"s_add_u32 m0, s14, {dst}")
        k("s_nop 0")
        for i in range(4):
            k(f"buffer_load_dwordx4 v11, s[{srd}:{srd+3}], 0 offen offset:{1024*i}{sc} lds")
    k(f"""v_mul_u32_u24 v12, s16, v8
v_sub_u32 v13, v18, v19
v_lshl_add_u32 v12, v13, 4, v12
v_add_u32 v12, 48, v12
v_add_u32 v12, s14, v12
v_and_b32 v13, 1, v1
v_mul_u32_u24 v13, s17, v13
v_lshrrev_b32 v14, 1, v17
v_lshl_add_u32 v13, v14, 6, v13
v_lshl_add_u32 v13, v18, 4, v13
v_add_u32 v13, {KB}, v13
v_add_u32 v13, s14, v13
v_and_b32 v15, 1, v1
v_lshlrev_b32 v15, 3, v15
v_lshl_add_u32 v16, v14, 6, v15
v_lshl_add_u32 v16, v18, 4, v16
v_sub_u32 v16, {3*SU + 4104 - 3584}, v16
v_add_u32 v16, s14, v16
v_lshrrev_b32 v9, 1, v18
v_lshl_add_u32 v14, v14, 1, v9
v_lshl_add_u32 v15, v14, 7, v15
v_and_b32 v9, 1, v18
v_lshl_add_u32 v15, v9, 4, v15
s_lshl_b32 s36, s18, 5
s_add_u32 s36, s36, {YT_LDS}
v_add_u32 v15, s36, v15""")
    CACC = 32
    FR = 64
    for i in range(32):
        k(f"v_mov_b32 v{CACC+i}, 0")
    k(f"""s_lshr_b32 s36, s2, 4
s_lshl_b32 s37, s36, 7""")
    if os.environ.get("ST1"):
        k.stamp(15)
        k("s_waitcnt vmcnt(0)")
        k.stamp(13)
    wait_flags("s37", 22, x4=False)
    k.stamp(6)
    for srd, dst in [(28, 12), (24, SU + 12), (28, 2 * SU + 16), (24, 3 * SU + 16)]:
        dma_copy(srd, dst, " sc1")
    modflag_load()

    def creads(r):
        st = r & 1
        out = []
        for n in range(8):
            out.append(f"ds_read_b128 v[{FR+64*st+4*n}:{FR+64*st+4*n+3}], v12 offset:{3648 - 48 + 64*r - 512*n}")
            out.append(f"ds_read_b128 v[{FR+64*st+32+4*n}:{FR+64*st+32+4*n+3}], v13 offset:{64*r + 512*n}")
        return out
    Lnm = k.label("nomodp")
    k("s_waitcnt vmcnt(0)")
    k.stamp(7)
    for ln in creads(0):
        k(ln)
    k(f"""v_cmp_ne_u32 vcc, s3, v28
s_mov_b32 s47, 0
s_nop 3
s_cbranch_vccnz {Lnm}""")
    modp_issue()
    k.put(Lnm)
    if CHT & 2:
        conv_hm_touch(1)
    Lc = k.label("cloop")
    k("s_mov_b32 s37, 0")
    k.put(Lc)
    for rr in range(2):
        st = rr
        nxt = creads(rr + 1)
        k("s_waitcnt lgkmcnt(0)")
        i = 0
        for w in range(8):
            for q in range(8 - w):
                t = q + w
                k(f"v_mfma_f32_16x16x32_bf16 v[{CACC+4*t}:{CACC+4*t+3}], v[{FR+64*st+4*w}:{FR+64*st+4*w+3}], v[{FR+64*st+32+4*q}:{FR+64*st+32+4*q+3}], v[{CACC+4*t}:{CACC+4*t+3}]")
                if i < len(nxt):
                    k(nxt[i])
                i += 1
    k(f"""v_add_u32 v12, 128, v12
v_add_u32 v13, 128, v13
s_add_u32 s37, s37, 1
s_cmp_lt_u32 s37, 4
s_cbranch_scc1 {Lc}
s_waitcnt lgkmcnt(0)""")
    k.stamp(8)
    UV = FR
    for t in range(8):
        k(f"ds_read_b64 v[{UV+2*t}:{UV+2*t+1}], v16 offset:{512*(7-t)}")
    k(f"""s_and_b32 s42, s15, 1
s_lshl_b32 s43, s41, 16
s_and_b32 s41, s41, s40
s_cmp_eq_u32 s42, 0
s_cselect_b32 s41, s43, s41
s_waitcnt lgkmcnt(0)""")
    T = FR + 32
    for t in range(8):
        a = CACC + 4 * t
        u0, u1 = UV + 2 * t, UV + 2 * t + 1
        b = T + 8 * (t & 1)
        k(f"""v_and_b32 v{b}, s40, v{u1}
v_lshlrev_b32 v{b+1}, 16, v{u1}
v_and_b32 v{b+2}, s40, v{u0}
v_lshlrev_b32 v{b+3}, 16, v{u0}
v_pk_mul_f32 v[{b}:{b+1}], v[{b}:{b+1}], s[42:43] op_sel_hi:[1,0]
v_pk_mul_f32 v[{b+2}:{b+3}], v[{b+2}:{b+3}], s[42:43] op_sel_hi:[1,0]""" if False else f"""v_and_b32 v{b}, s40, v{u1}
v_lshlrev_b32 v{b+1}, 16, v{u1}
v_and_b32 v{b+2}, s40, v{u0}
v_lshlrev_b32 v{b+3}, 16, v{u0}
v_mul_f32 v{b}, s41, v{b}
v_mul_f32 v{b+1}, s41, v{b+1}
v_mul_f32 v{b+2}, s41, v{b+2}
v_mul_f32 v{b+3}, s41, v{b+3}""")
        rnd_pair(k, b, b + 1, b + 4, 40)
        rnd_pair(k, b + 2, b + 3, b + 5, 40)
        rnd_pair(k, a, a + 1, b + 4, 40)
        rnd_pair(k, a + 2, a + 3, b + 5, 40)
        k(f"""v_pk_add_f32 v[{b}:{b+1}], v[{b}:{b+1}], v[{a}:{a+1}]
v_pk_add_f32 v[{b+2}:{b+3}], v[{b+2}:{b+3}], v[{a+2}:{a+3}]
v_cvt_pk_bf16_f32 v{b+6}, v{b}, v{b+1}
v_cvt_pk_bf16_f32 v{b+7}, v{b+2}, v{b+3}
ds_write_b64 v15, v[{b+6}:{b+7}] offset:{2048*t}""")
    k(f"""v_lshlrev_b32 v4, 4, v0
v_add_u32 v4, {YT_LDS}, v4
v_lshrrev_b32 v5, 3, v0
v_mul_u32_u24 v5, 18432, v5
v_and_b32 v6, 7, v0
v_lshl_add_u32 v5, v6, 4, v5
s_lshl_b32 s36, s2, 7
s_waitcnt lgkmcnt(0)
s_barrier""")
    for it in range(4):
        k(f"ds_read_b128 v[{32+4*it}:{35+4*it}], v4 offset:{4096*it}")
    for it in range(4):
        k(f"""s_waitcnt lgkmcnt({3-it})
buffer_store_dwordx4 v[{32+4*it}:{35+4*it}], v5, s[32:35], s36 offen sc1
s_add_u32 s36, s36, {32*18432}""")
    k(f"""s_lshl_b32 s37, s2, 2
s_add_u32 s37, s37, {F1}""")
    publish("s37")
    k(f"s_branch {Lp1done}")
    k.put(Lp1pf)
    if CT1:
        code_touch(144, 152)
    k.srd(20, 48, 49, D * F * 2)
    k(f"""s_sub_u32 s38, s2, 144
s_lshl_b32 s38, s38, 2
s_add_u32 s38, s38, s18
s_lshl_b32 s38, s38, 13
s_add_u32 s39, s38, {448*8192}
v_lshlrev_b32 v4, 7, v1
buffer_load_dword v254, v4, s[20:23], s38 offen
buffer_load_dword v255, v4, s[20:23], s39 offen""")
    wait_flags("0", 22, sleep=16, x4=False)
    k(f"s_branch {Lln}")
    k.put(Lpf2)
    k("""s_mov_b32 s42, s38""")
    modp_blocking()
    k("""s_mov_b32 s38, s42""")
    k.srd(24, 50, 51, D * F * 2)
    k.srd(28, 8, 9, D * F * 2)
    k.srd_off(32, 10, 11, WS_HM, HM_BYTES)
    k(f"""buffer_load_dword v254, v4, s[24:27], s38 offen
buffer_load_dword v255, v4, s[24:27], s39 offen""")
    k(f"""s_sub_u32 s36, s2, 144
s_lshr_b32 s36, s36, 3
s_lshl_b32 s36, s36, 2
s_add_u32 s36, s36, s18
s_lshl_b32 s36, s36, 1
v_lshrrev_b32 v5, 5, v1
v_add_u32 v5, s36, v5
v_and_b32 v6, 31, v1
v_lshlrev_b32 v6, 7, v6
s_bfe_u32 s36, s2, 0x10002
s_mul_i32 s36, s36, {64*147456}
s_and_b32 s37, s2, 3
s_mul_i32 s37, s37, 36864
s_add_u32 s36, s36, s37
v_add_u32 v6, s36, v6
s_movk_i32 s37, 7282
s_mov_b32 s41, {147456 - 9*4096}""")
    for it in range(NHMT):
        k(f"""v_min_u32 v7, 575, v5
v_mul_lo_u32 v8, v7, s37
v_lshrrev_b32 v8, 16, v8
v_mul_lo_u32 v8, v8, s41
v_lshl_add_u32 v8, v7, 12, v8
v_add_u32 v8, v8, v6
v_add_u32 v5, 112, v5
s_waitcnt vmcnt({PFD - 1})
buffer_load_dword v254, v8, s[32:35], 0 offen sc1""")
    if PF_WD:
        k(f"""s_waitcnt vmcnt({PFD - 1})
buffer_load_dword v254, v4, s[28:31], s38 offen
s_waitcnt vmcnt({PFD - 1})
buffer_load_dword v255, v4, s[28:31], s39 offen""")
    k.put(Lp1done)
    k.stamp(9)

    k(f"""s_waitcnt lgkmcnt(0)
s_mov_b32 s4, s48
s_mov_b32 s5, s49
s_mov_b32 s6, s50
s_mov_b32 s7, s51
s_and_b32 s16, s2, 7
s_lshr_b32 s17, s2, 3
s_lshr_b32 s19, s18, 1
s_and_b32 s20, s18, 1
s_and_b32 s53, s17, 3
s_and_b32 s62, s16, 3
s_lshr_b32 s37, s16, 2
s_lshl_b32 s52, s62, 1
s_bfe_u32 s36, s17, 0x10002
s_add_u32 s52, s52, s36
s_lshl_b32 s22, s37, 2
s_lshr_b32 s36, s17, 3
s_add_u32 s22, s22, s36
s_lshl_b32 s23, s22, 4
s_lshl_b32 s36, s18, 2
s_add_u32 s23, s23, s36
s_lshl_b32 s63, s37, 3
s_lshr_b32 s36, s17, 2
s_add_u32 s63, s63, s36
s_lshl_b32 s64, s63, 3
s_lshl_b32 s37, s18, 1
s_add_u32 s64, s64, s37
s_mul_i32 s36, s23, 18432""")
    Y = 50
    T = 86
    R = 90
    MP = 100
    k(f"v_lshl_add_u32 v{VX}, v1, 4, s36")
    for st in range(1, 4):
        k(f"v_add_u32 v{VX+st}, 18432, v{VX+st-1}")

    def dma_voffs(vd, pitch):
        k(f"""s_mul_i32 s37, s20, {32*pitch}
s_add_u32 s38, s38, s37
s_lshl_b32 s37, s53, 8
s_add_u32 s39, s38, s37
s_lshl_b32 s37, s53, 5
s_add_u32 s41, s38, s37
s_add_u32 s41, s41, 1024
s_movk_i32 s37, {pitch}
v_lshrrev_b32 v22, 4, v1
v_and_b32 v23, 15, v1
v_mul_lo_u32 v24, v22, s37
v_add_u32 v24, s39, v24
v_lshlrev_b32 v25, 1, v22
v_xor_b32 v25, v23, v25
v_lshl_add_u32 v{vd}, v25, 4, v24
v_xor_b32 v25, 8, v25
v_lshl_add_u32 v{vd+1}, v25, 4, v24
v_add_u32 v{vd+1}, {4*pitch}, v{vd+1}
v_lshrrev_b32 v22, 1, v1
v_mul_lo_u32 v24, v22, s37
v_and_b32 v23, 1, v1
v_lshl_add_u32 v24, v23, 4, v24
v_add_u32 v{vd+2}, s41, v24""")
    VD2 = 25
    k("s_mul_i32 s38, s52, 1152")
    dma_voffs(VD, P1)
    k(f"""s_mul_i32 s42, s19, 18432
s_lshl_b32 s36, s20, 10
s_add_u32 s43, s42, s36
s_add_u32 s43, s43, 16384
s_lshl_b32 s36, s20, 13
s_add_u32 s42, s42, s36
v_lshrrev_b32 v22, 2, v1
v_and_b32 v23, 3, v1
v_lshlrev_b32 v23, 3, v23
v_lshl_add_u32 v24, v22, 8, v23
v_and_b32 v25, 7, v22""")
    for t in range(8):
        k(f"""v_xor_b32 v26, {t}, v25
v_lshl_add_u32 v{VB+t}, v26, 5, v24""")
    k(f"""v_lshl_add_u32 v{VB+8}, v22, 5, v23
v_add_u32 v{VB+8}, 16384, v{VB+8}
s_mov_b32 s54, 0
s_mov_b32 s55, 0
s_mov_b32 s46, 0
s_mov_b32 s65, {8*P1}
s_mov_b32 s66, {64*P1}
s_cmp_eq_u32 s19, 0
s_cselect_b32 s14, s4, s6
s_cselect_b32 s15, s5, s7""")
    k.srd(24, 14, 15, D * F * 2)

    def dma_list():
        out = []
        for n in range(8):
            pre = "s_add_u32 s60, s55, s42\ns_mov_b32 s61, s54\n" if n == 0 else ""
            post = "\ns_add_u32 s61, s61, s65" if (n & 1) and n < 7 else ""
            out.append(f"""{pre}s_add_u32 m0, s60, {1024*n}
s_nop 0
buffer_load_dwordx4 v{VD+(n&1)}, s[24:27], s61 offen lds{post}""")
        out.append(f"""s_add_u32 m0, s55, s43
s_nop 0
buffer_load_dwordx4 v{VD+2 if not os.environ.get("XNOB") else VD}, s[24:27], s54 offen lds
s_add_u32 s54, s54, s66
s_add_u32 s55, s55, {STG}
s_cmp_ge_u32 s55, {STG*NBUF}
s_cselect_b32 s55, 0, s55""")
        return out
    k.srd_off(28, 10, 11, WS_Y2T, SD2)
    BC = "op_sel_hi:[1,0]"
    Lhm = k.label("havemodp")
    Lwm = k.label("waitmodp")
    k(f"""s_cmp_eq_u32 s47, 1
s_cbranch_scc1 {Lhm}""")
    modp_blocking()
    k.put(Lhm)
    k(f"""s_lshr_b32 s38, s2, 1
s_mul_i32 s38, s38, 18432
s_and_b32 s36, s2, 1
s_lshl_b32 s36, s36, 4
s_add_u32 s38, s38, s36
s_lshl_b32 s36, s18, 12
s_add_u32 s38, s38, s36
s_add_u32 s39, s38, 2048
v_lshlrev_b32 v141, 5, v1
v_lshlrev_b32 v142, 4, v1
s_lshl_b32 s36, s18, 2
s_add_u32 s36, s36, {ROW_LDS}
v_add_u32 v142, s36, v142
v_lshrrev_b32 v143, 5, v1
v_lshlrev_b32 v143, 9, v143
v_bfe_u32 v144, v1, 2, 2
v_lshl_add_u32 v143, v144, 7, v143
v_bfe_u32 v144, v1, 4, 1
v_lshl_add_u32 v143, v144, 3, v143
v_and_b32 v144, 3, v1
v_lshl_add_u32 v143, v144, 1, v143
s_lshl_b32 s36, s18, 5
s_add_u32 s36, s36, {ROW_LDS + 9216}
v_add_u32 v143, s36, v143
s_cmp_ge_u32 s2, 144
s_cbranch_scc1 {Lwm}
s_waitcnt vmcnt(0)""")
    k.put(Lwm)
    k(f"s_waitcnt vmcnt({2 + NHMT + (2 if PF_WD else 0)})")
    for i in range(9):
        for d in range(3):
            k(f"v_accvgpr_read_b32 v{MP+4*i+d}, a{4*i+d}")
    for i in range(9):
        k(f"v_and_b32 v{T+2*(i&1)}, s40, v{MP+4*i}")
        k(pk("mul", O + 2 * i, O + 2 * i, T + 2 * (i & 1), mods=BC))
    rnd18(k, O, T)
    for i in range(9):
        k(f"v_lshlrev_b32 v{T+2*(i&1)}, 16, v{MP+4*i}")
        k(pk("add", O + 2 * i, O + 2 * i, T + 2 * (i & 1), mods=BC))
    rnd18(k, O, T)
    k.stamp(10)
    if CT2:
        code_touch(248, 256)
    wait_flags(str(F1), 36, sleep=SL1)
    k.stamp(11)
    Lno9 = k.label("no9")
    k(f"""s_lshl_b32 s37, s18, 11
s_add_u32 m0, s37, {ROW_LDS}
s_nop 0
buffer_load_dwordx4 v141, s[28:31], s38 offen sc1 lds
s_add_u32 m0, s37, {ROW_LDS + 1024}
s_nop 0
buffer_load_dwordx4 v141, s[28:31], s39 offen sc1 lds
s_cmp_lg_u32 s18, 0
s_cbranch_scc1 {Lno9}
s_add_u32 s38, s38, 16384
s_mov_b32 m0, {ROW_LDS + 8192}
s_nop 0
buffer_load_dwordx4 v141, s[28:31], s38 offen sc1 lds""")
    k.put(Lno9)
    k.srd_off(28, 10, 11, WS_X1, SD2)
    k.srd_off(32, 10, 11, WS_H2, SD2)
    ring0 = dma_list() + dma_list()

    def ring_some(n):
        for _ in range(n):
            if ring0:
                k(ring0.pop(0))
    k("""s_waitcnt vmcnt(0)
s_barrier""")
    for i in range(9):
        k(f"ds_read_b32 v{Y+i}, v142 offset:{1024*i}")
    for i in range(9):
        a = T + 2 * (i & 1)
        k(f"""s_waitcnt lgkmcnt({8-i})
v_lshlrev_b32 v{a}, 16, v{Y+i}
v_and_b32 v{a+1}, s40, v{Y+i}""")
        k(pk("mul", O + 2 * i, O + 2 * i, a))
    if os.environ.get("ST2"):
        k.stamp(13)
    rnd18(k, O, T)
    ring_some(5)
    for i in range(9):
        k(f"v_lshlrev_b32 v{T+2*(i&1)}, 16, v{MP+4*i+1}")
        k(pk("mul", O + 2 * i, O + 2 * i, T + 2 * (i & 1), mods=BC))
    rnd18(k, O, T)
    ring_some(4)
    for i in range(9):
        k(pk("add", X + 2 * i, X + 2 * i, O + 2 * i))
    rnd18(k, X, T)
    ring_some(5)
    layernorm2(k, X, O, T, R)
    ring_some(4)
    for i in range(9):
        k(f"v_lshlrev_b32 v{T+2*(i&1)}, 16, v{MP+4*i+2}")
        k(pk("mul", O + 2 * i, O + 2 * i, T + 2 * (i & 1), mods=BC))
    rnd18(k, O, T)
    for i in range(9):
        k(f"v_and_b32 v{T+2*(i&1)}, s40, v{MP+4*i+1}")
        k(pk("add", O + 2 * i, O + 2 * i, T + 2 * (i & 1), mods=BC))
        k(f"""v_cvt_pk_bf16_f32 v{O+2*i}, v{O+2*i}, v{O+2*i+1}
ds_write_b16 v143, v{O+2*i} offset:{1024*i}
ds_write_b16_d16_hi v143, v{O+2*i} offset:{1024*i+16}""")
    while ring0:
        k(ring0.pop(0))
    if os.environ.get("ST2"):
        k.stamp(14)
    Lno3 = k.label("no3rd")
    k(f"""v_lshlrev_b32 v142, 4, v0
v_add_u32 v142, {ROW_LDS + 9216}, v142
v_lshrrev_b32 v143, 3, v0
v_lshlrev_b32 v143, 8, v143
v_and_b32 v144, 7, v0
v_lshl_add_u32 v143, v144, 4, v143
s_lshr_b32 s36, s2, 1
s_mul_i32 s36, s36, 18432
s_and_b32 s37, s2, 1
s_lshl_b32 s37, s37, 7
s_add_u32 s36, s36, s37
s_add_u32 s37, s36, 8192
s_add_u32 s38, s36, 16384
s_waitcnt lgkmcnt(0)
s_barrier
ds_read_b128 v[32:35], v142
ds_read_b128 v[36:39], v142 offset:4096
s_cmp_lg_u32 s18, 0
s_cbranch_scc1 {Lno3}
ds_read_b128 v[40:43], v142 offset:8192
s_waitcnt lgkmcnt(0)
buffer_store_dwordx4 v[40:43], v143, s[32:35], s38 offen sc1""")
    k.put(Lno3)
    k(f"""s_waitcnt lgkmcnt(0)
buffer_store_dwordx4 v[32:35], v143, s[32:35], s36 offen sc1
buffer_store_dwordx4 v[36:39], v143, s[32:35], s37 offen sc1
s_lshl_b32 s37, s2, 2
s_add_u32 s37, s37, {F2}""")
    if os.environ.get("ST2"):
        k.stamp(15)
    publish("s37")
    k.stamp(12)
    for r in range(2):
        for i in range(9):
            k(f"buffer_store_short_d16_hi v{X+2*i+r}, v236, s[28:31], s68 offen offset:{1152*r + 128*i} sc1")

    VD2 = 25
    k(f"""s_mul_i32 s38, s62, 18
s_add_u32 s38, s38, s19
s_mul_i32 s38, s38, {64*P2}""")
    dma_voffs(32, P2)
    k(f"""v_mov_b32 v{VD2}, v32
v_mov_b32 v{VD2+1}, v33
v_mov_b32 v{VD2+2}, v34
s_mul_i32 s36, s52, 18
s_lshl_b32 s37, s53, 2
s_add_u32 s38, s36, s37
s_lshl_b32 s38, s38, 10
s_lshr_b32 s37, s53, 1
s_add_u32 s39, s36, s37
s_add_u32 s39, s39, 16
s_lshl_b32 s39, s39, 10
s_mul_i32 s36, s23, 147456
s_add_u32 s38, s38, s36
s_add_u32 s39, s39, s36
v_and_b32 v32, 15, v1
v_lshl_add_u32 v22, v32, 7, s38
v_add_u32 v23, 2048, v22
v_and_b32 v32, 3, v1
v_lshl_add_u32 v32, v32, 7, s39
v_add_u32 v33, 512, v32
v_lshrrev_b32 v24, 2, v1
v_cmp_eq_u32 vcc, 4, v24
s_mov_b32 s47, 0
s_nop 0
v_cndmask_b32 v22, v22, v32, vcc
v_cndmask_b32 v23, v23, v33, vcc
s_lshl_b32 s36, s17, 2
s_add_u32 s36, s36, s18
s_mul_i32 s36, s36, {11*128}
v_min_u32 v24, 10, v1
v_lshl_add_u32 v24, v24, 7, s36
s_mov_b32 s67, 0
s_mul_i32 s36, s62, {1152*P2}""")
    k.srd_off(56, 8, 9, "s36", 1152 * P2)
    k.srd_off(28, 10, 11, WS_H2, SD2)
    k.srd_off(32, 10, 11, WS_HM, HM_BYTES)

    def wfrag(slot, half=None):
        if half is None:
            return ar(WRG + 4 * slot, 4)
        return ar(WRG + 4 * slot + 2 * half, 2)

    class Ph:
        pass

    def make_phase(g1):
        p = Ph()
        p.g1 = g1
        p.NST = 4 if g1 else 2
        p.NACC = 72 if g1 else 18
        p.NXS = 4
        p.XR = 64 if g1 else 0
        p.NF = 36
        p.DAH = 4 if g1 else DAH2
        p.acc = lambda ti: vr(32 + 4 * ti, 4) if ti < NV else ar(4 * (ti - NV), 4)
        p.xfrag = lambda xs, n: ar(p.XR + 32 * xs + 4 * n, 4)
        return p

    def xload_list(p, xs):
        out = []
        for n in range(8):
            ks_, st = divmod(n, p.NST)
            out.append(f"buffer_load_dwordx4 {p.xfrag(xs, n)}, v{VX+st}, s[28:31], s46 offen offset:{1024*ks_}{XPOL}")
        out[-1] += f"\ns_add_u32 s46, s46, {2048 if p.g1 else 4096}"
        return out

    def zero_list(p):
        zl = []
        for ti in range(p.NACC):
            for r in range(4):
                if ti < NV:
                    zl.append(f"v_mov_b32 v{32+4*ti+r}, 0")
                else:
                    zl.append(f"v_accvgpr_write_b32 a{4*(ti-NV)+r}, 0")
        return zl

    def frag_info(p, f):
        if p.g1:
            kk, r = divmod(f, 18)
            return kk, r % 9, r // 9
        q, t = divmod(f, 9)
        return q & 1, t, q >> 1

    def tr_reads(p, f, slot):
        kk, t, m = frag_info(p, f)
        if t < 8:
            off, hs = m * 18432 + kk * 8192, 4096
        else:
            off, hs = m * 18432 + kk * 1024, 512
        return [f"ds_read_b64_tr_b16 {wfrag(slot, 0)}, v{VB+t} offset:{off}",
                f"ds_read_b64_tr_b16 {wfrag(slot, 1)}, v{VB+t} offset:{off + hs}"]

    def pf_list(xs):
        out = []
        if G1_HM:
            out.append(f"buffer_load_dword a{DUM}, v{22+(xs&1)}, s[32:35], s47 offen sc1" + ("\ns_add_u32 s47, s47, 147456" if xs & 1 else ""))
        if G1_WD:
            out.append(f"buffer_load_dword a{DUM+1}, v24, s[56:59], s67 offen\ns_add_u32 s67, s67, {128*11*128}")
        return out

    def stage(p, xs, last, pre=None):
        NF = p.NF
        DAH = p.DAH
        if last:
            vm = dma_list() if p.g1 else []
        else:
            vm = dma_list() + xload_list(p, (xs + p.NXS - 1) % p.NXS)
            if p.g1:
                vm += pf_list(xs)
        nvm = len(vm)
        WB = nvm + 8
        PB = NF - DAH
        slots = {}
        for i in range(nvm):
            slots.setdefault(i * PB // nvm, []).append(vm[i])
        if pre:
            k(pre)
        if not last:
            k(f"""s_add_u32 s48, s48, {STG}
s_cmp_ge_u32 s48, {STG*NBUF}
s_cselect_b32 s49, {(-STG*(NBUF-1)) & 0xffffffff:#x}, s50
s_cselect_b32 s48, 0, s48""")
        for f in range(NF):
            kk, t, m = frag_info(p, f)
            fa = f + DAH
            if f == PB and not last:
                k(f"s_waitcnt vmcnt({WB})")
                k("s_barrier")
            rd = []
            upd = None
            if fa < NF:
                rd = tr_reads(p, fa, fa % RING)
                if fa >= NF - 9 and not last:
                    tt = frag_info(p, fa)[1]
                    upd = f"v_add_u32 v{VB+tt}, s49, v{VB+tt}"
            elif not last:
                rd = tr_reads(p, fa - NF, fa % RING)
            rem = min(DAH - 1, (NF - 1 - f) if last else DAH - 1)
            k(f"s_waitcnt lgkmcnt({2*rem})")
            extra = list(slots.get(f, []))
            for st in range(p.NST):
                if p.g1:
                    ti, xn = (m * 9 + t) * 4 + st, 4 * kk + st
                else:
                    ti, xn = t * 2 + st, 2 * (2 * m + kk) + st
                k(f"v_mfma_f32_16x16x32_bf16 {p.acc(ti)}, {wfrag(f % RING)}, {p.xfrag(xs, xn)}, {p.acc(ti)}")
                if st == 0 and rd:
                    k(rd[0])
                if st == 1 and rd:
                    k(rd[1])
                    if upd:
                        k(upd)
                if st >= 2 and extra:
                    k(extra.pop(0))
            while extra:
                k(extra.pop(0))

    def start_phase(p):
        pl = xload_list(p, 0) + xload_list(p, 1) + xload_list(p, 2)
        for ln in pl:
            k(ln)
        if k.stamps:
            k("s_waitcnt lgkmcnt(0)")
        for f in range(p.DAH):
            for ln in tr_reads(p, f, f % RING):
                k(ln)
        k("s_waitcnt vmcnt(16)")

    p1 = make_phase(True)
    for z in zero_list(p1):
        k(z)
    k(f"""s_mov_b32 s48, 0
s_mov_b32 s50, {STG}
s_mov_b32 s51, 0
s_lshl_b32 s37, s22, 7
s_add_u32 s37, s37, {F2}""")
    wait_flags("s37", 8, sleep=2)
    if not (os.environ.get('ST0') or os.environ.get('ST1') or os.environ.get('ST2')):
        k.stamp(13)
    start_phase(p1)
    Lloop = k.label("loop")
    Lsk = k.label("noswitch")
    k.put(Lloop)
    for xs in range(4):
        pre = None
        if xs == 2:
            pre = "s_cmp_eq_u32 s51, 1\ns_cselect_b32 s30, 0, s30"
        if xs == 3:
            k(f"""s_cmp_lg_u32 s51, 1
s_cbranch_scc1 {Lsk}
s_mov_b32 s24, s8
s_mov_b32 s25, s9
s_mov_b32 s54, 0
s_mov_b32 s65, {8*P2}
s_mov_b32 s66, {128*P2}
v_mov_b32 v{VD}, v{VD2}
v_mov_b32 v{VD+1}, v{VD2+1}
v_mov_b32 v{VD+2}, v{VD2+2}""")
            k.put(Lsk)
        stage(p1, xs, False, pre)
    k(f"""s_add_u32 s51, s51, 1
s_cmp_lt_u32 s51, 2
s_cbranch_scc1 {Lloop}""")
    stage(p1, 0, True)
    if not (os.environ.get('ST0') or os.environ.get('ST1') or os.environ.get('ST2')):
        k.stamp(14)
    k("s_nop 7")

    def accreg(ti, r, tmp):
        if ti < NV:
            return f"v{32+4*ti+r}"
        k(f"v_accvgpr_read_b32 v{tmp}, a{4*(ti-NV)+r}")
        return f"v{tmp}"

    k(f"""v_and_b32 v2, 31, v1
v_lshlrev_b32 v2, 5, v2
s_lshl_b32 s36, s16, 2
s_add_u32 s36, s36, {FREG}
v_add_u32 v2, s36, v2
global_load_dword v21, v2, s[12:13] sc1
s_mul_i32 s36, s52, 18
s_lshl_b32 s37, s53, 2
s_add_u32 s38, s36, s37
s_lshl_b32 s38, s38, 10
s_lshr_b32 s37, s53, 1
s_add_u32 s39, s36, s37
s_add_u32 s39, s39, 16
s_lshl_b32 s39, s39, 10
s_and_b32 s37, s53, 1
s_lshl_b32 s37, s37, 3
s_add_u32 s39, s39, s37
s_mul_i32 s36, s23, 147456
v_lshl_add_u32 v{VX}, v1, 4, s36""")
    for st in range(1, 4):
        k(f"v_add_u32 v{VX+st}, 147456, v{VX+st-1}")
    for st in range(4):
        for pr in range(5):
            tiles = [2 * pr, 2 * pr + 1] if pr < 4 else [8]
            ob = 32 + 4 * (tiles[0] * 4 + st)
            for hi, t in enumerate(tiles):
                tg = t * 4 + st
                tu = (9 + t) * 4 + st
                gn = [f"v{32+4*tg+r}" for r in range(4)]
                un = [accreg(tu, r, 22 + r) for r in range(4)]
                if exact:
                    for h2 in range(2):
                        k(f"""v_cvt_pk_bf16_f32 v30, {gn[2*h2]}, {gn[2*h2+1]}
v_cvt_pk_bf16_f32 v31, {un[2*h2]}, {un[2*h2+1]}
v_pk_max_i16 v30, v30, 0
v_lshlrev_b32 v2, 16, v31
v_and_b32 v3, s40, v31
v_lshlrev_b32 v{26+2*h2}, 16, v30
v_and_b32 v{27+2*h2}, s40, v30
v_pk_mul_f32 v[{26+2*h2}:{27+2*h2}], v[{26+2*h2}:{27+2*h2}], v[2:3]""")
                else:
                    for r in range(4):
                        k(f"v_max_f32 v{26+r}, 0, {gn[r]}")
                        k(f"v_mul_f32 v{26+r}, v{26+r}, {un[r]}")
                k(f"""v_cvt_pk_bf16_f32 v{ob+2*hi}, v26, v27
v_cvt_pk_bf16_f32 v{ob+2*hi+1}, v28, v29""")
            if os.environ.get("XNOST"):
                pass
            elif pr < 4:
                k(f"buffer_store_dwordx4 v[{ob}:{ob+3}], v{VX+st}, s[32:35], s38 offen offset:{1024*pr}{HMPOL}")
            else:
                k(f"buffer_store_dwordx2 v[{ob}:{ob+1}], v{VX+st}, s[32:35], s39 offen{HMPOL}")
    p2 = make_phase(False)
    Lw = k.label("h_notw0")
    Lf1 = k.label("fast1")
    Lf2 = k.label("fast2")
    k(f"""s_waitcnt vmcnt(0) lgkmcnt(0)
s_barrier
s_add_u32 s36, s69, 1
s_or_b32 s36, s36, s3
v_cmp_ne_u32 vcc, s36, v21
s_cmp_ge_u32 s69, 8
s_cselect_b64 s[38:39], -1, vcc
s_cmp_lg_u32 s18, 0
s_cbranch_scc1 {Lw}
s_cmp_eq_u64 s[38:39], 0
s_cbranch_scc1 {Lf1}
buffer_wbl2 sc1
s_waitcnt vmcnt(0)""")
    k.put(Lf1)
    k(f"""s_lshl_b32 s36, s22, 5
s_lshl_b32 s37, s52, 2
s_add_u32 s36, s36, s37
s_add_u32 s36, s36, s53
s_lshl_b32 s36, s36, 2
s_add_u32 s36, s36, {F3}
s_mov_b64 exec, 1
v_mov_b32 v2, s36
v_mov_b32 v3, s3
global_store_dword v2, v3, s[12:13] sc1
s_lshl_b32 s36, s2, 2
s_add_u32 s36, s36, {F5}
v_mov_b32 v2, s36
global_store_dword v2, v3, s[12:13] sc1
s_mov_b64 exec, -1""")
    k.put(Lw)
    k.srd_off(28, 10, 11, WS_HM, HM_BYTES)
    k(f"""s_mul_i32 s36, s64, 147456
s_mul_i32 s37, s62, {36*1024}
s_add_u32 s36, s36, s37
v_lshl_add_u32 v{VX}, v1, 4, s36
s_mov_b32 s36, {STG}
s_mov_b32 s46, 0
s_mov_b32 s48, {STG}
s_mov_b32 s51, 0""")
    for st in range(1, 4):
        k(f"v_add_u32 v{VX+st}, 147456, v{VX+st-1}")
    for t in range(9):
        k(f"v_add_u32 v{VB+t}, s36, v{VB+t}")
    for z in zero_list(p2):
        k(z)
    k(f"""s_lshr_b32 s37, s63, 1
s_lshl_b32 s37, s37, 7
s_lshl_b32 s36, s62, 5
s_add_u32 s37, s37, s36
s_add_u32 s37, s37, {F3}""")
    wait_flags("s37", 2, barrier=False, rep=False)
    k(f"""s_cmp_lg_u32 s18, 0
s_cbranch_scc1 {Lf2}
s_cmp_eq_u64 s[38:39], 0
s_cbranch_scc1 {Lf2}
buffer_inv sc1
s_waitcnt vmcnt(0)""")
    k.put(Lf2)
    k("s_barrier")
    if not (os.environ.get('ST0') or os.environ.get('ST1') or os.environ.get('ST2')):
        k.stamp(15)
    start_phase(p2)
    if os.environ.get("ST3"):
        k.stamp(11)
    Lloop2 = k.label("loop2")
    k.put(Lloop2)
    for xs in range(4):
        pre = None
        if xs == 2:
            pre = "s_cmp_eq_u32 s51, 1\ns_cselect_b32 s30, 0, s30"
        if xs == 3:
            pre = "s_cmp_eq_u32 s51, 1\ns_cselect_b32 s26, 0, s26"
        if xs == WBL:
            Lnw = k.label("nowbl")
            k(f"""s_cmp_lg_u32 s51, 1
s_cbranch_scc1 {Lnw}
s_cmp_lg_u32 s17, 0
s_cbranch_scc1 {Lnw}
s_cmp_lg_u32 s18, 3
s_cbranch_scc1 {Lnw}
buffer_wbl2 sc1""")
            k.put(Lnw)
        stage(p2, xs, False, pre)
    k(f"""s_add_u32 s51, s51, 1
s_cmp_lt_u32 s51, 2
s_cbranch_scc1 {Lloop2}""")
    def last_stage():
        stage(p2, 0, True)
        if os.environ.get("ST3"):
            k.stamp(13)
    if INK:
        return epilogue_inkernel(k, p2, publish, wait_flags, Lexit, last_stage)
    last_stage()
    acc = p2.acc
    Lk1 = k.label("kh1")
    k.srd_off(32, 10, 11, WS_PART, P16_BYTES + SC_BYTES)
    k(f"""s_waitcnt vmcnt(0)
s_barrier
s_mul_i32 s36, s18, 18432
v_lshl_add_u32 v22, v1, 4, s36
s_xor_b32 s37, s18, 2
s_mul_i32 s37, s37, 18432
v_lshl_add_u32 v23, v1, 4, s37
s_lshl_b32 s36, s19, 1
s_add_u32 s36, s36, s64
s_lshl_b32 s37, s62, 7
s_add_u32 s36, s36, s37
s_lshl_b32 s37, s36, 2
s_add_u32 s37, s37, s53
s_mul_i32 s37, s37, 5120
v_lshl_add_u32 v24, v1, 4, s37
v_add_u32 v25, {4*5120}, v24
s_lshr_b32 s36, s36, 1
s_lshl_b32 s36, s36, 2
s_add_u32 s36, s36, s53
s_lshl_b32 s36, s36, 8
s_add_u32 s36, s36, {P16_BYTES}
v_lshl_add_u32 v26, v1, 2, s36
s_movk_i32 s38, 4096
s_cmp_eq_u32 s19, 1
s_cbranch_scc1 {Lk1}""")
    for kh in range(2):
        if kh == 1:
            k.put(Lk1)
        keep = [2 * kh, 2 * kh + 1]
        send = [2 - 2 * kh, 3 - 2 * kh]
        for i, st in enumerate(send):
            for t in range(9):
                k(f"ds_write_b128 v22, {acc(t*4+st)} offset:{(i*9+t)*1024}")
        k("""s_waitcnt lgkmcnt(0)
s_barrier""")
        for i, st in enumerate(send):
            for t in range(9):
                k(f"ds_read_b128 {acc(t*4+st)}, v23 offset:{(i*9+t)*1024}")
        k("v_mov_b32 v27, 0")
        n = 18
        for i in range(2):
            for t in range(9):
                n -= 1
                k(f"s_waitcnt lgkmcnt({min(n,15)})")
                a = 32 + 4 * (t * 4 + keep[i])
                b = 32 + 4 * (t * 4 + send[i])
                k(f"""v_pk_add_f32 v[{a}:{a+1}], v[{a}:{a+1}], v[{b}:{b+1}]
v_pk_add_f32 v[{a+2}:{a+3}], v[{a+2}:{a+3}], v[{b+2}:{b+3}]
v_max3_f32 v27, |v{a}|, |v{a+1}|, v27
v_max3_f32 v27, |v{a+2}|, |v{a+3}|, v27""")
        k(f"""v_frexp_exp_i32_f32 v27, v27
v_max_i32 v27, {(-100) & 0xffffffff:#x}, v27
v_sub_u32 v28, 15, v27
v_add_u32 v29, -15, v27
v_ldexp_f32 v28, 1.0, v28
v_ldexp_f32 v29, 1.0, v29
buffer_store_dword v29, v26, s[32:35], 0 offen""")
        for i in range(2):
            for pr in range(5):
                tiles = [2 * pr, 2 * pr + 1] if pr < 4 else [8]
                ob = 32 + 4 * (tiles[0] * 4 + send[i])
                for hi, t in enumerate(tiles):
                    a = 32 + 4 * (t * 4 + keep[i])
                    k(f"""v_pk_mul_f32 v[{a}:{a+1}], v[{a}:{a+1}], v[28:29] op_sel_hi:[1,0]
v_pk_mul_f32 v[{a+2}:{a+3}], v[{a+2}:{a+3}], v[28:29] op_sel_hi:[1,0]
v_cvt_pk_f16_f32 v{ob+2*hi}, v{a}, v{a+1}
v_cvt_pk_f16_f32 v{ob+2*hi+1}, v{a+2}, v{a+3}""")
                if pr < 4:
                    k(f"buffer_store_dwordx4 v[{ob}:{ob+3}], v{24+i}, s[32:35], 0 offen offset:{1024*pr}")
                else:
                    k(f"buffer_store_dwordx2 v[{ob}:{ob+1}], v{24+i}, s[32:35], s38 offen")
        if k.stamps:
            k("s_waitcnt vmcnt(0)")
        k.stamp(4)
        k.stamp(5, real=True)
        k.stamp_flush()
        if kh == 0:
            k("s_endpgm")
    k.put(Lexit)
    k("s_endpgm")
    return k


def epilogue_inkernel(k, p2, publish, wait_flags, Lexit, last_stage):
    SLOT = 10240 + 256
    k("""s_lshl_b32 s67, s63, 2
s_add_u32 s67, s67, s53""")
    NI = 3
    ISG = [(48, 49, 50), (51, 52, 54), (14, 15, 47)]
    k.srd_off(56, 10, 11, WS_X1, SD2)
    k.srd_off(24, 10, 11, WS_GBV, D * 4)
    k(f"""v_and_b32 v4, 15, v1
v_lshrrev_b32 v5, 4, v1
v_mul_u32_u24 v4, 1152, v4
v_lshl_add_u32 v4, v5, 3, v4
v_lshlrev_b32 v5, 4, v5
s_lshl_b32 s36, s67, 2
s_add_u32 s36, s36, s62
s_mul_i32 s36, s36, {4*SLOT}
v_lshl_add_u32 v6, v1, 4, s36
s_add_u32 s36, s36, 10240
v_lshl_add_u32 v7, v1, 2, s36""")
    for j in range(1, 4):
        k(f"""s_add_u32 s{43+j}, s62, {j}
s_and_b32 s{43+j}, s{43+j}, 3
s_mul_i32 s{43+j}, s{43+j}, {SLOT}""")
    for n in range(NI):
        o0, o1, og = ISG[n]
        k(f"""s_add_u32 s36, s18, {4*n}
s_cmp_ge_u32 s36, 5
s_cselect_b32 s37, 1, 0
s_cselect_b32 s38, 5, 0
s_sub_u32 s38, s36, s38
s_lshl_b32 s39, s53, 3
s_lshl_b32 s41, s38, 1
s_add_u32 s39, s39, s41
s_add_u32 s41, s53, 32
s_cmp_eq_u32 s38, 4
s_cselect_b32 s39, s41, s39
s_cselect_b32 s41, 0x7fffff00, 32
s_lshl_b32 s42, s63, 3
s_add_u32 s37, s37, s42
s_lshl_b32 s42, s62, 1
s_add_u32 s37, s37, s42
s_mul_i32 s37, s37, {16*1152}
s_lshl_b32 s42, s39, 5
s_add_u32 s{o0}, s37, s42
s_add_u32 s{o1}, s{o0}, s41
s_lshl_b32 s{og}, s39, 6
s_cmp_ge_u32 s36, 10
s_cselect_b32 s{o0}, 0x7fffff00, s{o0}
s_cselect_b32 s{o1}, 0x7fffff00, s{o1}""")
    XG = 168
    IT = 32
    Lp5 = k.label("poll5")
    Lq5 = k.label("pdone5")
    k(f"""s_lshl_b32 s37, s63, 2
s_add_u32 s37, s37, s62
s_lshl_b32 s37, s37, 4
s_add_u32 s37, s37, {F5}
v_and_b32 v2, 3, v1
v_lshl_add_u32 v2, v2, 2, s37
global_load_dword v28, v2, s[12:13] sc1""")
    last_stage()
    k(f"""s_load_dwordx2 s[4:5], s[0:1], {ARG['out']}
s_mov_b32 s36, 0""")
    k.put(Lp5)
    k(f"""s_add_u32 s36, s36, 1
s_waitcnt vmcnt(0)
v_cmp_ne_u32 vcc, s3, v28
s_cmp_ge_u32 s36, {SPIN_MAX}
s_cbranch_scc1 {Lq5}
s_cbranch_vccz {Lq5}
s_sleep 2
global_load_dword v28, v2, s[12:13] sc1
s_branch {Lp5}""")
    k.put(Lq5)
    for n in range(NI):
        o0, o1, og = ISG[n]
        g = XG + 12 * n
        k(f"""buffer_load_dwordx2 v[{g}:{g+1}], v4, s[56:59], s{o0} offen sc1
buffer_load_dwordx2 v[{g+2}:{g+3}], v4, s[56:59], s{o1} offen sc1
buffer_load_dwordx4 v[{g+4}:{g+7}], v5, s[24:27], s{og} offen sc1
buffer_load_dwordx4 v[{g+8}:{g+11}], v5, s[24:27], s{og} offen offset:64 sc1""")
    Lj = k.label("join")
    Lown = k.label("own")
    OWN = 3 * STG
    SLOT = 10240 + 256
    k.srd_off(32, 10, 11, WS_PART, 64 * 16 * SLOT)
    k(f"""s_lshl_b32 s67, s63, 2
s_add_u32 s67, s67, s53
s_lshl_b32 s36, s67, 2
s_add_u32 s36, s36, s18
s_lshl_b32 s36, s36, 2
s_add_u32 s36, s36, s62
s_mul_i32 s36, s36, {SLOT}
v_lshl_add_u32 v24, v1, 4, s36
v_add_u32 v25, 5120, v24
s_add_u32 s36, s36, 10240
v_lshl_add_u32 v26, v1, 2, s36
v_lshlrev_b32 v21, 4, v1
v_add_u32 v21, {OWN}, v21
s_movk_i32 s38, 4096
v_mov_b32 v27, 0
s_cmp_eq_u32 s18, s62
s_cbranch_scc1 {Lown}""")
    for ti in range(18):
        a = 32 + 4 * ti
        k(f"""v_max3_f32 v27, |v{a}|, |v{a+1}|, v27
v_max3_f32 v27, |v{a+2}|, |v{a+3}|, v27""")
    k(f"""v_frexp_exp_i32_f32 v27, v27
v_max_i32 v27, {(-100) & 0xffffffff:#x}, v27
v_sub_u32 v28, 15, v27
v_add_u32 v29, -15, v27
v_ldexp_f32 v28, 1.0, v28
v_ldexp_f32 v29, 1.0, v29
buffer_store_dword v29, v26, s[32:35], 0 offen sc1""")
    cnt = 0
    for i in range(2):
        for pr in range(5):
            tiles = [2 * pr, 2 * pr + 1] if pr < 4 else [8]
            ob = 120 + 4 * cnt
            cnt += 1
            for hi, t in enumerate(tiles):
                a = 32 + 4 * (t * 2 + i)
                k(f"""v_pk_mul_f32 v[{a}:{a+1}], v[{a}:{a+1}], v[28:29] op_sel_hi:[1,0]
v_pk_mul_f32 v[{a+2}:{a+3}], v[{a+2}:{a+3}], v[28:29] op_sel_hi:[1,0]
v_cvt_pk_f16_f32 v{ob+2*hi}, v{a}, v{a+1}
v_cvt_pk_f16_f32 v{ob+2*hi+1}, v{a+2}, v{a+3}""")
            so = "0" if pr < 4 else "s38"
            k(f"buffer_store_dwordx4 v[{ob}:{ob+3}], v{24+i}, s[32:35], {so} offen offset:{1024*(pr%4)} sc1")
    k(f"s_branch {Lj}")
    k.put(Lown)
    for i in range(2):
        for t in range(9):
            a = 32 + 4 * (t * 2 + i)
            k(f"ds_write_b128 v21, v[{a}:{a+3}] offset:{(i*10+t)*1024}")
    k.put(Lj)
    k(f"""s_lshl_b32 s37, s67, 2
s_add_u32 s37, s37, s62
s_lshl_b32 s37, s37, 2
s_add_u32 s37, s37, {F4}""")
    publish("s37", rep=False)
    k.stamp(2)
    for n in range(NI):
        b = IT + 40 * n
        k(f"""s_add_u32 s36, s18, {4*n}
s_min_u32 s36, s36, 9
s_lshl_b32 s36, s36, 11
v_add_u32 v8, s36, v21
ds_read_b128 v[{b+12}:{b+15}], v8
ds_read_b128 v[{b+16}:{b+19}], v8 offset:1024""")
    k(f"""s_lshl_b32 s37, s67, 4
s_add_u32 s37, s37, {F4}""")
    wait_flags("s37", 1, rep=False)
    k.stamp(3)
    k("s_waitcnt lgkmcnt(0)")
    k.srd(28, 4, 5, SD2)
    for n in range(NI):
        b = IT + 40 * n
        k(f"""s_add_u32 s36, s18, {4*n}
s_min_u32 s36, s36, 9
s_lshl_b32 s39, s36, 10""")
        for j in range(1, 4):
            k(f"""s_add_u32 s41, s39, s{43+j}
buffer_load_dwordx4 v[{b+4*(j-1)}:{b+4*(j-1)+3}], v6, s[32:35], s41 offen sc1""")
        if n == 0:
            for j in range(1, 4):
                k(f"buffer_load_dword v{8+j}, v7, s[32:35], s{43+j} offen sc1")
    for n in range(NI):
        o0, o1, og = ISG[n]
        b = IT + 40 * n
        A = b + 12
        k(f"s_waitcnt vmcnt({3*(NI-1-n) + 2*n})")
        for j in range(1, 4):
            for e in range(8):
                src = b + 4 * (j - 1) + e // 2
                k(f"v_fma_mix_f32 v{A+e}, v{src}, v{8+j}, v{A+e} op_sel:[{e&1},0,0] op_sel_hi:[1,0,0]")
        for h in range(4):
            rnd_pair(k, A + 2 * h, A + 2 * h + 1, b + 32 + h, 40)
        for h in range(4):
            k(f"v_pk_mul_f32 v[{A+2*h}:{A+2*h+1}], v[{A+2*h}:{A+2*h+1}], v[{XG+12*n+4+2*h}:{XG+12*n+5+2*h}]")
        for h in range(4):
            rnd_pair(k, A + 2 * h, A + 2 * h + 1, b + 32 + h, 40)
        for h in range(4):
            k(f"""v_lshlrev_b32 v{b+2*h}, 16, v{XG+12*n+h}
v_and_b32 v{b+2*h+1}, s40, v{XG+12*n+h}
v_pk_add_f32 v[{A+2*h}:{A+2*h+1}], v[{A+2*h}:{A+2*h+1}], v[{b+2*h}:{b+2*h+1}]
v_cvt_pk_bf16_f32 v{b+32+h}, v{A+2*h}, v{A+2*h+1}""")
        k(f"""buffer_store_dwordx2 v[{b+32}:{b+33}], v4, s[28:31], s{o0} offen
buffer_store_dwordx2 v[{b+34}:{b+35}], v4, s[28:31], s{o1} offen""")
    if k.stamps:
        k("s_waitcnt vmcnt(0)")
    k.stamp(4)
    k.stamp(5, real=True)
    k("s_waitcnt lgkmcnt(0)" if k.stamps else "")
    k.stamp_debug((6, 7, 8, 9, 10, 11, 12, 13, 14, 15, 2, 3, 4, 5))
    k.stamp_flush()
    k.put(Lexit)
    k("s_endpgm")
    return k


def gen_final16():
    k = K("final_kernel")
    k.kid = 1
    Lexit = k.label("exit")
    k(f"""s_cmp_ge_u32 s2, 640
s_cbranch_scc1 {Lexit}""")
    k.stamp_init()
    k(f"""s_load_dwordx2 s[4:5], s[0:1], {ARG['out']}
s_load_dwordx2 s[10:11], s[0:1], {ARG['ws']}
s_mov_b32 s40, 0xffff0000
v_and_b32 v1, 63, v0
v_lshrrev_b32 v2, 6, v0
s_lshl_b32 s16, s2, 2
v_readfirstlane_b32 s17, v2
s_nop 3
s_add_u32 s16, s16, s17
s_mul_i32 s17, s16, 52429
s_lshr_b32 s17, s17, 18
s_mul_i32 s18, s17, 5
s_sub_u32 s18, s16, s18
s_lshl_b32 s19, s16, 10
v_lshl_add_u32 v3, v1, 4, s19
s_lshr_b32 s20, s17, 2
s_and_b32 s21, s17, 3
s_lshr_b32 s19, s20, 1
s_lshl_b32 s19, s19, 2
s_add_u32 s19, s19, s21
s_lshl_b32 s19, s19, 8
s_add_u32 s19, s19, {P16_BYTES}
v_lshl_add_u32 v7, v1, 2, s19
s_lshl_b32 s22, s21, 3
s_lshl_b32 s23, s18, 1
s_add_u32 s22, s22, s23
s_add_u32 s23, s21, 32
s_cmp_eq_u32 s18, 4
s_cselect_b32 s22, s23, s22
s_cselect_b32 s41, 0x7fffff00, 0
v_and_b32 v4, 15, v1
v_lshrrev_b32 v5, 4, v1
s_lshl_b32 s19, s20, 4
v_add_u32 v4, s19, v4
s_movk_i32 s19, 1152
v_mul_lo_u32 v4, v4, s19
s_lshl_b32 s19, s22, 5
v_lshl_add_u32 v6, v5, 3, s19
v_add_u32 v4, v4, v6
v_lshlrev_b32 v6, 1, v6
s_mov_b32 s36, {P16_BYTES // 4}
s_mov_b32 s37, {2 * P16_BYTES // 4}
s_mov_b32 s38, {3 * P16_BYTES // 4}
s_mov_b32 s42, {SC_BYTES // 4}
s_mov_b32 s43, {2 * SC_BYTES // 4}
s_mov_b32 s44, {3 * SC_BYTES // 4}
s_waitcnt lgkmcnt(0)""")
    k.srd(20, 4, 5, SD2)
    k.srd_off(24, 10, 11, WS_PART, P16_BYTES + SC_BYTES)
    k.srd_off(28, 10, 11, WS_X1, SD2)
    k.srd_off(32, 10, 11, WS_GBV, D * 4)
    for j, (so, ss) in enumerate((("0", "0"), ("s36", "s42"), ("s37", "s43"), ("s38", "s44"))):
        k(f"""buffer_load_dwordx4 v[{8+4*j}:{11+4*j}], v3, s[24:27], {so} offen
buffer_load_dword v{24+j}, v7, s[24:27], {ss} offen""")
    k("""buffer_load_dwordx2 v[28:29], v4, s[28:31], 0 offen
buffer_load_dwordx2 v[30:31], v4, s[28:31], s41 offen offset:32
buffer_load_dwordx4 v[32:35], v6, s[32:35], 0 offen
buffer_load_dwordx4 v[36:39], v6, s[32:35], 0 offen offset:64""")
    A = 40
    for j in range(4):
        k(f"s_waitcnt vmcnt({4 + 2*(3-j)})")
        for e in range(8):
            src = 8 + 4 * j + e // 2
            sel = e & 1
            c = "0" if j == 0 else f"v{A+e}"
            k(f"v_fma_mix_f32 v{A+e}, v{src}, v{24+j}, {c} op_sel:[{sel},0,0] op_sel_hi:[1,0,0]")
    for h in range(4):
        rnd_pair(k, A + 2 * h, A + 2 * h + 1, 8 + h, 40)
    k("s_waitcnt vmcnt(0)")
    for h in range(4):
        k(f"v_pk_mul_f32 v[{A+2*h}:{A+2*h+1}], v[{A+2*h}:{A+2*h+1}], v[{32+2*h}:{33+2*h}]")
    for h in range(4):
        rnd_pair(k, A + 2 * h, A + 2 * h + 1, 8 + h, 40)
    for h in range(4):
        k(f"""v_lshlrev_b32 v{12+2*h}, 16, v{28+h}
v_and_b32 v{13+2*h}, s40, v{28+h}
v_pk_add_f32 v[{A+2*h}:{A+2*h+1}], v[{A+2*h}:{A+2*h+1}], v[{12+2*h}:{13+2*h}]
v_cvt_pk_bf16_f32 v{20+h}, v{A+2*h}, v{A+2*h+1}""")
    k("""buffer_store_dwordx2 v[20:21], v4, s[20:23], 0 offen
buffer_store_dwordx2 v[22:23], v4, s[20:23], s41 offen offset:32""")
    k.stamp(3)
    if k.stamps:
        k("s_waitcnt vmcnt(0)")
    k.stamp(4)
    k.stamp(5, real=True)
    k.stamp_flush()
    k.put(Lexit)
    k("s_endpgm")
    k.vgpr = 48
    k.sgpr = 48
    return k
```
